```python
import torch

def _softmax(x, axis=-1):
    return torch.softmax(x, dim=axis)

def _gelu(x):
    return torch.nn.functional.gelu(x, approximate='tanh')

def _silu(x):
    return torch.nn.functional.silu(x)

def _sigmoid(x):
    return torch.sigmoid(x)

def _layernorm(x, axis=-1, eps=1e-05):
    m = x.mean(dim=axis, keepdim=True)
    v = x.var(dim=axis, keepdim=True, unbiased=False)
    return (x - m) / torch.sqrt(v + eps)

def _scatter_add(tgt, idx, src, axis=0):
    return tgt.clone().index_add_(axis, idx, src)

def _segment_sum(src, seg, n):
    out = torch.zeros((n,) + src.shape[1:], dtype=src.dtype)
    return out.index_add_(0, seg, src)

def _pad(x, pw):
    flat = tuple((v for pair in reversed(pw) for v in pair))
    return torch.nn.functional.pad(x, flat)
kernel_name = 'concat_heads__ssm_conv_s5__memory_aug_recurrent_mem_tr__prompt'

def setup_inputs():

    _w = lambda a: (lambda t: t.to(torch.bfloat16) if t.is_floating_point() else t)(torch.as_tensor(a))

    def _A_setup():
        B, S, D = (1, 2048, 1024)
        P = D
        Lambda_re = -0.5 * (lambda _x: torch.exp(torch.as_tensor(_x)))((lambda *s: torch.randn(*s, dtype=torch.bfloat16) * 0.8)(P))
        Lambda_im = (lambda *s: torch.randn(*s, dtype=torch.bfloat16) * 0.8)(P) * 1.0
        B_re = (lambda *s: torch.randn(*s, dtype=torch.bfloat16) * 0.8)(P, D) * D ** (-0.5)
        B_im = (lambda *s: torch.randn(*s, dtype=torch.bfloat16) * 0.8)(P, D) * D ** (-0.5)
        C_re = (lambda *s: torch.randn(*s, dtype=torch.bfloat16) * 0.8)(D, P) * P ** (-0.5)
        C_im = (lambda *s: torch.randn(*s, dtype=torch.bfloat16) * 0.8)(D, P) * P ** (-0.5)
        log_dt = (lambda *s: torch.randn(*s, dtype=torch.bfloat16) * 0.8)(P) * 0.3 - 2.0
        Dskip = (lambda *s: torch.randn(*s, dtype=torch.bfloat16) * 0.8)(D)
        return {'x': _w((lambda *s: torch.randn(*s, dtype=torch.bfloat16) * 0.05)(B, S, D)), 'Lambda_re': _w(Lambda_re), 'Lambda_im': _w(Lambda_im), 'B_re': _w(B_re), 'B_im': _w(B_im), 'C_re': _w(C_re), 'C_im': _w(C_im), 'log_dt': _w(log_dt), 'Dskip': _w(Dskip)}
    _A_in = _A_setup()

    def _B_setup():
        B, S, Dm = (1, 2048, 1024)
        H, Dh = (32, 128)
        M, seg = (8, 32)
        seg = min(seg, S)
        S = S // seg * seg
        return {'x': _w((lambda *s: torch.randn(*s, dtype=torch.bfloat16) * 0.05)(B, S, Dm)), 'mem0': _w((lambda *s: torch.randn(*s, dtype=torch.bfloat16) * 0.8)(B, M, Dm)), 'Wq': _w((lambda *s: torch.randn(*s, dtype=torch.bfloat16) * 3.2)(Dm, H, Dh) * Dm ** (-0.5)), 'Wk': _w((lambda *s: torch.randn(*s, dtype=torch.bfloat16) * 3.2)(Dm, H, Dh) * Dm ** (-0.5)), 'Wv': _w((lambda *s: torch.randn(*s, dtype=torch.bfloat16) * 0.8)(Dm, H, Dh) * Dm ** (-0.5)), 'Wo': _w((lambda *s: torch.randn(*s, dtype=torch.bfloat16) * 0.8)(H, Dh, Dm) * (H * Dh) ** (-0.5)), 'seg_len': seg}
    _B_in = _B_setup()
    return {'A_x': _A_in['x'], 'A_Lambda_re': _A_in['Lambda_re'], 'A_Lambda_im': _A_in['Lambda_im'], 'A_B_re': _A_in['B_re'], 'A_B_im': _A_in['B_im'], 'A_C_re': _A_in['C_re'], 'A_C_im': _A_in['C_im'], 'A_log_dt': _A_in['log_dt'], 'A_Dskip': _A_in['Dskip'], 'B_x': _B_in['x'], 'B_mem0': _B_in['mem0'], 'B_Wq': _B_in['Wq'], 'B_Wk': _B_in['Wk'], 'B_Wv': _B_in['Wv'], 'B_Wo': _B_in['Wo'], 'B_seg_len': _B_in['seg_len']}

def reference(A_x, A_Lambda_re, A_Lambda_im, A_B_re, A_B_im, A_C_re, A_C_im, A_log_dt, A_Dskip, B_x, B_mem0, B_Wq, B_Wk, B_Wv, B_Wo, B_seg_len):

    def _A_ref(x, Lambda_re, Lambda_im, B_re, B_im, C_re, C_im, log_dt, Dskip):
        Bsz, L, H = x.shape
        Lam = Lambda_re + 1j * Lambda_im
        Bmat = B_re + 1j * B_im
        Cmat = C_re + 1j * C_im
        dt = torch.exp(log_dt)
        Lam_bar = torch.exp(dt * Lam)
        B_bar = ((Lam_bar - 1.0) / Lam)[:, None] * Bmat
        Bu = torch.einsum('bld,pd->blp', x + 0j, B_bar)
        h = torch.zeros_like(Bu[:, 0, :])
        hs = []
        for t in range(L):
            h = Lam_bar[None, :] * h + Bu[:, t, :]
            hs.append(h)
        hseq = torch.stack(hs, 1)
        y = 2.0 * torch.einsum('blp,dp->bld', hseq, Cmat).real + x * Dskip[None, None, :]
        return y

    def _B_ref(x, mem0, Wq, Wk, Wv, Wo, seg_len):
        B, S, Dm = x.shape
        H, Dh = (Wq.shape[1], Wq.shape[2])
        M = mem0.shape[1]
        scale = Dh ** (-0.5)
        n_seg = S // seg_len
        L = M + seg_len
        idx = torch.arange(L)
        mask = (idx[:, None] < M) | (idx[:, None] >= idx[None, :])
        mem = mem0
        outs = []
        for s in range(n_seg):
            xs = x[:, s * seg_len:(s + 1) * seg_len, :].clone()
            h = torch.concatenate([mem, xs], axis=1)
            q = torch.einsum('btd,dhe->bhte', h, Wq)
            k = torch.einsum('btd,dhe->bhte', h, Wk)
            v = torch.einsum('btd,dhe->bhte', h, Wv)
            scores = torch.einsum('bhqe,bhke->bhqk', q, k) * scale
            scores = torch.where(mask[None, None], scores, -1000000000.0)
            p = _softmax(scores, axis=-1)
            o = torch.einsum('bhqk,bhke->bhqe', p, v)
            o = torch.einsum('bhte,hed->btd', o, Wo)
            mem = o[:, :M, :].clone()
            outs.append(o[:, M:, :])
        return torch.concatenate(outs, axis=1)
    a = _A_ref(A_x, A_Lambda_re, A_Lambda_im, A_B_re, A_B_im, A_C_re, A_C_im, A_log_dt, A_Dskip)
    b = _B_ref(B_x, B_mem0, B_Wq, B_Wk, B_Wv, B_Wo, B_seg_len)
    return torch.concatenate([a, b], axis=-1)
```

```python
A_X, A_LRE, A_LIM, A_BRE, A_BIM, A_CRE, A_CIM, A_LOGDT, A_DSKIP, B_X, B_MEM0, B_WQ, B_WK, B_WV, B_WO, B_SEG, D_OUT, D_DBG, D_WS = range(19)
MB = 1 << 20
PTR0 = 64
def ptr(i):
    return PTR0 + 2 * i
WS_SIZE = 268435456
WS_KVQ = 0
X_PXF = 128 * MB
WS_HT = 160 * MB
X_EX = 176 * MB
X_AGG = 177 * MB
X_LF = 178 * MB
X_SF = X_LF + 1024
X_CAL = 180 * MB
X_SP = 184 * MB
WS_END = 192 * MB
WS_DBG = 200 * MB
D_CAL, D_EH, D_AGG = 1, 3, 5
D_PROG = 52
D_EV = 16
D_ROLE = 32
NKV = 96
```

```python
class Asm:
    def __init__(self):
        self.lines = []
        self._uid = 0

    def I(self, s):
        self.lines.append("    " + s)

    def C(self, s):
        self.lines.append("    ; " + s)

    def L(self, label):
        self.lines.append(label + ":")

    def raw(self, s):
        self.lines.append(s)

    def uid(self, base):
        self._uid += 1
        return "%s_%d" % (base, self._uid)

    def text(self):
        return "\n".join(self.lines) + "\n"

    def smov(self, sreg, val):
        val &= 0xFFFFFFFF
        self.I("s_mov_b32 s%d, 0x%x" % (sreg, val))

    def vmov(self, vreg, val):
        val &= 0xFFFFFFFF
        self.I("v_mov_b32 v%d, 0x%x" % (vreg, val))

    def srd(self, d, ptr, off, size):
        assert d % 4 == 0
        if off == 0:
            self.I("s_mov_b32 s%d, s%d" % (d, ptr))
            self.I("s_and_b32 s%d, s%d, 0xffff" % (d + 1, ptr + 1))
        else:
            self.I("s_add_u32 s%d, s%d, 0x%x" % (d, ptr, off & 0xFFFFFFFF))
            self.I("s_addc_u32 s%d, s%d, 0" % (d + 1, ptr + 1))
            self.I("s_and_b32 s%d, s%d, 0xffff" % (d + 1, d + 1))
        self.I("s_mov_b32 s%d, 0x%x" % (d + 2, size))
        self.I("s_mov_b32 s%d, 0x00020000" % (d + 3))


def vr(a, n=1):
    return "v%d" % a if n == 1 else "v[%d:%d]" % (a, a + n - 1)


def ar(a, n=1):
    return "a%d" % a if n == 1 else "a[%d:%d]" % (a, a + n - 1)


def sr(a, n=1):
    return "s%d" % a if n == 1 else "s[%d:%d]" % (a, a + n - 1)


def kernel_desc(name, vgpr=512, accum=256, sgpr=102):
    return """.section .rodata,"a"
.p2align 6
.amdhsa_kernel %s
  .amdhsa_next_free_vgpr %d
  .amdhsa_next_free_sgpr %d
  .amdhsa_accum_offset %d
  .amdhsa_group_segment_fixed_size 0
  .amdhsa_kernarg_size 152
  .amdhsa_user_sgpr_count 2
  .amdhsa_user_sgpr_kernarg_segment_ptr 1
  .amdhsa_system_sgpr_workgroup_id_x 1
  .amdhsa_float_denorm_mode_32 3
  .amdhsa_float_denorm_mode_16_64 3
.end_amdhsa_kernel
""" % (name, vgpr, sgpr, accum)


def place(items, cap, is_dma=lambda l: l.endswith(" lds")):
    out = {}
    cap = list(cap)
    s = 0
    for first, lines, atomic in items:
        s = max(s, first)
        if atomic:
            while cap[s] <= 0:
                s += 1
            out.setdefault(s, []).extend(lines)
            cap[s] -= len(lines)
            continue
        for l in lines:
            if is_dma(l) and out.get(s) and " m0," in out[s][-1]:
                s += 1
            while cap[s] <= 0:
                s += 1
            out.setdefault(s, []).append(l)
            cap[s] -= 2 if l.startswith("buffer_") else 1
    return out
```

```python
from asmlib import *
from L2 import *
import kvs
import os

E = lambda k, d: int(os.environ.get(k, str(d)))
PRE_Q, PACE = E("PRE_Q", 44), E("PACE", 14)
GAP_S = E("GAP_S", 14)
PRE_S = E("PRE_S", 20)
VPRE, VMID = E("VPRE", 2), E("VMID", 2)
PF = os.environ.get("PF", "B")
NREP = E("PXR", 2)
OSTA, TCHA = E("OSTA", 1), E("TCHA", 0)
WNT = " nt" if E("WNT", 1) else ""
KVP = os.environ.get("KVP", "near")
PRE_O = E("PRE_O", 36)
PRE_P, GAP_P = E("PRE_P", 0), E("GAP_P", 0)

S_WS, S_TMPSRD = 8, 12
S_X, S_J, S_W, S_STEP = 16, 17, 18, 19
S_T0, S_T1, S_T2, S_T3 = 20, 21, 22, 23
S_M8 = 24
S_EV = 26
S_REL = 30
S_KV = 31
S_KM = 32
S_SPIN = 33
S_PXB = 52
S_EXB = 53
S_KVL = 54
S_CUR, S_NXT, S_POI, S_PX0, S_PX1, S_PP0, S_PP1 = 40, 41, 42, 43, 44, 45, 46
S_ID = 47
S_KVB, S_KMB, S_POL, S_LF = 48, 49, 50, 62
S_W01, S_WT = 38, 39
S_JQ, S_JM = 28, 29
S_GATE = 55
S_DBG = 60
S_C = 56
S_SCL = 58

V_LIN = 1
V_GLD = 2
V_OLD = 3
V_QXST, V_QXLD, V_OXST, V_MEMST, V_PXST = 4, 5, 6, 7, 8
V_PXLD = 9
V_RQW = 12
V_RQR, V_RW, V_ROR, V_SEL, V_IDX, V_CHK = 15, 16, 17, 18, 19, 20
V_KVR = 21
V_H0, V_H1, V_H2, V_H3 = 22, 23, 24, 25
V_L8 = 26
V_M0LD = 27
V_ONES = 28
V_M = 32
V_MR = 48
V_AQ = 64
V_AV = 72
V_AO = 76
V_R = 80
V_KF = 104
V_VT = 136
V_VM = 144
V_QS = (148, 164, 32, 48)
V_SC = (80, 92, 220)
V_S0, V_S1, V_S2 = 180, 184, 188
V_P = 192
V_O = 200
V_T = 208
V_L = 220
V_Y = 232
V_KXW = 234
V_ROW = 238
V_D0, V_D1, V_D2 = 235, 236, 237
V_SMP = 248
V_XQ, V_XKM, V_XT, V_XB = 148, 164, 212, 96
V_XKA, V_XQA = 241, 242

L_RQK, L_RV, L_RO, L_VMF, L_ROLE, L_KX, L_KV = 0, 12288, 20480, 28672, 31744, 29696, 32768
L_STAGE = 32768
L_Q, L_QXC = L_KV + 10240, L_KV + 18432

SPIN_LIMIT = 1 << 20
LAST = E("LAST", 63)
ABL = os.environ.get('ABL', '')
ABORT = [None]
DUMP = [None]
COLD = []
LOOPSTART = [None, None]
W = "s[%d:%d]" % (S_WS, S_WS + 3)


def a_qk(t, b):
    return (t * 4 + b) * 8


def a_v(t, b):
    return 128 + (t * 4 + b) * 8


def a_wo(t, b):
    return 192 + (t * 4 + b) * 8


def fill(a, work, n):
    k = 0
    while work and k < n:
        a.I(work.pop(0))
        k += 1
    n -= k
    while n > 0:
        q = min(n, 16)
        a.I("s_nop %d" % (q - 1))
        n -= q


def spin_lines(cnt=None, bound=True):
    pre = ["s_add_u32 s%d, s%d, 1" % (94 + cnt, 94 + cnt)] if (cnt is not None and os.environ.get("STAMP") == "2") else []
    if not bound:
        return pre
    return pre + ["s_add_u32 s%d, s%d, 1" % (S_SPIN, S_SPIN), "s_cmp_gt_u32 s%d, 0x%x" % (S_SPIN, SPIN_LIMIT), "s_cbranch_scc1 %s" % ABORT[0]]


def gather_fifo(a, tag, loads, accs, wts, extra=[]):
    uid = a.uid("G" + tag)
    done = uid + "_done"
    nm = lambda st, p: "".join(map(str, st)) + ("" if p is None else "p%d" % p)
    lab = lambda st, p: uid + "_s" + nm(st, p)
    cnt = {"q": 0, "o": 2}[tag]
    U = lambda b: [smf(c, wts(k, 0, b), V_M + 4 * b) for k, c in enumerate(accs)]
    R = lambda b: [smf(c, wts(k, 1, b), V_MR + 4 * b) for k, c in enumerate(accs)]
    ror = lambda b: ["v_mov_b32_dpp v%d, v%d row_ror:8 row_mask:0xf bank_mask:0xf" % (V_MR + 4 * b + i, V_M + 4 * b + i) for i in range(4)]
    ind = lambda ls: ["    " + l for l in ls]
    defer = len(accs) == 2
    emitted, todo = set(), []

    def body(st, p, hot):
        c = st[0]
        f = uid + "_f" + nm(st, p)
        o = ror(c)
        seq = ["s_waitcnt vmcnt(%d)" % (len(st) - 1), "v_cmp_eq_u32 vcc, -1, v%d" % (V_M + 4 * c)]
        seq += o if p is None else [R(p)[0], o[0], o[1], R(p)[1], o[2], o[3]]
        seq += ["s_cbranch_vccnz %s" % f] + U(c)
        if not defer or len(st) == 1:
            seq += R(c)
        nxt = st[1:] + (c,)
        stub = [f + ":"] + ind([loads[c]] + spin_lines(cnt, not hot) + ["s_branch %s" % lab(nxt, None)])
        emitted.add((st, p))
        todo.append((nxt, None))
        return [lab(st, p) + ":"] + ind(seq), stub, (st[1:], c if defer else None)
    st, p = (0, 1, 2, 3), None
    while st:
        out, stub, (st, p) = body(st, p, len(st) == 4)
        for l in out:
            a.raw(l)
        COLD.extend(stub)
    a.L(done)
    COLD.extend([uid + "_redo:"] + ind(loads + spin_lines(cnt) + ["s_nop 5"] + ["v_mov_b32 v%d, 0" % (x + i) for x in accs + extra for i in range(4)] +
                                       ["s_branch %s" % lab((0, 1, 2, 3), None)]))
    while todo:
        st, p = todo.pop(0)
        stubs = []
        while st and (st, p) not in emitted:
            out, stub, (st, p) = body(st, p, False)
            COLD.extend(out)
            stubs.extend(stub)
            if not st or (st, p) in emitted:
                COLD.append("    s_branch %s" % (lab(st, p) if st else done))
        COLD.extend(stubs)
    t0, t1 = V_CHK, V_T
    m = lambda b, i: V_M + 4 * b + i
    return ["v_max3_u32 v%d, v%d, v%d, v%d" % (t0, m(0, 1), m(0, 2), m(0, 3)),
            "v_max3_u32 v%d, v%d, v%d, v%d" % (t1, m(1, 1), m(1, 2), m(1, 3)),
            "v_max3_u32 v%d, v%d, v%d, v%d" % (t1 + 1, m(2, 1), m(2, 2), m(2, 3)),
            "v_max3_u32 v%d, v%d, v%d, v%d" % (t1 + 2, m(3, 1), m(3, 2), m(3, 3)),
            "v_max_u32 v%d, v%d, v%d" % (t0, t0, t1),
            "v_max3_u32 v%d, v%d, v%d, v%d" % (t0, t0, t1 + 1, t1 + 2),
            "v_cmp_eq_u32 vcc, -1, v%d" % t0], "s_cbranch_vccnz %s_redo" % uid


def prologue_addrs(a):
    I = a.I
    T = V_T
    a.C("---- chain address registers")
    I("s_mov_b32 s%d, 0x00ff00ff" % S_M8)
    I("s_mov_b32 s%d, 0x00ff00ff" % (S_M8 + 1))
    I("s_mov_b32 s%d, 0x55555555" % S_EV)
    I("s_mov_b32 s%d, 0x55555555" % (S_EV + 1))
    I("s_mov_b32 s%d, 0x3fb8aa3b" % S_C)
    I("s_mov_b32 s%d, 0x3fb8aa3b" % (S_C + 1))
    I("s_mov_b32 s%d, 0x3db504f3" % S_SCL)
    I("s_mov_b32 s%d, 0x3db504f3" % (S_SCL + 1))
    I("s_lshl_b32 s%d, s%d, 16" % (S_EXB, S_X))
    I("s_add_u32 s%d, s%d, 0x%x" % (S_EXB, S_EXB, X_EX))
    I("s_xor_b32 s%d, s%d, 8" % (S_JM, S_J))
    I("s_and_b32 s%d, s%d, 1" % (S_JQ, S_J))
    I("s_bfe_u32 s%d, s%d, 0x10001" % (S_T0, S_J))
    I("s_xor_b32 s%d, s%d, 1" % (S_T0, S_T0))
    I("s_lshl1_add_u32 s%d, s%d, s%d" % (S_JQ, S_JQ, S_T0))
    I("s_lshl_b32 s%d, s%d, 5" % (S_ID, S_X))
    I("s_add_u32 s%d, s%d, s%d" % (S_ID, S_ID, S_J))
    I("s_mov_b64 s[%d:%d], s[%d:%d]" % (S_DBG, S_DBG + 1, ptr(D_DBG), ptr(D_DBG) + 1))
    for i in range(4):
        I("v_mov_b32 v%d, -1" % (V_ONES + i))
    n, g, l, t0, t1, t2 = T, T + 1, T + 2, T + 4, T + 5, T + 6
    I("v_and_b32 v%d, 63, v0" % l)
    I("v_and_b32 v%d, 15, v0" % n)
    I("v_bfe_u32 v%d, v0, 4, 2" % g)
    I("v_lshlrev_b32 v%d, 4, v%d" % (V_LIN, l))
    I("v_lshlrev_b32 v%d, 3, v%d" % (V_L8, l))
    I("s_lshl_b32 s%d, s%d, 12" % (S_T1, S_W))
    I("v_add_u32 v%d, s%d, v%d" % (V_GLD, S_T1, V_LIN))
    I("s_xor_b32 s%d, s%d, 3" % (S_T2, S_W))
    I("s_lshl_b32 s%d, s%d, 4" % (S_T2, S_T2))
    if 'noperm' in ABL:
        I("s_mov_b32 s%d, 0" % S_T2)
    I("v_xor_b32 v%d, s%d, v%d" % (V_OLD, S_T2, V_GLD))
    I("v_add_u32 v%d, 16384, v%d" % (V_OLD, V_OLD))
    I("s_and_b32 s%d, s%d, 16" % (S_T2, S_T2))
    I("s_lshl_b32 s%d, s%d, 1" % (S_T2, S_T2))
    I("v_xor_b32 v%d, s%d, v%d" % (V_GLD, S_T2, V_GLD))
    I("v_mov_b32 v%d, 0xeeeeeeee" % V_IDX)
    I("v_mov_b32 v%d, 0x44444444" % t0)
    I("v_cndmask_b32 v%d, v%d, v%d, s[%d:%d]" % (V_IDX, V_IDX, t0, S_M8, S_M8 + 1))
    I("v_mov_b32 v%d, 0x03020706" % V_SEL)
    I("v_mov_b32 v%d, 0x05040100" % t0)
    I("v_cndmask_b32 v%d, v%d, v%d, s[%d:%d]" % (V_SEL, V_SEL, t0, S_EV, S_EV + 1))
    I("s_lshr_b32 s%d, s%d, 2" % (S_T1, S_J))
    I("s_lshl_b32 s%d, s%d, 12" % (S_T1, S_T1))
    I("s_add_u32 s%d, s%d, 32768" % (S_T1, S_T1))
    I("v_add_u32 v%d, s%d, v%d" % (V_QXLD, S_T1, V_LIN))
    I("s_and_b32 s%d, s%d, 1" % (S_T2, S_JQ))
    I("s_lshl_b32 s%d, s%d, 11" % (S_T2, S_T2))
    I("s_add_u32 s%d, s%d, s%d" % (S_T1, S_T1, S_T2))
    I("s_bfe_u32 s%d, s%d, 0x10001" % (S_T2, S_JQ))
    I("s_lshl_b32 s%d, s%d, 7" % (S_T2, S_T2))
    I("s_add_u32 s%d, s%d, s%d" % (S_T3, S_T1, S_T2))
    I("v_and_b32 v%d, 1, v%d" % (t0, g))
    I("v_lshlrev_b32 v%d, 6, v%d" % (V_KXW, t0))
    I("v_and_b32 v%d, 1, v%d" % (t0, n))
    I("v_lshl_add_u32 v%d, v%d, 4, v%d" % (V_KXW, t0, V_KXW))
    I("v_bfe_u32 v%d, v%d, 1, 2" % (t0, n))
    I("v_lshl_add_u32 v%d, v%d, 2, v%d" % (V_KXW, t0, V_KXW))
    I("s_and_b32 s%d, s%d, 1" % (S_T2, S_W))
    I("s_lshl_b32 s%d, s%d, 5" % (S_T2, S_T2))
    I("v_add_u32 v%d, s%d, v%d" % (V_KXW, S_T2, V_KXW))
    I("v_lshrrev_b32 v%d, 3, v%d" % (t0, n))
    I("v_and_b32 v%d, 2, v%d" % (t1, g))
    I("v_add_u32 v%d, v%d, v%d" % (t0, t0, t1))
    I("s_and_b32 s%d, s%d, 2" % (S_T2, S_W))
    I("s_lshl_b32 s%d, s%d, 1" % (S_T2, S_T2))
    I("v_add_u32 v%d, s%d, v%d" % (t0, S_T2, t0))
    I("v_lshl_add_u32 v%d, v%d, 8, v%d" % (V_QXST, t0, V_KXW))
    I("v_lshl_add_u32 v%d, v%d, 7, v%d" % (V_KXW, t0, V_KXW))
    I("v_add_u32 v%d, s%d, v%d" % (V_QXST, S_T3, V_QXST))
    I("v_lshrrev_b32 v%d, 3, v%d" % (t0, l))
    I("v_and_b32 v%d, 7, v%d" % (t1, l))
    I("v_lshlrev_b32 v%d, 8, v%d" % (V_H0, t0))
    I("v_lshl_add_u32 v%d, v%d, 4, v%d" % (V_H0, t1, V_H0))
    I("v_add_u32 v%d, s%d, v%d" % (V_H0, S_T3, V_H0))
    I("s_lshr_b32 s%d, s%d, 2" % (S_T0, S_ID))
    I("s_lshl_b32 s%d, s%d, 16" % (S_KVB, S_T0))
    I("s_and_b32 s%d, s%d, 3" % (S_T1, S_J))
    I("s_lshl_b32 s%d, s%d, 11" % (S_T2, S_T1))
    I("s_add_u32 s%d, s%d, 0x4000" % (S_T2, S_T2))
    I("v_add_u32 v%d, s%d, v%d" % (V_D2, S_T2, V_LIN))
    I("v_lshlrev_b32 v%d, 7, v%d" % (V_D1, n))
    I("v_and_b32 v%d, 1, v%d" % (t0, g))
    I("v_lshl_add_u32 v%d, v%d, 15, v%d" % (V_D1, t0, V_D1))
    I("s_lshl_b32 s%d, s%d, 11" % (S_T2, S_T1))
    I("v_add_u32 v%d, s%d, v%d" % (V_D1, S_T2, V_D1))
    if TCHA == 1:
        I("v_or_b32 v%d, 0x8000, v%d" % (V_H3, V_D1))
        I("v_xor_b32 v%d, 0x8000, v%d" % (V_D1, V_H3))
    else:
        I("v_mov_b32 v%d, v%d" % (V_H3, V_D1))
    I("s_cmp_lt_u32 s%d, 2" % S_W)
    I("s_cselect_b32 s%d, 0xf0000000, 0" % S_W01)
    I("s_cmp_lg_u32 s%d, 1" % S_W)
    I("s_cselect_b32 s%d, 0xf0000000, 0" % S_WT)
    I("s_lshr_b32 s%d, s%d, 1" % (S_T2, S_W))
    I("s_mul_i32 s%d, s%d, %d" % (S_KVL, S_T2, L_Q - L_KV))
    I("s_lshl_b32 s%d, s%d, 15" % (S_T2, S_T2))
    I("s_and_b32 s%d, s%d, 1" % (S_T3, S_W))
    I("s_lshl_b32 s%d, s%d, 12" % (S_T3, S_T3))
    I("s_add_u32 s%d, s%d, s%d" % (S_KVL, S_KVL, S_T3))
    I("s_add_u32 s%d, s%d, %d" % (S_KVL, S_KVL, L_KV))
    I("s_add_u32 s%d, s%d, s%d" % (S_T2, S_T2, S_T3))
    I("v_add_u32 v%d, s%d, v%d" % (V_D0, S_T2, V_LIN))
    I("v_lshrrev_b32 v%d, 3, v%d" % (t0, l))
    I("v_lshl_add_u32 v%d, v%d, 7, v%d" % (V_H2, t0, V_QXLD))
    I("v_add_u32 v%d, 128, v%d" % (V_H2, V_H2))
    I("s_and_b32 s%d, s%d, 1" % (S_T2, S_W))
    I("s_lshl_b32 s%d, s%d, 12" % (S_T2, S_T2))
    I("v_add_u32 v%d, s%d, v%d" % (V_XQA, S_T2, V_LIN))
    I("s_lshl_b32 s%d, s%d, 10" % (S_T1, S_T1))
    I("s_add_u32 s%d, s%d, 0xc000" % (S_T1, S_T1))
    I("v_add_u32 v%d, s%d, v%d" % (V_H1, S_T1, V_XQA))
    I("v_lshlrev_b32 v%d, 7, v%d" % (V_XKA, g))
    for bit, sh in ((2, 6), (3, 5), (0, 4)):
        I("v_bfe_u32 v%d, v0, %d, 1" % (t0, bit))
        I("v_lshl_add_u32 v%d, v%d, %d, v%d" % (V_XKA, t0, sh, V_XKA))
    I("v_and_b32 v%d, 7, v%d" % (t0, n))
    I("v_lshlrev_b32 v%d, 4, v%d" % (V_OXST, t0))
    I("v_lshl_add_u32 v%d, v%d, 7, v%d" % (V_OXST, g, V_OXST))
    I("s_lshl_b32 s%d, s%d, 9" % (S_T1, S_J))
    I("s_add_u32 s%d, s%d, 16384" % (S_T2, S_T1))
    I("v_add_u32 v%d, s%d, v%d" % (V_OXST, S_T2, V_OXST))
    I("v_lshrrev_b32 v%d, 3, v%d" % (t0, n))
    I("v_and_b32 v%d, 2, v%d" % (t1, g))
    I("v_add_u32 v%d, v%d, v%d" % (t0, t0, t1))
    I("v_lshlrev_b32 v%d, 7, v%d" % (V_MEMST, t0))
    I("v_and_b32 v%d, 1, v%d" % (t0, g))
    I("v_lshl_add_u32 v%d, v%d, 6, v%d" % (V_MEMST, t0, V_MEMST))
    I("v_bfe_u32 v%d, v%d, 1, 2" % (t0, n))
    I("v_lshl_add_u32 v%d, v%d, 2, v%d" % (V_MEMST, t0, V_MEMST))
    I("s_lshl_b32 s%d, s%d, 9" % (S_T1, S_JM))
    I("s_lshl_b32 s%d, s%d, 4" % (S_T2, S_W))
    I("s_add_u32 s%d, s%d, s%d" % (S_T1, S_T1, S_T2))
    I("v_add_u32 v%d, s%d, v%d" % (V_MEMST, S_T1, V_MEMST))
    I("v_bfe_u32 v%d, v%d, 1, 3" % (t0, l))
    I("v_and_b32 v%d, 1, v%d" % (t1, l))
    I("v_lshlrev_b32 v%d, 11, v%d" % (V_M0LD, t0))
    I("v_lshl_add_u32 v%d, v%d, 3, v%d" % (V_M0LD, t1, V_M0LD))
    I("v_lshl_add_u32 v%d, v%d, 4, v%d" % (V_M0LD, g, V_M0LD))
    I("s_lshl_b32 s%d, s%d, 6" % (S_T1, S_JM))
    I("v_add_u32 v%d, s%d, v%d" % (V_M0LD, S_T1, V_M0LD))
    I("v_lshlrev_b32 v%d, 2, v%d" % (t0, l))
    for e in range(3):
        I("s_xor_b32 s%d, s%d, %d" % (S_T1, S_W, e ^ 3))
        I("s_mul_i32 s%d, s%d, 768" % (S_T1, S_T1))
        I("s_add_u32 s%d, s%d, %d" % (S_T1, S_T1, e * 256))
        I("v_add_u32 v%d, s%d, v%d" % (V_ROW + e, S_T1, t0))
        I("v_lshlrev_b32 v%d, 1, v%d" % (V_RQW + e, V_ROW + e))
    I("s_mul_i32 s%d, s%d, 768" % (S_T1, S_W))
    I("v_add_u32 v%d, s%d, v%d" % (V_ROR, S_T1, t0))
    I("v_lshlrev_b32 v%d, 1, v%d" % (V_RQR, V_ROR))
    I("s_lshl_b32 s%d, s%d, 10" % (S_T1, S_W))
    I("v_add_u32 v%d, s%d, v%d" % (V_RW, S_T1, V_LIN))


def dbg_wait(a, word, target, mask=None):
    I = a.I
    I("v_mov_b32 v%d, %s" % (V_SMP, word * 4 if isinstance(word, int) else word))
    rt, ok = a.uid("L_kvw"), a.uid("L_kvok")
    a.L(rt)
    I("global_load_dword v%d, v%d, s[%d:%d] sc1" % (V_SMP + 1, V_SMP, S_DBG, S_DBG + 1))
    for l in spin_lines():
        I(l)
    I("s_waitcnt vmcnt(0)")
    I("v_readfirstlane_b32 s%d, v%d" % (S_T0, V_SMP + 1))
    if mask:
        I("s_and_b32 s%d, s%d, 0x%x" % (S_T1, S_T0, mask))
    I("s_cmp_ge_u32 s%d, %d" % (S_T1 if mask else S_T0, target))
    I("s_cbranch_scc1 %s" % ok)
    I("s_sleep 16")
    I("s_branch %s" % rt)
    a.L(ok)


def relay_wait(a, g):
    I = a.I
    lp, lo, ok = a.uid("L_rl"), a.uid("L_rlo"), a.uid("L_rlok")
    I("v_mov_b32 v%d, 0" % V_SMP)
    I("s_lshl2_add_u32 s%d, s%d, s%d" % (S_T0, S_J, S_W))
    I("s_cmp_lg_u32 s%d, 5" % S_T0)
    I("s_cbranch_scc1 %s" % lo)
    a.L(lp)
    I("s_load_dword s%d, s[%d:%d], %d glc" % (S_T0, S_DBG, S_DBG + 1, (D_EV + g) * 4))
    for l in spin_lines():
        I(l)
    I("s_waitcnt lgkmcnt(0)")
    I("s_cmp_lt_u32 s%d, %d" % (S_T0, NKV))
    I("s_cbranch_scc1 %s" % lp)
    I("v_mov_b32 v%d, %d" % (V_SMP + 1, g + 1))
    I("buffer_store_dword v%d, v%d, %s, s%d offen" % (V_SMP + 1, V_SMP, W, S_LF))
    I("s_branch %s" % ok)
    a.L(lo)
    I("buffer_load_dword v%d, v%d, %s, s%d offen sc1" % (V_SMP + 1, V_SMP, W, S_LF))
    for l in spin_lines():
        I(l)
    I("s_waitcnt vmcnt(0)")
    I("v_readfirstlane_b32 s%d, v%d" % (S_T0, V_SMP + 1))
    I("s_cmp_ge_u32 s%d, %d" % (S_T0, g + 1))
    I("s_cbranch_scc1 %s" % ok)
    I("s_sleep 1")
    I("s_branch %s" % lo)
    a.L(ok)


def px_setup(a):
    I = a.I
    dbg_wait(a, D_CAL, 15, 0xff)
    I("s_cmp_ge_u32 s%d, 0x800" % S_T0)
    I("s_cselect_b32 s%d, 0x2000, 0" % S_POL)
    I("s_add_u32 s%d, s%d, 0x%x" % (S_PXB, S_POL, X_PXF))
    I("s_add_u32 s%d, s%d, s%d" % (S_KVB, S_KVB, S_POL))
    t = V_T
    I("v_and_b32 v%d, 63, v0" % t)
    I("v_lshlrev_b32 v%d, 2, v%d" % (t, t))
    I("s_lshr_b32 s%d, s%d, 3" % (S_T2, S_J))
    I("s_lshl_b32 s%d, s%d, 14" % (S_T2, S_T2))
    I("s_and_b32 s%d, s%d, 7" % (S_T3, S_J))
    I("s_lshl_b32 s%d, s%d, 10" % (S_T3, S_T3))
    I("s_add_u32 s%d, s%d, s%d" % (S_T2, S_T2, S_T3))
    I("s_lshl_b32 s%d, s%d, 8" % (S_T3, S_W))
    I("s_add_u32 s%d, s%d, s%d" % (S_T2, S_T2, S_T3))
    for xo in range(4):
        I("s_xor_b32 s%d, s%d, %d" % (S_T1, S_X, xo))
        I("s_lshl_b32 s%d, s%d, 16" % (S_T1, S_T1))
        I("s_add_u32 s%d, s%d, s%d" % (S_T1, S_T1, S_T2))
        I("v_add_u32 v%d, s%d, v%d" % (V_PXST if xo == 0 else V_PXLD + xo - 1, S_T1, t))


def load_weights(a, mid=None):
    I = a.I
    T = V_T
    a.C("---- load weights")
    t0, t1, va, vq, vg, vg2, vr_, vw = T, T + 1, T + 2, T + 3, T + 5, T + 6, T + 7, T + 11
    I("s_lshl_b32 s%d, s%d, 10" % (S_T0, S_X))
    I("s_lshr_b32 s%d, s%d, 2" % (S_T1, S_J))
    I("s_lshl_b32 s%d, s%d, 7" % (S_T1, S_T1))
    I("s_add_u32 s%d, s%d, s%d" % (S_T0, S_T0, S_T1))
    I("v_bfe_u32 v%d, v0, 5, 1" % t0)
    I("v_lshlrev_b32 v%d, 1, v%d" % (va, t0))
    I("v_bfe_u32 v%d, v0, 3, 1" % t0)
    I("v_add_u32 v%d, v%d, v%d" % (va, va, t0))
    I("v_bfe_u32 v%d, v0, 4, 1" % t0)
    I("v_lshl_add_u32 v%d, v%d, 3, v%d" % (va, t0, va))
    I("v_lshrrev_b32 v%d, 6, v0" % t0)
    I("v_lshl_add_u32 v%d, v%d, 8, v%d" % (va, t0, va))
    I("v_and_b32 v%d, 7, v0" % t1)
    I("v_lshlrev_b32 v%d, 13, v%d" % (vq, va))
    I("v_lshl_add_u32 v%d, v%d, 4, v%d" % (vq, t1, vq))
    I("s_and_b32 s%d, s%d, 1" % (S_T1, S_JQ))
    I("s_lshl_b32 s%d, s%d, 6" % (S_T1, S_T1))
    I("s_add_u32 s%d, s%d, s%d" % (S_T1, S_T1, S_T0))
    I("s_lshl_b32 s%d, s%d, 1" % (S_T1, S_T1))
    I("v_add_u32 v%d, s%d, v%d" % (vq, S_T1, vq))
    I("v_add_u32 v%d, 0x8000, v%d" % (vq + 1, vq))
    I("v_bfe_u32 v%d, v0, 4, 2" % t0)
    I("v_lshlrev_b32 v%d, 1, v%d" % (va, t0))
    I("v_bfe_u32 v%d, v0, 2, 1" % t0)
    I("v_add_u32 v%d, v%d, v%d" % (va, va, t0))
    I("v_bfe_u32 v%d, v0, 3, 1" % t0)
    I("v_lshl_add_u32 v%d, v%d, 3, v%d" % (va, t0, va))
    I("v_lshrrev_b32 v%d, 6, v0" % t0)
    I("v_lshl_add_u32 v%d, v%d, 8, v%d" % (va, t0, va))
    I("v_and_b32 v%d, 3, v0" % t1)
    I("v_lshlrev_b32 v%d, 13, v%d" % (vg, va))
    I("v_lshl_add_u32 v%d, v%d, 4, v%d" % (vg, t1, vg))
    I("s_and_b32 s%d, s%d, 3" % (S_T1, S_J))
    I("s_lshl_b32 s%d, s%d, 5" % (S_T1, S_T1))
    I("s_add_u32 s%d, s%d, s%d" % (S_T1, S_T1, S_T0))
    I("s_lshl_b32 s%d, s%d, 1" % (S_T1, S_T1))
    I("v_add_u32 v%d, s%d, v%d" % (vg, S_T1, vg))
    I("v_bfe_u32 v%d, v0, 2, 1" % vg2)
    for bit, sh in ((4, 1), (3, 2), (5, 4)):
        I("v_bfe_u32 v%d, v0, %d, 1" % (t0, bit))
        I("v_lshl_add_u32 v%d, v%d, %d, v%d" % (vg2, t0, sh, vg2))
    I("v_lshrrev_b32 v%d, 6, v0" % t0)
    I("v_lshl_add_u32 v%d, v%d, 8, v%d" % (vg2, t0, vg2))
    I("s_lshl_b32 s%d, s%d, 10" % (S_T1, S_X))
    I("v_add_u32 v%d, s%d, v%d" % (vg2, S_T1, vg2))
    I("v_lshlrev_b32 v%d, 11, v%d" % (vg2, vg2))
    I("v_lshl_add_u32 v%d, v%d, 4, v%d" % (vg2, t1, vg2))
    I("s_lshl_b32 s%d, s%d, 6" % (S_T1, S_JM))
    I("v_add_u32 v%d, s%d, v%d" % (vg2, S_T1, vg2))
    I("s_lshl_b32 s%d, s%d, 15" % (S_T2, S_W))
    I("s_add_u32 s%d, s%d, %d" % (S_T2, S_T2, L_STAGE))
    def qk():
        I("s_bitcmp1_b32 s%d, 1" % S_JQ)
        I("s_cselect_b32 s%d, s%d, s%d" % (S_TMPSRD, ptr(B_WK), ptr(B_WQ)))
        I("s_cselect_b32 s%d, s%d, s%d" % (S_TMPSRD + 1, ptr(B_WK) + 1, ptr(B_WQ) + 1))
        I("s_and_b32 s%d, s%d, 0xffff" % (S_TMPSRD + 1, S_TMPSRD + 1))
        I("s_mov_b32 s%d, 0x%x" % (S_TMPSRD + 2, 8 * MB))
        I("s_mov_b32 s%d, 0x00020000" % (S_TMPSRD + 3))
        for i in range(32):
            I("s_add_u32 m0, s%d, %d" % (S_T2, i * 1024))
            I("s_mov_b32 s%d, %d" % (S_T3, (i >> 1) * 16 * 8192))
            I("buffer_load_dwordx4 v%d, s[%d:%d], s%d offen%s lds" % (vq + (i & 1), S_TMPSRD, S_TMPSRD + 3, S_T3, WNT))
    RV_, RO_ = 32, 96

    def issue_reg(src, vbase, vaddr, stride, half):
        a.srd(S_TMPSRD, ptr(src), 0, 8 * MB)
        I("s_and_b32 s%d, s%d, %d" % (S_T1, S_J, E("WROT", 1)))
        I("s_mul_i32 s%d, s%d, %d" % (S_T1, S_T1, 128 * stride))
        for i in range(8 * half, 8 * half + 8):
            I("s_xor_b32 s%d, s%d, 0x%x" % (S_T3, S_T1, (i * 16 if src == B_WV else 32 * (i >> 1) + 8 * (i & 1)) * stride))
            I("buffer_load_dwordx4 v[%d:%d], v%d, s[%d:%d], s%d offen%s" % (vbase + 4 * i, vbase + 4 * i + 3, vaddr, S_TMPSRD, S_TMPSRD + 3, S_T3, WNT))
    issue_reg(B_WV, RV_, vg, 8192, 0)
    issue_reg(B_WO, RO_, vg2, 2048, 0)
    qk()
    I("s_waitcnt vmcnt(40)")
    issue_reg(B_WV, RV_, vg, 8192, 1)
    issue_reg(B_WO, RO_, vg2, 2048, 1)
    if mid:
        mid()
    I("v_bfe_u32 v%d, v0, 4, 2" % t0)
    I("v_lshlrev_b32 v%d, 3, v%d" % (t0, t0))
    I("v_bfe_u32 v%d, v0, 2, 2" % va)
    I("v_add_u32 v%d, v%d, v%d" % (t0, t0, va))
    I("v_and_b32 v%d, 3, v0" % t1)
    I("v_bfe_u32 v%d, v0, 3, 1" % vq)
    I("v_lshlrev_b32 v%d, 7, v%d" % (va, t0))
    I("v_and_b32 v%d, 1, v0" % (vq + 1))
    I("v_lshl_add_u32 v%d, v%d, 5, v%d" % (va, vq + 1, va))
    I("v_bfe_u32 v%d, v0, 1, 1" % (vq + 1))
    I("v_lshl_add_u32 v%d, v%d, 3, v%d" % (va, vq + 1, va))
    I("v_lshl_add_u32 v%d, v%d, 4, v%d" % (va, vq, va))
    for X in range(2):
        I("s_lshr_b32 s%d, s%d, 1" % (S_T1, S_W))
        I("s_xor_b32 s%d, s%d, %d" % (S_T1, S_T1, X ^ 1))
        I("s_lshl_b32 s%d, s%d, 6" % (S_T1, S_T1))
        I("s_add_u32 s%d, s%d, s%d" % (S_T1, S_T1, S_T2))
        I("v_add_u32 v%d, s%d, v%d" % (vr_ + 2 * X, S_T1, va))
        I("v_xor_b32 v%d, 256, v%d" % (vr_ + 2 * X + 1, vr_ + 2 * X))
    I("s_waitcnt vmcnt(16)")
    for b in range(4):
        for t in range(4):
            d = a_qk(t, b)
            for u, o in enumerate((0, 4, 32, 36)):
                I("ds_read_b64_tr_b16 a[%d:%d], v%d offset:%d" % (d + 2 * u, d + 2 * u + 1, vr_ + t, (b * 64 + o) * 128))
            if t & 1:
                I("s_waitcnt lgkmcnt(0)")
    I("s_and_b32 s%d, s%d, %d" % (S_T1, S_J, E("WROT", 1)))
    I("s_lshl_b32 s%d, s%d, 13" % (S_T1, S_T1))
    I("s_add_u32 s%d, s%d, s%d" % (S_T1, S_T1, S_T2))
    I("v_add_u32 v%d, s%d, v%d" % (vw, S_T1, V_LIN))
    I("v_xor_b32 v%d, 0x2000, v%d" % (vr_, vw))
    I("v_lshlrev_b32 v%d, 6, v%d" % (va, t0))
    I("v_add_u32 v%d, s%d, v%d" % (va, S_T2, va))
    I("v_lshl_add_u32 v%d, v%d, 3, v%d" % (vr_ + 2, t1, va))
    I("v_lshl_add_u32 v%d, v%d, 5, v%d" % (vr_ + 2, vq, vr_ + 2))
    I("v_xor_b32 v%d, 128, v%d" % (vr_ + 3, vr_ + 2))
    for vb, areg, vra, half, cnt in ((RV_, a_v, vr_ + 2, 0, 8), (RO_, a_wo, vr_ + 2, 1, 0)):
        I("s_waitcnt vmcnt(%d)" % cnt)
        for i in range(16):
            I("ds_write_b128 v%d, v[%d:%d] offset:%d" % (vw if i < 8 else vr_, vb + 4 * i, vb + 4 * i + 3, half * 16384 + (i & 7) * 1024))
        I("s_waitcnt lgkmcnt(0)")
        for b in range(4):
            for t in range(2):
                d = areg(t, b)
                for u, o in enumerate((0, 4, 32, 36)):
                    I("ds_read_b64_tr_b16 a[%d:%d], v%d offset:%d" % (d + 2 * u, d + 2 * u + 1, vra + t, half * 16384 + (b * 64 + o) * 64))
            I("s_waitcnt lgkmcnt(0)")


def blk_addr(d, delta):
    out = ["s_add_u32 s%d, s%d, %d" % (S_T1, S_STEP, delta)]
    if delta >= 0:
        out += ["s_min_u32 s%d, s%d, %d" % (S_T1, S_T1, 0 if 'samekv' in ABL else 63)]
    return out + ["s_lshl_b32 s%d, s%d, 21" % (d, S_T1), "s_lshl_b32 s%d, s%d, 13" % (S_T1, S_T1), "s_and_b32 s%d, s%d, 0x2000" % (S_T1, S_T1),
                  "s_xor_b32 s%d, s%d, s%d" % (S_T1, S_T1, S_KVB), "s_add_u32 s%d, s%d, s%d" % (d, d, S_T1)]


def kv_dma(w):
    if 'nopf' in ABL:
        return []
    ld = lambda v, o: "buffer_load_dwordx4 v%d, %s, s%d offen offset:%d lds" % (v, W, S_KV, o)
    if w == 't':
        return ["buffer_load_dword v%d, v%d, %s, s%d offen" % (V_SMP + 2, V_D1, W, S_KV)]
    if w == 'v':
        return ["s_mov_b32 m0, %d" % (L_KV + 8192), "s_nop 0"] + [ld(V_D2, i * 1024) for i in range(2)]
    return ["s_mov_b32 m0, s%d" % S_KVL, "s_nop 0"] + [ld(V_D0, i * 1024) for i in range(4)]


def xatt1():
    kf = lambda i: V_KF + 4 * i
    o = []
    for c in range(4):
        o += ["ds_read_b128 v[%d:%d], v%d offset:%d" % (V_XQ + 4 * c, V_XQ + 4 * c + 3, V_XQA, L_Q + c * 1024)]
        o += ["ds_read_b128 v[%d:%d], v%d offset:%d" % (kf(2 * c + t), kf(2 * c + t) + 3, V_LIN, L_KV + (t * 4 + c) * 1024) for t in range(2)]
    o += ["ds_read_b128 v[%d:%d], v%d offset:%d" % (V_VT + 4 * t, V_VT + 4 * t + 3, V_LIN, L_KV + 8192 + t * 1024) for t in range(2)]
    for c in range(4):
        o += ["s_waitcnt lgkmcnt(%d)" % (11 - 3 * c)]
        o += ["v_mfma_f32_16x16x32_bf16 v[%d:%d], v[%d:%d], v[%d:%d], %s" % (d, d + 3, kf(2 * c + t), kf(2 * c + t) + 3, V_XQ + 4 * c, V_XQ + 4 * c + 3, "0" if c == 0 else "v[%d:%d]" % (d, d + 3))
              for t, d in enumerate((V_S0, V_S1))]
    post = ["v_cvt_pk_bf16_f32 v%d, 0, v%d" % (v, v) for v in range(V_S0, V_S0 + 8)]
    post += ["v_pk_mul_f32 v[%d:%d], v[%d:%d], s[%d:%d]" % (p, p + 1, p, p + 1, S_SCL, S_SCL + 1) for p in range(V_S0, V_S0 + 8, 2)]
    post += post[:8]
    post += [pk("add", V_S0 + i, V_S0 + i, V_XB + i) for i in range(0, 8, 2)]
    m, t = V_XT, V_XT + 1
    post += ["v_max3_f32 v%d, v%d, v%d, v%d" % (m, V_S0, V_S0 + 1, V_S0 + 2), "v_max3_f32 v%d, v%d, v%d, v%d" % (t, V_S0 + 3, V_S1, V_S1 + 1),
             "v_max3_f32 v%d, v%d, v%d, v%d" % (m, m, V_S1 + 2, V_S1 + 3), "v_max_f32 v%d, v%d, v%d" % (m, m, t)]
    return o, post


def xatt2():
    SM, m, t, sm = V_S2, V_XT, V_XT + 1, V_XT + 2
    o = ["ds_read_b128 v[%d:%d], v%d offset:%d" % (V_XKM + 4 * c, V_XKM + 4 * c + 3, V_XKA, L_QXC + c * 512) for c in range(4)]
    for c in range(4):
        o += ["s_waitcnt lgkmcnt(%d)" % (3 - c),
              "v_mfma_f32_16x16x32_bf16 v[%d:%d], v[%d:%d], v[%d:%d], %s" % (SM, SM + 3, V_XKM + 4 * c, V_XKM + 4 * c + 3, V_XQ + 4 * c, V_XQ + 4 * c + 3, "0" if c == 0 else "v[%d:%d]" % (SM, SM + 3))]
    rn = ["v_cvt_pk_bf16_f32 v%d, 0, v%d" % (v, v) for v in (SM, SM + 1)]
    o += ["s_nop 7"] + rn + ["v_pk_mul_f32 v[%d:%d], v[%d:%d], s[%d:%d]" % (SM, SM + 1, SM, SM + 1, S_SCL, S_SCL + 1)] + rn
    o += ["v_max3_f32 v%d, v%d, v%d, v%d" % (m, m, SM, SM + 1)]

    def xred(op, v):
        r = []
        for sw in ("v_permlane16_swap_b32", "v_permlane32_swap_b32"):
            r += ["v_mov_b32 v%d, v%d" % (t, v), "s_nop 1", "%s v%d, v%d" % (sw, v, t), "%s v%d, v%d, v%d" % (op, v, v, t)]
        return r
    prs = [V_S0, V_S0 + 2, V_S1, V_S1 + 2, SM]
    o += xred("v_max_f32", m) + ["v_mul_f32 v%d, s%d, v%d" % (m, S_C, m)]
    o += ["v_pk_fma_f32 v[%d:%d], v[%d:%d], s[%d:%d], v[%d:%d] op_sel_hi:[1,1,0] neg_lo:[0,0,1] neg_hi:[0,0,1]" % (p, p + 1, p, p + 1, S_C, S_C + 1, m, m + 1) for p in prs]
    o += ["v_exp_f32 v%d, v%d" % (v, v) for v in range(V_S0, V_S0 + 10)]
    o += [pk("add", sm, V_S0, V_S0 + 2), pk("add", sm + 2, V_S1, V_S1 + 2), pk("add", sm, sm, SM), pk("add", sm, sm, sm + 2), "v_add_f32 v%d, v%d, v%d" % (sm, sm, sm + 1)]
    o += xred("v_add_f32", sm) + ["v_rcp_f32 v%d, v%d" % (sm, sm), "s_nop 0"]
    o += [pk("mul", p, p, sm, " op_sel_hi:[1,0]") for p in prs]
    o += ["v_cvt_pk_bf16_f32 v%d, v%d, v%d" % (V_P + i, V_S0 + 2 * i, V_S0 + 2 * i + 1) for i in range(4)]
    o += ["v_cvt_pk_bf16_f32 v%d, v%d, v%d" % (V_P + 4, SM, SM + 1), "v_cvt_pk_bf16_f32 v%d, v%d, v%d" % (V_P + 7, SM, SM + 1)]
    o += ["v_mfma_f32_16x16x32_bf16 v[%d:%d], v[%d:%d], v[%d:%d], 0" % (V_O + 4 * tt, V_O + 4 * tt + 3, V_VT + 4 * tt, V_VT + 4 * tt + 3, V_P, V_P + 3) for tt in range(2)]
    o += ["v_mfma_f32_16x16x16_bf16 v[%d:%d], v[%d:%d], v[%d:%d], v[%d:%d]" % (
        V_O + 4 * tt, V_O + 4 * tt + 3, V_VM, V_VM + 1, V_P + 4 + 2 * tt, V_P + 5 + 2 * tt, V_O + 4 * tt, V_O + 4 * tt + 3) for tt in range(2)]
    fin = ["v_cvt_pk_bf16_f32 v%d, v%d, v%d" % (V_O + i, V_O + 2 * i, V_O + 2 * i + 1) for i in range(4)]
    return o, fin


def smf(c, areg, m):
    return "v_smfmac_f32_16x16x64_bf16 v[%d:%d], v[%d:%d], a[%d:%d], v%d" % (c, c + 3, m, m + 3, areg, areg + 7, V_IDX)


def pk(op, d, x, y, extra=""):
    return "v_pk_%s_f32 v[%d:%d], v[%d:%d], v[%d:%d]%s" % (op, d, d + 1, x, x + 1, y, y + 1, extra)


def slot_update():
    out = ["s_add_u32 s%d, s%d, 0x40000" % (S_REL, S_REL),
           "s_and_b32 s%d, s%d, 0xc0000" % (S_REL, S_REL),
           "s_xor_b32 s%d, s%d, 0x80000" % (S_T0, S_REL),
           "s_add_u32 s%d, s%d, s%d" % (S_POI, S_EXB, S_T0)]
    out += ["s_lshl_b32 s%d, s%d, 19" % (S_PX0, S_STEP),
            "s_lshl_b32 s%d, s%d, 11" % (S_T0, S_STEP),
            "s_and_b32 s%d, s%d, 0x2000" % (S_T0, S_T0),
            "s_xor_b32 s%d, s%d, s%d" % (S_T0, S_T0, S_PXB),
            "s_add_u32 s%d, s%d, s%d" % (S_PX0, S_PX0, S_T0),
            "s_add_u32 s%d, s%d, 0x40000" % (S_PX1, S_PX0)]
    out += ["s_add_u32 s%d, s%d, 0x40000" % (S_T0, S_REL),
            "s_and_b32 s%d, s%d, 0xc0000" % (S_T0, S_T0),
            "s_add_u32 s%d, s%d, s%d" % (S_NXT, S_EXB, S_T0)]
    return out


STAMPF = [None]


def step_body(a, name, stamp0):
    I = a.I
    STAMPF[0] = stamp0
    stamp = (lambda i: None if i in (1, 2, 8, 7) else stamp0(i)) if os.environ.get("GST") else stamp0
    loop, done = name + "_loop", name + "_done"
    lhelp, lb4 = a.uid("L_help"), a.uid("L_b4")
    a.L(loop)
    stamp(0)
    a.C("==== Q phase")
    work = ["s_mov_b32 s%d, s%d" % (S_CUR, S_NXT)] + slot_update() + ["v_mov_b32 v%d, 0" % (V_AQ + i) for i in range(16)]
    if OSTA:
        work += xatt2()[1] + blk_addr(S_KM, -1) + ["s_or_b32 s%d, s%d, s%d" % (S_KM, S_KM, S_W01)]
    if TCHA:
        work += blk_addr(S_KV, 1) + ["s_cmp_eq_u32 s%d, 0" % S_STEP, "s_cselect_b32 s%d, 0x%x, s%d" % (S_T1, 0xf0000000, S_WT), "s_or_b32 s%d, s%d, s%d" % (S_KV, S_KV, S_T1)]
    fill(a, work, max(PRE_Q, 1))
    loads = ["buffer_load_dwordx4 v[%d:%d], v%d, %s, s%d offen offset:%d sc1" % (V_M + 4 * b, V_M + 4 * b + 3, V_GLD, W, S_CUR, b * 1024) for b in range(4)]
    for b in range(4):
        I(loads[b])
        fill(a, work, PACE if b < 3 else len(work))
    ver, vbr = gather_fifo(a, "q", loads, [V_AQ, V_AQ + 4], lambda k, ty, b: a_qk(2 * k + ty, b), [V_AV])
    stamp(1)
    vm = [smf(V_AV, a_v(t, b), (V_M, V_MR)[t] + 4 * b) for b in range(4) for t in range(2)]
    for l in ver[:4]:
        I(l)
    I("ds_write_b64 v%d, v[%d:%d] offset:%d" % (V_RQW, V_AQ, V_AQ + 1, L_RQK))
    I("ds_write_b64 v%d, v[%d:%d] offset:%d" % (V_RQW + 1, V_AQ + 2, V_AQ + 3, L_RQK))
    for l in ver[4:6]:
        I(l)
    I("ds_write_b64 v%d, v[%d:%d] offset:%d" % (V_RQW + 2, V_AQ + 4, V_AQ + 5, L_RQK))
    for l in ver[6:]:
        I(l)
    for _ in range(VPRE):
        I(vm.pop(0))
    I(vbr)
    I("s_waitcnt lgkmcnt(0)")
    I("s_barrier")
    for i in range(3):
        I("ds_read_b64 v[%d:%d], v%d offset:%d" % (V_R + 2 * i, V_R + 2 * i + 1, V_RQR, L_RQK + i * 512))
    if OSTA and 'nopub' not in ABL:
        I("buffer_store_dwordx4 v[%d:%d], v%d, %s, s%d offen sc1" % (V_O, V_O + 3, V_H1, W, S_KM))
    if TCHA:
        I("buffer_load_dword v%d, v%d, %s, s%d offen" % (V_SMP + 2, V_H3, W, S_KV))
    for _ in range(VMID):
        I(vm.pop(0))
    A = V_AQ + 6
    I("s_waitcnt lgkmcnt(2)")
    I(pk("add", A, A, V_R))
    I("s_waitcnt lgkmcnt(0)")
    I(pk("add", V_R + 2, V_R + 2, V_R + 4))
    I(pk("add", A, A, V_R + 2))
    I("v_cvt_pk_bf16_f32 v%d, v%d, v%d" % (A, A, A + 1))
    I("s_cmp_lg_u32 s%d, 0" % S_W)
    I("s_nop 0")
    I("v_mov_b32_dpp v%d, v%d quad_perm:[1,0,3,2] row_mask:0xf bank_mask:0xf" % (A + 1, A))
    I("v_perm_b32 v%d, v%d, v%d, v%d" % (A, A + 1, A, V_SEL))
    I("v_min_u32 v%d, 0xfffffffe, v%d" % (A, A))
    I("buffer_store_dword v%d, v%d, %s, s%d offen" % (A, V_QXST, W, S_CUR))
    late = len(vm) > 0
    for l in vm:
        I(l)
    if late:
        I("s_nop 7")
    I("ds_write_b128 v%d, v[%d:%d] offset:%d" % (V_RW, V_AV, V_AV + 3, L_RV))
    I("s_cbranch_scc1 %s" % lhelp)
    stamp(2)
    a.C("==== S phase, wave 0")
    fill(a, [], PRE_S)
    NS = E("NSET", 3)
    ql = [["buffer_load_dwordx4 v[%d:%d], v%d, %s, s%d offen offset:%d sc1" % (q + 4 * c, q + 4 * c + 3, V_QXLD, W, S_CUR, c * 1024) for c in range(4)] for q in V_QS[:NS]]
    for l in ql[0]:
        I(l)
    I("s_waitcnt lgkmcnt(0)")
    I("s_barrier")
    work = ["ds_read_b128 v[%d:%d], v%d offset:%d" % (V_KF + 4 * i, V_KF + 4 * i + 3, V_LIN, L_KV + i * 1024) for i in range(10)]
    for k in range(1, NS):
        fill(a, work, GAP_S - (4 if k == 1 else 0))
        for l in ql[k]:
            I(l)
    for l in work:
        I(l)
    I("s_waitcnt lgkmcnt(0)")
    lsd = a.uid("L_sd")
    ror = lambda d, s, bm: "v_mov_b32_dpp v%d, v%d row_ror:8 row_mask:0xf bank_mask:0x%x" % (d, s, bm)
    slab = lambda k, c: "%s_%d_%d" % (lsd, k, c)
    for k in range(NS + 1):
        out, stubs = [], []
        for c in range(4):
            r = V_QS[k % NS] + 4 * c
            dst = V_SC[c] if c < 3 else V_S0
            mf = lambda i, ar_: "    v_mfma_f32_16x16x32_bf16 v[%d:%d], v[%d:%d], v[%d:%d], %s" % (
                dst + 4 * i, dst + 4 * i + 3, ar_, ar_ + 3, r, r + 3, "0" if c == 0 else "v[%d:%d]" % (V_SC[c - 1] + 4 * i, V_SC[c - 1] + 4 * i + 3))
            f = slab(k, c) + "f"
            direct = k < NS - 1 and os.environ.get("STAMP") != "2"
            out += [slab(k, c) + ":", "    s_waitcnt vmcnt(%d)" % (4 * max(NS - 1 - k, 0) + 3 - c),
                    "    v_max3_u32 v%d, v%d, v%d, v%d" % (V_CHK, r, r + 1, r + 2), mf(2, r),
                    "    v_max_u32 v%d, v%d, v%d" % (V_CHK, V_CHK, r + 3),
                    "    v_cmp_eq_u32 vcc, -1, v%d" % V_CHK,
                    mf(1, V_KF + 16 + 4 * c), mf(0, V_KF + 4 * c)]
            if c == 3:
                out += ["    " + ror(V_S2, V_S2 + 1, 0xc), "    " + ror(V_S2 + 2, V_S2 + 3, 0xc)]
            out += ["    s_cbranch_vccnz %s" % (slab(k + 1, c) if direct else f)]
            if k < NS - 1:
                stubs += [f + ":"] + ["    " + l for l in spin_lines(1, False)] + ["    s_branch %s" % slab(k + 1, c)]
            else:
                stubs += [f + ":"] + ["    " + l for l in ql[0][c:] + spin_lines(1)] + ["    s_branch %s" % slab(NS, c)]
        if k == 0:
            for l in out:
                a.raw(l)
        else:
            COLD.extend(out + ["    s_branch %s" % lsd])
        COLD.extend(stubs)
    a.L(lsd)
    I("s_barrier")
    stamp(8)
    ror = lambda d, s, bm: "v_mov_b32_dpp v%d, v%d row_ror:8 row_mask:0xf bank_mask:0x%x" % (d, s, bm)
    rnd = lambda v: "v_cvt_pk_bf16_f32 v%d, 0, v%d" % (v, v)
    A0, F, m, t = V_S0, V_S2 + 2, V_T, V_T + 1
    I("v_permlane32_swap_b32 v%d, v%d" % (V_S2, V_S2 + 2))
    I("ds_read_b64 v[%d:%d], v%d offset:%d" % (V_VM, V_VM + 1, V_L8, L_VMF))
    I("s_cmp_eq_u32 s%d, %d" % (S_STEP, LAST))
    I("s_cbranch_scc1 %s" % (name + "_fin"))
    for i in range(4):
        I(ror(A0 + i, V_S1 + i, 0xc))
    I("v_max3_f32 v%d, v%d, v%d, v%d" % (m, F, A0, A0 + 1))
    I("v_max3_f32 v%d, v%d, v%d, v%d" % (m, m, A0 + 2, A0 + 3))
    I(rnd(A0))
    I(rnd(A0 + 1))
    I("v_max_f32_dpp v%d, v%d, v%d row_ror:8 row_mask:0xf bank_mask:0xf" % (m, m, m))
    I("v_mov_b32 v%d, v%d" % (t, m))
    I(rnd(A0 + 2))
    I(rnd(A0 + 3))
    I("v_permlane16_swap_b32 v%d, v%d" % (m, t))
    I(rnd(F))
    I("v_max_f32 v%d, v%d, v%d" % (m, m, t))
    I("v_mov_b32 v%d, v%d" % (t, m))
    I("v_pk_mul_f32 v[%d:%d], v[%d:%d], s[%d:%d]" % (A0, A0 + 1, A0, A0 + 1, S_SCL, S_SCL + 1))
    I("v_pk_mul_f32 v[%d:%d], v[%d:%d], s[%d:%d]" % (A0 + 2, A0 + 3, A0 + 2, A0 + 3, S_SCL, S_SCL + 1))
    I("v_permlane32_swap_b32 v%d, v%d" % (m, t))
    I("v_mul_f32 v%d, s%d, v%d" % (F, S_SCL, F))
    I("v_max_f32 v%d, v%d, v%d" % (m, m, t))
    I(rnd(A0))
    I(rnd(m))
    I(rnd(A0 + 1))
    I("v_mul_f32 v%d, s%d, v%d" % (m, S_SCL, m))
    I(rnd(A0 + 2))
    I(rnd(m))
    I(rnd(A0 + 3))
    I("v_mul_f32 v%d, s%d, v%d" % (m, S_C, m))
    I(rnd(F))
    for i in (0, 2):
        I("v_pk_fma_f32 v[%d:%d], v[%d:%d], s[%d:%d], v[%d:%d] op_sel_hi:[1,1,0] neg_lo:[0,0,1] neg_hi:[0,0,1]" % (A0 + i, A0 + i + 1, A0 + i, A0 + i + 1, S_C, S_C + 1, m, m + 1))
    I("v_fma_f32 v%d, v%d, s%d, -v%d" % (F, F, S_C, m))
    for v in (A0, A0 + 1, A0 + 2, A0 + 3, F):
        I("v_exp_f32 v%d, v%d" % (v, v))
    sm = V_T + 2
    I("v_cvt_pk_bf16_f32 v%d, v%d, v%d" % (V_P, A0, A0 + 1))
    I("v_cvt_pk_bf16_f32 v%d, v%d, v%d" % (V_P + 1, A0 + 2, A0 + 3))
    I(ror(t, F, 0xf))
    I(ror(V_P + 2, V_P, 0xf))
    I(ror(V_P + 3, V_P + 1, 0xf))
    I("v_cvt_pk_bf16_f32 v%d, v%d, v%d" % (V_P + 4, F, t))
    I(pk("add", sm, A0, A0 + 2))
    mm = lambda tt: "v_mfma_f32_16x16x32_bf16 v[%d:%d], v[%d:%d], v[%d:%d], 0" % (V_O + 4 * tt, V_O + 4 * tt + 3, V_VT + 4 * tt, V_VT + 4 * tt + 3, V_P, V_P + 3)
    m16 = lambda tt: "v_mfma_f32_16x16x16_bf16 v[%d:%d], v[%d:%d], v[%d:%d], v[%d:%d]" % (
        V_O + 4 * tt, V_O + 4 * tt + 3, V_VM, V_VM + 1, V_P + 4 + 2 * tt, V_P + 5 + 2 * tt, V_O + 4 * tt, V_O + 4 * tt + 3)
    I(mm(0))
    I("v_add_f32 v%d, v%d, v%d" % (sm, sm, F))
    I("v_add_f32 v%d, v%d, v%d" % (sm, sm, sm + 1))
    I(mm(1))
    I("v_cvt_pk_bf16_f32 v%d, v%d, v%d" % (V_P + 7, F, t))
    I("s_waitcnt lgkmcnt(0)")
    I("v_add_f32_dpp v%d, v%d, v%d row_ror:8 row_mask:0xf bank_mask:0xf" % (sm, sm, sm))
    I(m16(0))
    I("v_mov_b32 v%d, v%d" % (t, sm))
    I("s_nop 0")
    I(m16(1))
    I("v_permlane16_swap_b32 v%d, v%d" % (sm, t))
    I("v_add_f32 v%d, v%d, v%d" % (sm, sm, t))
    I("v_mov_b32 v%d, v%d" % (t, sm))
    I("s_nop 1")
    I("v_permlane32_swap_b32 v%d, v%d" % (sm, t))
    I("v_add_f32 v%d, v%d, v%d" % (sm, sm, t))
    I("v_rcp_f32 v%d, v%d" % (sm, sm))
    I("s_mov_b64 exec, s[%d:%d]" % (S_M8, S_M8 + 1))
    for i in range(0, 8, 2):
        I(pk("mul", V_O + i, V_O + i, sm, " op_sel_hi:[1,0]"))
    for i in range(4):
        I("v_cvt_pk_bf16_f32 v%d, v%d, v%d" % (V_O + i, V_O + 2 * i, V_O + 2 * i + 1))
    for i in range(4):
        I("v_min_u32 v%d, 0xfffffffe, v%d" % (V_O + i, V_O + i))
    I("buffer_store_dwordx4 v[%d:%d], v%d, %s, s%d offen" % (V_O, V_O + 3, V_OXST, W, S_CUR))
    I("s_mov_b64 exec, -1")
    stamp(7)
    a.L(lb4)
    I("s_barrier")
    stamp(3)
    a.C("==== O phase")
    work = blk_addr(S_KV, 1) + ["s_add_u32 s%d, s%d, 1" % (S_STEP, S_STEP)]
    fill(a, work, max(PRE_O, len(work)))
    loads = ["buffer_load_dwordx4 v[%d:%d], v%d, %s, s%d offen offset:%d sc1" % (V_M + 4 * b, V_M + 4 * b + 3, V_OLD, W, S_CUR, b * 1024) for b in range(4)]
    for b in range(4):
        I(loads[b])
        if b < 3:
            fill(a, work, PACE)
    ver, vbr = gather_fifo(a, "o", loads, [V_AO], lambda k, ty, b: a_wo(ty, b))
    stamp(4)
    for l in ver + ["s_nop 0"]:
        I(l)
    for e in range(3):
        I("ds_write_b32 v%d, v%d offset:%d" % (V_ROW + e, V_AO + e, L_RO))
    I(vbr)
    I("s_waitcnt lgkmcnt(0)")
    I("s_barrier")
    for i in range(3):
        I("ds_read_b32 v%d, v%d offset:%d" % (V_R + i, V_ROR, L_RO + i * 256))
    I("s_waitcnt lgkmcnt(2)")
    I("v_add_f32 v%d, v%d, v%d" % (V_R, V_R, V_AO + 3))
    I("s_waitcnt lgkmcnt(0)")
    I("v_add_f32 v%d, v%d, v%d" % (V_R + 1, V_R + 1, V_R + 2))
    I("v_add_f32 v%d, v%d, v%d" % (V_R, V_R, V_R + 1))
    I("v_min_u32 v%d, 0xfffffffe, v%d" % (V_R, V_R))
    I("buffer_store_dword v%d, v%d, %s, s%d offen sc1" % (V_R, V_PXST, W, S_PX0))
    if NREP > 1:
        I("buffer_store_dword v%d, v%d, %s, s%d offen sc1" % (V_R, V_PXST, W, S_PX1))
    stamp(5)
    a.C("==== P phase")
    x2, x2fin = xatt2()
    if 'nox' in ABL:
        x2 = []
    n0, n1 = E("XN0", 22), E("XN1", 18)
    pl = [["buffer_load_dword v%d, v%d, %s, s%d offen sc1" % (V_L + 3 * k + i, V_PXLD + i, W, (S_PX0, S_PX1 if NREP > 1 else S_PX0)[k]) for i in range(3)] for k in range(2)]
    for l in x2[:n0]:
        I(l)
    fill(a, [], PRE_P)
    for l in pl[0] + x2[n0:n0 + n1]:
        I(l)
    fill(a, [], GAP_P)
    rest, kq = x2[n0 + n1:], kv_dma('kq')
    kd = E("KQD", 6)
    for l in pl[1] + kq[:1]:
        I(l)
    for i, l in enumerate(kq[2:]):
        for x in rest[kd * i:kd * i + kd] or ["s_nop 0"]:
            I(x)
        I(l)
    for l in rest[kd * len(kq[2:]):]:
        I(l)
    nd = len(kq[2:])
    lpa, lpb, lpb1, lpd = a.uid("L_pa"), a.uid("L_pb"), a.uid("L_pb1"), a.uid("L_pd")

    def rsum(k, other, extra):
        L = V_L + 3 * k
        f = a.uid("L_pf")
        out = ["s_waitcnt vmcnt(%d)" % (5 + extra), "v_add_f32 v%d, v%d, v%d" % (V_T, V_R, L), "s_waitcnt vmcnt(%d)" % (3 + extra),
               "v_add_f32 v%d, v%d, v%d" % (V_T + 1, L + 1, L + 2),
               "v_max3_u32 v%d, v%d, v%d, v%d" % (V_CHK, L, L + 1, L + 2),
               "v_add_f32 v%d, v%d, v%d" % (V_T, V_T, V_T + 1),
               "v_cmp_eq_u32 vcc, -1, v%d" % V_CHK,
               "s_nop 0",
               "v_mov_b32_dpp v%d, v%d quad_perm:[1,0,3,2] row_mask:0xf bank_mask:0xf" % (V_T + 1, V_T),
               "s_mov_b64 exec, s[%d:%d]" % (S_EV, S_EV + 1),
               "v_cvt_pk_bf16_f32 v%d, v%d, v%d" % (V_T, V_T, V_T + 1),
               "v_min_u32 v%d, 0xfffffffe, v%d" % (V_T, V_T),
               "s_cbranch_vccnz %s" % f]
        stub = [f + ":"] + ["    " + l for l in ["s_mov_b64 exec, -1"] + pl[k] + spin_lines(3)] + ["    s_branch %s" % other]
        return out, stub
    out, stub = rsum(0, lpb1, nd)
    for l in out:
        I(l)
    COLD.extend(stub)
    for lab, k, other, extra in ((lpb1, 1, lpa, nd), (lpa, 0, lpb, 0), (lpb, 1, lpa, 0)):
        out, stub = rsum(k, other, extra)
        COLD.append(lab + ":")
        COLD.extend("    " + l for l in out)
        COLD.append("    s_branch %s" % lpd)
        COLD.extend(stub)
    a.L(lpd)
    I("buffer_store_dword v%d, v%d, %s, s%d offen" % (V_T, V_MEMST, W, S_NXT))
    I("s_mov_b64 exec, -1")
    stamp(6)
    I("s_branch %s" % loop)

    a.L(lhelp)
    I("s_waitcnt lgkmcnt(0)")
    I("s_barrier")
    lw2, lw3, lhe = a.uid("L_w2"), a.uid("L_w3"), a.uid("L_he")
    if os.environ.get("STAMP") == "2":
        stamp(2)
        I("s_waitcnt lgkmcnt(0)")
    I("s_cmp_ge_u32 s%d, 2" % S_W)
    I("s_cbranch_scc1 %s" % lw2)
    a.C("---- wave 1: reduce v, gate, K prefetch, poison, progress word")
    for i, src in enumerate((0, 2, 3)):
        I("ds_read_b128 v[%d:%d], v%d offset:%d" % (V_R + 4 * i, V_R + 4 * i + 3, V_LIN, L_RV + src * 1024))
    for i, src in enumerate((0, 2, 3)):
        I("s_waitcnt lgkmcnt(%d)" % (2 - i))
        for k in (0, 2):
            I(pk("add", V_AV + k, V_AV + k, V_R + 4 * i + (k if src & 1 else k ^ 2)))
    for tt in range(2):
        I("v_cvt_pk_bf16_f32 v%d, v%d, v%d" % (V_VM + tt, V_AV + 2 * tt, V_AV + 2 * tt + 1))
    I("s_nop 1")
    I("v_permlane32_swap_b32 v%d, v%d" % (V_VM, V_VM + 1))
    I("s_nop 1")
    I("ds_write_b64 v%d, v[%d:%d] offset:%d" % (V_L8, V_VM, V_VM + 1, L_VMF))
    I("s_add_u32 s%d, s%d, 2" % (S_T0, S_STEP))
    I("s_min_u32 s%d, s%d, 63" % (S_T0, S_T0))
    kvs.group_word(a, S_T0, S_KM, S_T2)
    I("s_cmp_eq_u32 s%d, %d" % (S_ID, 999 if 'nowork' in ABL else 1))
    I("s_cselect_b32 s%d, s%d, s%d" % (S_KM, S_KM, S_GATE))
    for l in blk_addr(S_KV, 1):
        I(l)
    I("s_waitcnt lgkmcnt(0)")
    lng, lgr, lnf = a.uid("L_nog"), a.uid("L_gr"), a.uid("L_nof")
    I("s_cmp_eq_u32 s%d, s%d" % (S_KM, S_GATE))
    I("s_cbranch_scc1 %s" % lng)
    I("s_load_dword s%d, s[%d:%d], s%d glc" % (S_T2, S_DBG, S_DBG + 1, S_KM))
    a.L(lng)
    I("s_mov_b32 s%d, 1" % S_T3)
    stamp(8)
    I("s_barrier")

    def first_gate():
        if 'nowork' not in ABL:
            lns = a.uid("L_ns0")
            I("s_cmp_lg_u32 s%d, 0" % S_STEP)
            I("s_cbranch_scc1 %s" % lns)
            relay_wait(a, 1)
            a.L(lns)
    first_gate()
    for l in (kv_dma('t') if TCHA < 2 else []) + kv_dma('v'):
        I(l)
    I("s_cmp_lg_u32 s%d, 0" % S_ID)
    I("s_cbranch_scc1 %s" % lnf)
    I("s_atomic_add s%d, s[%d:%d], %d" % (S_T3, S_DBG, S_DBG + 1, D_PROG * 4))
    a.L(lnf)
    poison(a, S_POI)
    I("s_cmp_eq_u32 s%d, s%d" % (S_KM, S_GATE))
    I("s_cbranch_scc1 %s" % lhe)
    I("s_mov_b32 s%d, s%d" % (S_GATE, S_KM))
    a.L(lgr)
    I("s_waitcnt lgkmcnt(0)")
    I("s_cmp_ge_u32 s%d, %d" % (S_T2, NKV))
    I("s_cbranch_scc1 %s" % lhe)
    for l in spin_lines():
        I(l)
    I("s_load_dword s%d, s[%d:%d], s%d glc" % (S_T2, S_DBG, S_DBG + 1, S_KM))
    I("s_branch %s" % lgr)
    a.L(lw2)
    a.C("---- waves 2, 3: x-token attention (query tile w&1), o of the previous step, Q / V prefetch")
    x1, x1post = xatt1()
    for l in x1[:14] + ([] if OSTA else x2fin) + x1[14:] + blk_addr(S_KM, -1) + ["s_nop 0"] + x1post:
        I(l)
    I("s_cmp_eq_u32 s%d, 3" % S_W)
    I("s_waitcnt lgkmcnt(0)")
    stamp(8)
    I("s_barrier")
    ost = "buffer_store_dwordx4 v[%d:%d], v%d, %s, s%d offen sc1" % (V_O, V_O + 3, V_H1, W, S_KM)
    if 'nopub' not in ABL and not OSTA:
        I(ost)
    I("ds_read_b64 v[%d:%d], v%d offset:%d" % (V_VM, V_VM + 1, V_L8, L_VMF))
    I("s_cbranch_scc0 %s" % lhe)
    for c in range(2):
        I("s_mov_b32 m0, %d" % (L_QXC - c * 1024))
        I("s_nop 0")
        I("buffer_load_dwordx4 v%d, %s, s%d offen offset:%d sc1 lds" % (V_H2, W, S_CUR, c * 2048))
    a.L(lhe)
    stamp(7)
    I("s_cmp_lg_u32 s%d, %d" % (S_STEP, LAST))
    I("s_cbranch_scc1 %s" % lb4)
    a.L(name + "_fin")
    I("s_waitcnt vmcnt(0) lgkmcnt(0)")
    I("s_barrier")
    lf = a.uid("L_f2")
    I("s_cmp_lt_u32 s%d, 2" % S_W)
    I("s_cbranch_scc1 %s" % lf)
    for l in xatt2()[0] + blk_addr(S_KM, 0) + ["s_nop 1"] + x2fin + [ost]:
        I(l)
    I("s_waitcnt vmcnt(0)")
    a.L(lf)
    I("s_barrier")
    I("s_cmp_lg_u32 s%d, 0" % S_W)
    I("s_cbranch_scc1 %s" % done)
    I("s_add_u32 s%d, s%d, 4096" % (S_T0, S_LF))
    I("s_mov_b32 s%d, 1" % S_T1)
    I("s_atomic_add s%d, s[%d:%d], s%d" % (S_T1, ptr(D_WS), ptr(D_WS) + 1, S_T0))
    I("s_branch %s" % done)


def poison(a, s_slot):
    I = a.I
    I("buffer_store_dwordx4 v[%d:%d], v%d, %s, s%d offen" % (V_ONES, V_ONES + 3, V_H0, W, s_slot))
    I("s_lshl_b32 s%d, s%d, 9" % (S_T1, S_JM))
    I("s_add_u32 s%d, s%d, s%d" % (S_T1, S_T1, s_slot))
    I("buffer_store_dwordx2 v[%d:%d], v%d, %s, s%d offen" % (V_ONES, V_ONES + 1, V_L8, W, S_T1))
    I("s_xor_b32 s%d, s%d, %d" % (S_T1, S_T1, 16384 + 4096))
    I("buffer_store_dwordx2 v[%d:%d], v%d, %s, s%d offen" % (V_ONES, V_ONES + 1, V_L8, W, S_T1))


def chain_main(a, name, stamp=None):
    I = a.I
    a.srd(S_WS, ptr(D_WS), 0, WS_SIZE)
    ABORT[0] = name + "_abort"
    I("s_mov_b32 s%d, 0" % S_SPIN)
    prologue_addrs(a)
    if len(LOOPSTART) > 2:
        LOOPSTART[2]()
    I("s_lshl_b32 s%d, s%d, 18" % (S_POI, S_W))
    I("s_add_u32 s%d, s%d, s%d" % (S_POI, S_POI, S_EXB))
    poison(a, S_POI)
    I("s_lshl_b32 s%d, s%d, 8" % (S_LF, S_X))
    I("s_add_u32 s%d, s%d, 0x%x" % (S_LF, S_LF, X_LF))
    I("s_cmp_eq_u32 s%d, 1" % S_J)
    I("s_cselect_b32 s%d, s%d, 0x%x" % (S_T1, S_LF, WS_SIZE))
    I("v_mov_b32 v%d, 0" % V_SMP)
    I("buffer_store_dword v%d, v%d, %s, s%d offen" % (V_SMP, V_SMP, W, S_T1))
    I("s_add_u32 s%d, s%d, 4096" % (S_T1, S_T1))
    I("buffer_store_dword v%d, v%d, %s, s%d offen sc1" % (V_SMP, V_SMP, W, S_T1))
    a.srd(S_TMPSRD, ptr(B_MEM0), 0, 16384)
    I("buffer_load_dwordx2 v[%d:%d], v%d, s[%d:%d], 0 offen" % (V_Y, V_Y + 1, V_M0LD, S_TMPSRD, S_TMPSRD + 3))

    def early():
        l1 = a.uid("L_m0")
        I("s_barrier")
        I("s_cmp_lg_u32 s%d, 0" % S_W)
        I("s_cbranch_scc1 %s" % l1)
        I("s_lshl_b32 s%d, s%d, 2" % (S_T3, S_X))
        I("s_add_u32 s%d, s%d, %d" % (S_T3, S_T3, D_CI * 4))
        I("s_mov_b32 s%d, 1" % S_T1)
        I("s_atomic_add s%d, s[%d:%d], s%d" % (S_T1, S_DBG, S_DBG + 1, S_T3))
        a.L(l1)
    load_weights(a, early)
    if LOOPSTART[1]:
        LOOPSTART[1]()
    I("v_and_b32 v%d, 15, v0" % V_T)
    I("v_lshlrev_b32 v%d, 7, v%d" % (V_T, V_T))
    I("s_lshl_b32 s%d, s%d, 11" % (S_T1, S_J))
    I("s_add_u32 s%d, s%d, s%d" % (S_T1, S_T1, S_POI))
    I("buffer_load_dword v%d, v%d, %s, s%d offen sc1" % (V_T + 1, V_T, W, S_T1))
    lab = a.uid("L_init")
    I("s_cmp_lg_u32 s%d, 0" % S_W)
    I("s_cbranch_scc1 %s" % lab)
    I("s_lshl_b32 s%d, s%d, 9" % (S_T1, S_JM))
    I("s_add_u32 s%d, s%d, s%d" % (S_T1, S_T1, S_EXB))
    I("v_min_u32 v%d, 0xfffffffe, v%d" % (V_Y, V_Y))
    I("v_min_u32 v%d, 0xfffffffe, v%d" % (V_Y + 1, V_Y + 1))
    I("buffer_store_dwordx2 v[%d:%d], v%d, %s, s%d offen" % (V_Y, V_Y + 1, V_L8, W, S_T1))
    a.L(lab)
    I("s_lshl_b32 s%d, s%d, 2" % (S_T3, S_X))
    I("s_add_u32 s%d, s%d, %d" % (S_T3, S_T3, D_CI * 4))
    dbg_wait(a, "s%d" % S_T3, 32)
    I("s_mov_b32 s%d, 0" % S_STEP)
    I("s_mov_b32 s%d, 0" % S_GATE)
    I("s_mov_b32 s%d, 0xc0000" % S_REL)
    I("s_mov_b32 s%d, s%d" % (S_NXT, S_EXB))
    for r in (V_P + 5, V_P + 6):
        I("v_mov_b32 v%d, 0" % r)
    px_setup(a)
    I("s_barrier")
    t0, t1 = V_T, V_T + 1
    I("v_and_b32 v%d, 15, v0" % t0)
    I("v_bfe_u32 v%d, v0, 6, 1" % t1)
    I("v_lshl_add_u32 v%d, v%d, 4, v%d" % (t0, t1, t0))
    I("v_bfe_u32 v%d, v0, 4, 2" % t1)
    I("v_lshlrev_b32 v%d, 2, v%d" % (t1, t1))
    I("v_sub_u32 v%d, v%d, v%d" % (t0, t0, t1))
    I("v_mov_b32 v%d, 0xff800000" % t1)
    for i in range(8):
        I("v_cmp_gt_i32 vcc, %d, v%d" % (16 * (i >> 2) + (i & 3), t0))
        I("s_nop 1")
        I("v_cndmask_b32 v%d, 0, v%d, vcc" % (V_XB + i, t1))
    lab0 = a.uid("L_init0")
    for l in blk_addr(S_KV, 0):
        I(l)
    I("s_cmp_lg_u32 s%d, 1" % S_W)
    I("s_cbranch_scc1 %s" % lab0)
    if 'nowork' not in ABL:
        relay_wait(a, 0)
    for l in kv_dma('v'):
        I(l)
    a.L(lab0)
    I("s_barrier")
    for l in kv_dma('kq'):
        I(l)
    I("s_waitcnt vmcnt(0) lgkmcnt(0)")
    I("s_barrier")
    if LOOPSTART[0]:
        LOOPSTART[0]()
    step_body(a, name, stamp if stamp else (lambda i: None))
    for line in COLD:
        a.raw(line)
    del COLD[:]
    a.L(ABORT[0])
    a.srd(S_TMPSRD, ptr(D_DBG), 0, 256)
    I("s_mov_b64 exec, 1")
    I("v_mov_b32 v1, s%d" % S_STEP)
    I("v_or_b32 v1, 0xdead0000, v1")
    I("v_mov_b32 v2, 124")
    I("buffer_store_dword v1, v2, s[%d:%d], 0 offen" % (S_TMPSRD, S_TMPSRD + 3))
    a.L(name + "_done")
    if DUMP[0]:
        DUMP[0]()
    I("s_endpgm")
```

```python
import os
from L2 import *


def setup(a, chain, STAMP):
    I = a.I
    WT = int(os.environ.get("WT", "0"))

    def ct(idx):
        if not WT:
            return
        I("s_memrealtime s[34:35]")
        I("s_lshl_b32 s36, s%d, 4" % chain.S_ID)
        I("s_add_u32 s36, s36, 0x%x" % (WS_DBG + 196608 + idx * 4))
        I("s_waitcnt lgkmcnt(0)")
        I("v_mov_b32 v250, s34")
        I("v_mov_b32 v251, 0")
        I("s_mov_b64 exec, 1")
        I("buffer_store_dword v250, v251, s[8:11], s36 offen")
        I("s_mov_b64 exec, -1")

    def cstamp(i):
        if STAMP == 3:
            if i == 0:
                I("s_memtime s[82:83]")
                I("s_mov_b32 m0, s19")
                I("s_waitcnt lgkmcnt(0)")
                I("v_writelane_b32 v252, s82, m0")
        if STAMP == 2:
            if i == 0:
                lab = a.uid("L_cst")
                I("s_memtime s[82:83]")
                I("s_sub_u32 s34, s19, %d" % (chain.LAST - 54))
                I("s_cmp_ge_u32 s34, 48")
                I("s_waitcnt lgkmcnt(0)")
                I("s_cbranch_scc1 %s" % lab)
                for k in range(1, 10):
                    I("s_sub_u32 s34, s%d, s64" % (64 + 2 * k))
                    I("s_add_u32 s%d, s%d, s34" % (84 + k, 84 + k))
                a.L(lab)
                I("s_mov_b32 s64, s82")
            else:
                I("s_memtime s[%d:%d]" % (64 + 2 * i, 65 + 2 * i))

    def cdump():
        ct(2)
        if not STAMP:
            return
        if STAMP == 2:
            for k in range(1, 10):
                I("v_writelane_b32 v252, s%d, %d" % (84 + k, k))
            for k in range(4):
                I("v_writelane_b32 v252, s%d, %d" % (94 + k, 10 + k))
        I("s_lshl_b32 s56, s%d, 2" % chain.S_ID)
        I("s_add_u32 s56, s56, s18")
        I("s_lshl_b32 s56, s56, 8")
        I("s_add_u32 s56, s56, 0x%x" % WS_DBG)
        I("s_mov_b64 exec, -1")
        I("v_and_b32 v251, 63, v0")
        I("v_lshlrev_b32 v251, 2, v251")
        I("buffer_store_dword v252, v251, s[8:11], s56 offen")

    def lstart():
        ct(1)
        if STAMP:
            I("v_mov_b32 v252, 0")
        if STAMP == 2:
            for k in range(84, 98):
                I("s_mov_b32 s%d, 0" % k)
    chain.DUMP[0] = cdump
    chain.LOOPSTART[0] = lstart
    chain.LOOPSTART[1] = lambda: ct(0)
    chain.LOOPSTART.append(lambda: ct(3))
    return cstamp
```

```python
from asmlib import *
import os

S_SP, S_SS, S_SO = 8, 12, 16
S_PO, S_SOF, S_SK = 20, 24, 28
NP = 30
NS = 36
S_IT, S_MP, S_MS, S_DP, S_DS, S_RP, S_RS = 43, 44, 45, 46, 47, 48, 49
S_STB, S_STD1, S_STD2, S_STO = 50, 51, 52, 53
S_RET = 54
S_XW, S_RK, S_WV, S_POL = 56, 57, 58, 59
T0, T1, T2, T3 = 60, 61, 62, 63
S_IDX = 29
S_STD0, S_SIG, S_WAIT, S_WTG = 5, 4, 3, 2
NSI = int(os.environ.get("NSI", "8"))
S_NKP, S_NKS = 84, 94
S_SIG0 = 1
V_LIN = 1
V_STA = 2
V_DP, V_DS, V_NDP, V_NDS = 4, 6, 8, 10
V_RP = 12
V_RS = 14
V_CT, V_CN = 22, 23
V_X = 24
V_STT = 32
V_FP = 40
V_FS = 72
V_E = 88
V_ST = 128
LDS_END = 163840
ORDER = int(os.environ.get("MORD", "0"))
XP = os.environ.get("XP", "")


def srd_s(d):
    return "s[%d:%d]" % (d, d + 3)


def acc_kq(ip, js):
    return (ip * 8 + js) * 4


def acc_v(ip, js):
    return (((ip >> 1) * 8 + js) * 2 + (ip & 1)) * 4


def setup(a):
    I = a.I
    a.C("---- gemm2 setup")
    t0, t1 = V_X, V_X + 1
    I("v_and_b32 v%d, 63, v0" % t0)
    I("v_lshlrev_b32 v%d, 4, v%d" % (V_LIN, t0))
    I("v_mov_b32 v%d, v%d" % (V_STA, V_LIN))
    I("v_add_u32 v%d, 1024, v%d" % (V_STA + 1, V_LIN))
    I("v_bfe_u32 v%d, v0, 1, 3" % t0)
    I("v_bfe_u32 v%d, v0, 4, 2" % t1)
    I("v_xor_b32 v%d, v%d, v%d" % (t0, t0, t1))
    I("v_lshlrev_b32 v%d, 4, v%d" % (t0, t0))
    I("v_and_b32 v%d, 15, v0" % t1)
    I("v_lshl_add_u32 v%d, v%d, 7, v%d" % (t0, t1, t0))
    I("s_lshr_b32 s%d, s%d, 1" % (T0, S_WV))
    I("s_lshl_b32 s%d, s%d, 14" % (T0, T0))
    I("v_add_u32 v%d, s%d, v%d" % (V_CN, T0, t0))
    I("s_and_b32 s%d, s%d, 1" % (T0, S_WV))
    I("s_lshl_b32 s%d, s%d, 14" % (T0, T0))
    I("s_add_u32 s%d, s%d, 32768" % (T0, T0))
    I("v_add_u32 v%d, s%d, v%d" % (V_RP, T0, t0))
    I("v_xor_b32 v%d, 64, v%d" % (V_RP + 1, V_RP))
    I("v_bfe_u32 v%d, v0, 2, 3" % t0)
    I("v_lshlrev_b32 v%d, 5, v%d" % (V_CT, t0))
    I("v_and_b32 v%d, 3, v0" % t0)
    I("v_lshl_add_u32 v%d, v%d, 3, v%d" % (V_CT, t0, V_CT))
    I("v_bfe_u32 v%d, v0, 2, 2" % t0)
    I("v_lshl_add_u32 v%d, v%d, 9, v%d" % (V_CT, t0, V_CT))
    I("v_bfe_u32 v%d, v0, 4, 2" % t0)
    I("v_lshl_add_u32 v%d, v%d, 12, v%d" % (V_CT, t0, V_CT))
    I("v_bfe_u32 v%d, v0, 7, 1" % t0)
    I("v_lshl_add_u32 v%d, v%d, 8, v%d" % (V_CT, t0, V_CT))
    I("s_mov_b32 s%d, 0" % S_RS)
    I("s_mov_b32 s%d, 32768" % S_RP)
    I("s_lshl_b32 s%d, s%d, 12" % (S_MS, S_WV))
    I("s_add_u32 s%d, s%d, 32768" % (S_MP, S_MS))
    for d in (S_SP, S_SS, S_SO):
        I("s_mov_b32 s%d, 0x00020000" % (d + 3))


def pat_n(a, dst, mode):
    I = a.I
    t0, t1 = V_X, V_X + 1
    I("v_bfe_u32 v%d, v0, 4, 2" % t0)
    I("v_and_b32 v%d, 7, v0" % t1)
    I("v_xor_b32 v%d, v%d, v%d" % (t0, t0, t1))
    I("v_lshlrev_b32 v%d, 4, v%d" % (dst, t0))
    if mode == 'time':
        I("v_bfe_u32 v%d, v0, 3, 2" % t0)
        I("v_lshl_add_u32 v%d, v%d, 11, v%d" % (dst, t0, dst))
        I("v_bfe_u32 v%d, v0, 5, 1" % t0)
        I("v_lshl_add_u32 v%d, v%d, 16, v%d" % (dst, t0, dst))
        I("v_lshrrev_b32 v%d, 6, v0" % t0)
        I("v_lshl_add_u32 v%d, v%d, 14, v%d" % (dst, t0, dst))
        par = 64 * 2048
    else:
        I("v_bfe_u32 v%d, v0, 3, 3" % t0)
        I("v_lshl_add_u32 v%d, v%d, 11, v%d" % (dst, t0, dst))
        I("v_bfe_u32 v%d, v0, 6, %d" % (t0, 2 if mode == 'nat' else 1))
        I("v_lshl_add_u32 v%d, v%d, 16, v%d" % (dst, t0, dst))
        par = 8 * 2048
    I("v_xor_b32 v%d, 64, v%d" % (dst + 1, dst))
    I("v_add_u32 v%d, 0x%x, v%d" % (dst + 1, par, dst + 1))


PAT_D = {'nat': (16 * 2048, 128 * 2048), 'time': (4 * 2048, 128 * 2048), 'chan': (16 * 2048, 64 * 2048)}


def pat_t(a, dst, lg):
    I = a.I
    t0, t1 = V_X, V_X + 1
    I("v_bfe_u32 v%d, v0, 5, 1" % t0)
    I("v_bfe_u32 v%d, v0, 6, 1" % t1)
    I("v_lshl_add_u32 v%d, v%d, 2, v%d" % (t1, t1, t0))
    I("v_lshlrev_b32 v%d, 1, v%d" % (t1, t1))
    I("v_and_b32 v%d, 31, v0" % dst)
    I("v_xor_b32 v%d, v%d, v%d" % (dst, dst, t1))
    I("v_lshlrev_b32 v%d, 4, v%d" % (dst, dst))
    I("v_lshl_add_u32 v%d, v%d, %d, v%d" % (dst, t0, lg, dst))
    I("v_lshrrev_b32 v%d, 6, v0" % t0)
    I("v_lshl_add_u32 v%d, v%d, %d, v%d" % (dst, t0, lg + 3, dst))
    I("v_xor_b32 v%d, 64, v%d" % (dst + 1, dst))
    I("v_add_u32 v%d, 0x%x, v%d" % (dst + 1, 2 << lg, dst + 1))


def pat_b(a, dst):
    a.I("s_lshr_b32 s%d, s%d, 1" % (T1, S_WV))
    a.I("s_lshl_b32 s%d, s%d, 14" % (T1, T1))
    a.I("v_add_u32 v%d, s%d, v%d" % (dst, T1, V_LIN))
    a.I("s_and_b32 s%d, s%d, 1" % (T1, S_WV))
    a.I("s_lshl_b32 s%d, s%d, 12" % (T1, T1))
    a.I("v_add_u32 v%d, s%d, v%d" % (dst, T1, dst))
    a.I("v_add_u32 v%d, 1024, v%d" % (dst + 1, dst))


def next_op(a, n, p, off, size, d1, d2, kadv=None, cst=0):
    I = a.I
    if cst:
        I("s_add_u32 s%d, s%d, 0x%x" % (n, p, cst))
        I("s_addc_u32 s%d, s%d, 0" % (n + 1, p + 1))
        I("s_and_b32 s%d, s%d, 0xffff" % (n + 1, n + 1))
    else:
        I("s_mov_b32 s%d, s%d" % (n, p))
        I("s_and_b32 s%d, s%d, 0xffff" % (n + 1, p + 1))
    I("s_mov_b32 s%d, 0x%x" % (n + 2, size))
    I("s_mov_b32 s%d, %s" % (n + 3, off))
    I("s_mov_b32 s%d, 0x%x" % (n + 4, d1))
    I("s_mov_b32 s%d, 0x%x" % (n + 5, d2))
    if kadv is not None:
        I("s_mov_b32 s%d, 0x%x" % (n + 6, kadv))


def switch_lines(op):
    n, srd, off, vd, vn, key, m = (NP, S_SP, S_PO, V_DP, V_NDP, S_NKP, S_MP) if op == 'P' else (NS, S_SS, S_SOF, V_DS, V_NDS, S_NKS, S_MS)
    out = ["s_mov_b32 s%d, s%d" % (srd + i, n + i) for i in range(3)]
    out += ["s_and_b32 s%d, s%d, 0xffffb7ff" % (m, m),
            "s_bitcmp1_b32 s%d, 1" % key, "s_cselect_b32 s%d, s%d, 0" % (off, n + 5), "s_cselect_b32 s%d, 0, s%d" % (off + 2, n + 5),
            "s_cselect_b32 s%d, 0x4000, 0" % T0, "s_or_b32 s%d, s%d, s%d" % (m, m, T0),
            "s_add_u32 s%d, s%d, s%d" % (off, off, n + 3), "s_add_u32 s%d, s%d, s%d" % (off + 2, off + 2, n + 3),
            "s_bitcmp1_b32 s%d, 0" % key, "s_cselect_b32 s%d, s%d, 0" % (T1, n + 4), "s_cselect_b32 s%d, 0, s%d" % (T2, n + 4),
            "s_cselect_b32 s%d, 0x800, 0" % T0, "s_or_b32 s%d, s%d, s%d" % (m, m, T0),
            "s_add_u32 s%d, s%d, s%d" % (off + 1, off, T2), "s_add_u32 s%d, s%d, s%d" % (off, off, T1),
            "s_add_u32 s%d, s%d, s%d" % (off + 3, off + 2, T2), "s_add_u32 s%d, s%d, s%d" % (off + 2, off + 2, T1)]
    if op == 'S':
        out.append("s_mov_b32 s%d, s%d" % (S_SK, n + 6))
    out += ["v_mov_b32 v%d, v%d" % (vd + i, vn + i) for i in range(2)]
    return out


def dma_groups(op, nt=False):
    srd, off, vd, m = (S_SP, S_PO, V_DP, S_MP) if op == 'P' else (S_SS, S_SOF, V_DS, S_MS)
    g = []
    for q in range(8):
        g.append(("s_xor_b32 m0, s%d, %d" % (m, (q >> 2) * 16384 + (q & 3) * 1024),
                  "buffer_load_dwordx4 v%d, %s, s%d offen%s lds" % (vd + (q & 1), srd_s(srd), off + (q >> 1), " nt" if nt else "")))
    adv = "128" if op == 'P' else "s%d" % S_SK
    if "samek" in XP or ("same" + op) in XP:
        adv = "0"
    upd = ["s_add_u32 s%d, s%d, %s" % (off + i, off + i, adv) for i in range(4)]
    upd.append(["s_cmp_ge_u32 s%d, 98304" % m, "s_cselect_b32 s%d, s%d, s%d" % (T0, 6, 7), "s_add_u32 s%d, s%d, s%d" % (m, m, T0)])
    return g, upd


def prologue(a):
    I = a.I
    I("s_mov_b32 s6, 0x%x" % ((-98304) & 0xffffffff))
    I("s_mov_b32 s7, 65536")
    for l in switch_lines('S') + switch_lines('P'):
        I(l)
    for op in "SPS":
        g, upd = dma_groups(op)
        for m, l in g:
            I(m)
            I("s_nop 0")
            I(l)
        for u in upd:
            for l in (u if isinstance(u, list) else [u]):
                I(l)


def prologue_wait(a):
    a.I("s_waitcnt vmcnt(8)")
    a.I("s_barrier")


class Tile:
    def __init__(self, a, name, skind, a_is_s, acc, ns=16):
        self.ns = ns
        self.a, self.name, self.skind, self.a_is_s, self.acc = a, name, skind, a_is_s, acc

    def rd_p(self, ip, h):
        f = V_FP + 4 * ip
        return [("ds_read_b128 v[%d:%d], v%d offset:%d" % (f, f + 3, V_RP + h, ip * 2048), f)]

    def rd_s(self, js, h):
        f = V_FS + 4 * (js & 3)
        if self.skind == 't':
            return [("ds_read_b64_tr_b16 v[%d:%d], v%d offset:%d" % (f + 2 * u, f + 2 * u + 1, V_RS + js, h * 16384 + u * 2048), f) for u in range(2)]
        if self.skind == 'b':
            return [("ds_read_b64_tr_b16 v[%d:%d], v%d offset:%d" % (f + 2 * u, f + 2 * u + 1, V_RS + u, h * 16384 + js * 512), f) for u in range(2)]
        return [("ds_read_b128 v[%d:%d], v%d offset:%d" % (f, f + 3, V_RS + h, js * 2048), f)]

    def mfma(self, ip, js, zero):
        c = self.acc(ip, js)
        p, s = V_FP + 4 * ip, V_FS + 4 * (js & 3)
        x, y = (s, p) if self.a_is_s else (p, s)
        return "v_mfma_f32_16x16x32_bf16 a[%d:%d], v[%d:%d], v[%d:%d], %s" % (c, c + 3, x, x + 3, y, y + 3, "0" if zero else "a[%d:%d]" % (c, c + 3)), (p, s)

    def first_reads(self, h):
        out = []
        for k, r in enumerate(self.rd_s(0, h) + self.rd_s(1, h)):
            out.append(((0, 1, 4, 5)[k], r))
        for b in range(4):
            if ORDER == 0:
                out.append((4 * b + 2, self.rd_p(2 * b + 1, h)[0]))
                out.append((4 * b + 3, self.rd_p(2 * b, h)[0]))
            else:
                out.append((4 * b + 2, self.rd_p(2 * b, h)[0]))
                out.append((4 * b + 3, self.rd_p(2 * b + 1, h)[0]))
        return out

    def emit(self, h, rounds, zero, fill, queue, nxt_h=None):
        I = self.a.I
        for jp in rounds:
            reads = {}
            if jp < 3:
                for k, r in enumerate(self.rd_s(2 * jp + 2, h) + self.rd_s(2 * jp + 3, h)):
                    reads.setdefault(2 + 2 * k, []).append(r)
            elif nxt_h is not None:
                for k, r in self.first_reads(nxt_h):
                    reads.setdefault(k, []).append(r)
            k = 0
            for b in range(4):
                blk = ((0, 0), (1, 0), (1, 1), (0, 1)) if ORDER == 0 else (((0, 0), (0, 1), (1, 0), (1, 1)) if ORDER == 1 else ((0, 0), (1, 0), (0, 1), (1, 1)))
                for di, dj in blk:
                    line, need = self.mfma(2 * b + di, 2 * jp + dj, zero)
                    last = max([i for i, f in enumerate(queue) if f in need], default=-1)
                    if last >= 0:
                        I("s_waitcnt lgkmcnt(%d)" % min(15, len(queue) - 1 - last))
                        del queue[:last + 1]
                    I(line)
                    for r, f in reads.get(k, []):
                        I(r)
                        queue.append(f)
                    for l in fill.get(jp * 16 + k, []):
                        I(l)
                    k += 1

    def fills(self):
        sch = os.environ.get("SCH", "0,2,56,60,65,69,73,77;4,6,84,88,92,96,100,103;24")
        ps, ss, st0 = [[int(x) for x in g.split(",")] for g in sch.split(";")]
        st0 = st0[0]
        NST = 32 // NSI
        self.late_s = sum(x > max(ps) for x in ss)
        self.late_st = NST if st0 > max(ps) else 0
        base, sts = [], []
        add = lambda sl, ls, at=False: base.append((sl, ls, at))
        ads = lambda sl, ls, at=False: sts.append((sl, ls, at))
        if NST == 4:
            ads(8, ["s_bitcmp1_b32 s%d, 0" % S_IT, "s_cselect_b32 s%d, s%d, 0" % (T1, S_STD0), "s_lshl1_add_u32 s%d, s%d, s%d" % (S_STO, T1, S_STB)])
        else:
            ads(8, ["s_and_b32 s%d, s%d, 3" % (T1, S_IT), "s_mul_i32 s%d, s%d, s%d" % (T1, T1, S_STD0), "s_add_u32 s%d, s%d, s%d" % (S_STO, T1, S_STB)])
        b = 1 if NST == 4 else 2
        ads(9, ["s_bitcmp1_b32 s%d, %d" % (S_IT, b), "s_cselect_b32 s%d, s%d, 0" % (T1, S_STD1), "s_add_u32 s%d, s%d, s%d" % (S_STO, S_STO, T1),
                "s_bitcmp1_b32 s%d, %d" % (S_IT, b + 1), "s_cselect_b32 s%d, s%d, 0" % (T1, S_STD2), "s_add_u32 s%d, s%d, s%d" % (S_STO, S_STO, T1),
                "s_lshl_b32 s%d, s%d, %d" % (S_IDX, S_IT, 5 - b)])
        if self.late_st:
            ads(9, ["s_mov_b64 vcc, -1"])
            add(8, ["s_mov_b64 vcc, 0"])
        std = int(os.environ.get("STD", "2"))
        for u in range(NST):
            t = V_X + 4 * u
            ads(st0 - 8 + 2 * u, ["s_set_gpr_idx_on s%d, gpr_idx(SRC0)" % S_IDX] + ["v_mov_b32 v%d, v%d" % (t + i, V_ST + 4 * u + i) for i in range(4)] + ["s_set_gpr_idx_off"], True)
            ads(st0 + std * u, ["buffer_store_dwordx4 v[%d:%d], v%d, %s, s%d offen sc1" % (t, t + 3, V_STA + (u & 1), srd_s(S_SO), S_STO)] +
                (["s_add_u32 s%d, s%d, s%d" % (S_STO, S_STO, S_STD0)] if u == 1 and NST == 4 else []))
        for op, sl in (('P', ps), ('S', ss)):
            g, upd = dma_groups(op, (self.name + op) in os.environ.get('NT', ''))
            for q, (m, l) in enumerate(g):
                add(sl[q], [m, l] + ([upd[q >> 1]] if q & 1 else []) + (upd[4] if q == 7 else []))
        add(67, ["s_cmp_ge_u32 s%d, 98304" % S_RP, "s_cselect_b32 s%d, s6, s7" % S_DP, "s_add_u32 s%d, s%d, s%d" % (S_RP, S_RP, S_DP)])
        add(71, ["s_cmp_ge_u32 s%d, 98304" % S_RS, "s_cselect_b32 s%d, s6, s7" % S_DS, "s_add_u32 s%d, s%d, s%d" % (S_RS, S_RS, S_DS)])
        add(81, ["v_add_u32 v%d, s%d, v%d" % (V_RP + i, S_DP, V_RP + i) for i in range(2)])
        if self.skind == 't':
            for js in range(8):
                add((82, 86, 87, 90, 94, 95, 106, 107)[js], ["v_add_u32 v%d, s%d, v%d" % (V_RS + js, S_DS, V_RS + js)])
        else:
            add(83 if self.skind == 'n' else 106, ["v_add_u32 v%d, s%d, v%d" % (V_RS, S_DS, V_RS)])
            add(107, ["v_add_u32 v%d, s%d, v%d" % (V_RS + 1, S_DS, V_RS + 1)])
        add(108, ["s_add_u32 s%d, s%d, 1" % (S_IT, S_IT), "s_cmp_eq_u32 s%d, %d" % (S_IT, self.ns)])
        if "gnost" in XP:
            sts = []
        if "gnodma" in XP:
            base = [(sl, [l for l in ls if not l.endswith(" lds")], at) for sl, ls, at in base]
        cap = [2] * 64
        nrd = len(self.rd_s(0, 0)) * 2
        for jp in range(3):
            for k in range(nrd):
                cap[jp * 16 + 2 + 2 * k] -= 1
            cap[jp * 16 + 15] -= 1
            cap[jp * 16 + 17] -= 1
        for k in (1, 3, 7, 11):
            cap[k] -= 1
        for k, r in self.first_reads(0):
            cap[48 + k] -= 1
        cap[63] = 0
        key = lambda it: it[0]
        fa = place(sorted([x for x in base if x[0] < 64], key=key), cap)
        fas = place(sorted([x for x in base if x[0] < 64] + sts, key=key), cap)
        fb = place(sorted([(sl - 64, ls, at) for sl, ls, at in base if sl >= 64], key=key), cap[:47] + [1])
        return fas, fa, fb

    def gen(self, cont=False):
        a, I, nm = self.a, self.a.I, self.name
        fas, fa, fb = self.fills()

        def entry():
            I("s_mov_b32 s%d, 0" % S_IT)
            if self.skind == 't':
                for js in range(8):
                    I("v_xor_b32 v%d, %d, v%d" % (V_RS + js, js * 32, V_CT))
                for js in range(8):
                    I("v_add_u32 v%d, s%d, v%d" % (V_RS + js, S_RS, V_RS + js))
            else:
                if self.skind == 'b':
                    t = V_RS + 2
                    I("v_bfe_u32 v%d, v0, 5, 1" % t)
                    I("v_lshlrev_b32 v%d, 13, v%d" % (V_CN, t))
                    for bit, n, sh in ((7, 1, 12), (1, 1, 8), (1, 1, 6), (4, 1, 7), (2, 2, 4), (0, 1, 3)):
                        I("v_bfe_u32 v%d, v0, %d, %d" % (t, bit, n))
                        I("v_lshl_add_u32 v%d, v%d, %d, v%d" % (V_CN, t, sh, V_CN))
                I("v_add_u32 v%d, s%d, v%d" % (V_RS, S_RS, V_CN))
                I("v_xor_b32 v%d, 64, v%d" % (V_RS + 1, V_RS))
            q = []
            for k, (r, f) in sorted(self.first_reads(0), key=lambda x: x[0]):
                I(r)
                q.append(f)
            return q
        if cont:
            a.L(nm + "_c")
            entry()
            I("s_branch %s_as" % nm)
        a.L(nm)
        q0 = entry()
        q = list(q0)
        self.emit(0, range(4), True, fas, q, 1)
        qb = list(q)
        I("s_branch %s_b" % nm)
        NS_ = self.ns
        two = NSI < NS_
        if two:
            a.L(nm + "_as")
            q = list(q0)
            self.emit(0, range(4), False, fas, q, 1)
            I("s_branch %s_b" % nm)
        a.L(nm + "_hook")
        I("s_cmp_eq_u32 s%d, 1" % S_IT)
        I("s_cbranch_scc1 %s_sig0" % nm)
        if two:
            I("s_cmp_lt_u32 s%d, %d" % (S_IT, NSI))
            I("s_cbranch_scc1 %s_as" % nm)
        I("s_cmp_eq_u32 s%d, %d" % (S_IT, NS_ - 2))
        I("s_cbranch_scc1 %s_sws" % nm)
        I("s_cmp_eq_u32 s%d, %d" % (S_IT, NS_ - 1))
        I("s_cbranch_scc1 %s_swp" % nm)
        I("s_cmp_lg_u32 s%d, 0" % S_WV)
        I("s_cbranch_scc1 %s_a" % nm)
        if two:
            I("s_cmp_eq_u32 s%d, %d" % (S_IT, NS_ - 3))
            I("s_cbranch_scc1 %s_wait" % nm)
            I("s_cmp_lg_u32 s%d, %d" % (S_IT, NSI + 1))
            I("s_cbranch_scc1 %s_a" % nm)
            I("s_cmp_eq_u32 s%d, 0" % S_SIG)
            I("s_cbranch_scc1 %s_a" % nm)
            signal_lines(a, S_SIG)
            I("s_branch %s_a" % nm)
        a.L(nm + "_wait")
        I("s_cmp_eq_u32 s%d, 0" % S_WAIT)
        I("s_cbranch_scc1 %s_a" % nm)
        scalar_wait(a, S_WAIT, "s%d" % S_WTG)
        I("s_branch %s_a" % nm)
        a.L(nm + "_sig0")
        I("s_cmp_eq_u32 s%d, 0" % S_SIG0)
        I("s_cbranch_scc1 %s_as" % nm)
        signal_lines(a, S_SIG0)
        I("s_mov_b32 s%d, 0" % S_SIG0)
        I("s_branch %s_as" % nm)
        a.L(nm + "_sws")
        for l in switch_lines('S'):
            I(l)
        I("s_branch %s_a" % nm)
        a.L(nm + "_swp")
        for l in switch_lines('P'):
            I(l)
        a.L(nm + "_a")
        if not two:
            a.L(nm + "_as")
        q = list(q0)
        self.emit(0, range(4), False, fa if two else fas, q, 1)
        assert q == qb
        a.L(nm + "_b")
        self.emit(1, range(3), False, fb, q)
        I("s_waitcnt vmcnt(%d) lgkmcnt(0)" % (self.late_s + self.late_st))
        if self.late_st:
            I("s_cbranch_vccnz %s_bar" % nm)
            I("s_waitcnt vmcnt(%d)" % self.late_s)
            a.L(nm + "_bar")
        I("s_barrier")
        I("s_cbranch_scc1 %s_last" % nm)
        q = []
        lo = NSI + 2 if two else 2
        self.emit(1, [3], False, {48 + 12: ["s_sub_u32 s%d, s%d, %d" % (T1, S_IT, lo), "s_cmp_lt_u32 s%d, %d" % (T1, NS_ - 3 - lo)]}, q, 0)
        assert q == q0, (q, q0)
        I("s_cbranch_scc1 %s_a" % nm)
        I("s_branch %s_hook" % nm)
        a.L(nm + "_last")
        self.emit(1, [3], False, {}, [])
        I("s_setpc_b64 s[%d:%d]" % (S_RET, S_RET + 1))


DBGP = [98]
ABORT = [None]
SPIN_LIMIT = 1 << 21


def signal_lines(a, soff, val=1):
    I = a.I
    I("v_mov_b32 v%d, s%d" % (V_X, soff))
    I("v_mov_b32 v%d, %d" % (V_X + 1, val))
    I("s_mov_b64 exec, 1")
    I("global_atomic_add v%d, v%d, s[%d:%d] sc1" % (V_X, V_X + 1, DBGP[0], DBGP[0] + 1))
    I("s_mov_b64 exec, -1")


def scalar_wait(a, soff, target):
    I = a.I
    lp, ok = a.uid("L_sw"), a.uid("L_swok")
    I("s_mov_b32 s%d, 0" % T2)
    a.L(lp)
    I("s_load_dword s%d, s[%d:%d], s%d glc" % (T3, DBGP[0], DBGP[0] + 1, soff))
    I("s_add_u32 s%d, s%d, 1" % (T2, T2))
    I("s_cmp_gt_u32 s%d, 0x%x" % (T2, SPIN_LIMIT))
    I("s_cbranch_scc1 %s" % ABORT[0])
    I("s_waitcnt lgkmcnt(0)")
    I("s_cmp_ge_u32 s%d, %s" % (T3, target))
    I("s_cbranch_scc1 %s" % ok)
    I("s_sleep 16")
    I("s_branch %s" % lp)
    a.L(ok)


def call(a, label):
    a.I("s_call_b64 s[%d:%d], %s" % (S_RET, S_RET + 1, label))


def gen_convert(a, name):
    I = a.I
    a.L(name)
    I("s_nop 7")
    for n in range(32):
        t = V_E + (n & 1) * 8
        for i in range(8):
            I("v_accvgpr_read_b32 v%d, a%d" % (t + i, n * 8 + i))
        for i in range(4):
            I("v_cvt_pk_bf16_f32 v%d, v%d, v%d" % (V_ST + 4 * n + i, t + 2 * i, t + 2 * i + 1))
    I("s_setpc_b64 s[%d:%d]" % (S_RET, S_RET + 1))


def gen_flush(a, name):
    I = a.I
    a.L(name)
    for it in range(16):
        if it % 4 == 0:
            I("s_mov_b32 s%d, s%d" % (S_STO, S_STB))
            if it & 4:
                I("s_add_u32 s%d, s%d, s%d" % (S_STO, S_STO, S_STD1))
            if it & 8:
                I("s_add_u32 s%d, s%d, s%d" % (S_STO, S_STO, S_STD2))
        elif it % 2 == 0:
            I("s_add_u32 s%d, s%d, 4096" % (S_STO, S_STO))
        for u in range(2):
            r = V_ST + 8 * it + 4 * u
            I("buffer_store_dwordx4 v[%d:%d], v%d, %s, s%d offen offset:%d sc1" % (r, r + 3, V_STA, srd_s(S_SO), S_STO, (it & 1) * 2048 + u * 1024))
    I("s_setpc_b64 s[%d:%d]" % (S_RET, S_RET + 1))
```

```python
from asmlib import *
from L2 import *
import gemm2 as G
from gemm2 import S_XW, S_RK, S_WV, S_POL, T0, T1, T2, T3, srd_s, LDS_END, signal_lines, SPIN_LIMIT
import os

SX, SW, SO = 8, 12, 16
S_M, S_R, S_D, S_XO, S_SEG, S_KO, S_PO, S_TO, S_WO, S_C32 = 20, 21, 22, 23, 24, 25, 26, 27, 28, 29
S_KB, S_PB, S_TC, S_MK = 30, 31, 33, 34
V_LIN, V_DX, V_RX, V_DW, V_RW, V_TCH, V_POLV, V_L4 = 1, 2, 4, 6, 8, 10, 11, 12
V_ONE, V_ACC, V_OUT, V_PK, V_F = 28, 32, 48, 64, 72
GROUP_END = [0, 1, 2, 3, 5, 7, 11, 15, 23, 31, 39, 47, 55, 63]


def ring(r):
    return ["s_add_u32 s%d, s%d, 32768" % (r, r), "s_cmp_ge_u32 s%d, %d" % (r, LDS_END), "s_cselect_b32 s%d, %d, 0" % (T0, LDS_END), "s_sub_u32 s%d, s%d, s%d" % (r, r, T0)]


def get_polarity(a, vpol, vt):
    I = a.I
    lp, lok = a.uid("L_pp"), a.uid("L_pok")
    I("s_mov_b32 s%d, 0" % T2)
    a.L(lp)
    I("v_readfirstlane_b32 s%d, v%d" % (S_POL, vpol))
    I("s_and_b32 s%d, s%d, 0xff" % (T0, S_POL))
    I("s_cmp_ge_u32 s%d, 15" % T0)
    I("s_cbranch_scc1 %s" % lok)
    I("v_mov_b32 v%d, %d" % (vt, D_CAL * 4))
    I("global_load_dword v%d, v%d, s[%d:%d] sc1" % (vpol, vt, ptr(D_DBG), ptr(D_DBG) + 1))
    I("s_add_u32 s%d, s%d, 1" % (T2, T2))
    I("s_cmp_gt_u32 s%d, 0x%x" % (T2, SPIN_LIMIT))
    I("s_cbranch_scc1 %s" % G.ABORT[0])
    I("s_waitcnt vmcnt(0)")
    I("s_branch %s" % lp)
    a.L(lok)
    I("s_cmp_ge_u32 s%d, 0x800" % S_POL)
    I("s_cselect_b32 s%d, 0x2000, 0" % S_POL)


def xdma():
    return [("s_add_u32 m0, s%d, %d" % (S_M, st * (4096 - 128)), "buffer_load_dwordx4 v%d, %s, s%d offen offset:%d lds" % (V_DX, srd_s(SX), S_XO, st * 128)) for st in range(8)]


XADV = ["s_add_u32 s%d, s%d, 1024" % (S_XO, S_XO), "s_bitcmp1_b32 s%d, 11" % S_XO, "s_cselect_b32 s%d, 0x%x, 0" % (T0, 65536 - 2048), "s_add_u32 s%d, s%d, s%d" % (S_XO, S_XO, T0)]


def wload_setup(a, lg, split, pol):
    I = a.I
    t0, t1 = 24, 25
    I("v_bfe_u32 v%d, v0, 4, 3" % t0)
    I("v_lshlrev_b32 v%d, 1, v%d" % (t0, t0))
    I("v_and_b32 v%d, 15, v0" % t1)
    I("v_xor_b32 v%d, v%d, v%d" % (t0, t0, t1))
    I("v_lshlrev_b32 v%d, 4, v%d" % (V_DW, t0))
    for bit, n, sh in ((4, 2, 0), (6, 1, 2 if split else 3), (7, 1, 4 if split else 2)):
        I("v_bfe_u32 v%d, v0, %d, %d" % (t0, bit, n))
        I("v_lshl_add_u32 v%d, v%d, %d, v%d" % (V_DW, t0, lg + sh, V_DW))
    I("s_and_b32 s%d, s%d, 1" % (T0, S_WV))
    I("s_lshl_b32 s%d, s%d, 11" % (T1, T0))
    I("s_lshr_b32 s%d, s%d, 1" % (T0, S_WV))
    I("s_lshl_b32 s%d, s%d, 10" % (T0, T0))
    I("s_add_u32 s32, s%d, s%d" % (T0, T1))

    def wunit(u):
        for m in range(8):
            row = 32 * (m >> 1) + 8 * (m & 1) if split else 16 * m
            I("s_add_u32 m0, s32, %d" % ((u % 5) * 32768 + m * 4096))
            I("s_add_u32 s%d, s%d, 0x%x" % (T1, S_WO, (u * 128 + row) << lg))
            I("buffer_load_dwordx4 v%d, %s, s%d offen%s lds" % (V_DW, srd_s(SW), T1, pol))
    return wunit


def wread_setup(a, s_tx=None):
    I = a.I
    t0, t1 = 24, 25
    I("v_bfe_u32 v%d, v0, 2, 3" % t0)
    I("v_lshrrev_b32 v%d, 6, v0" % t1)
    I("v_lshlrev_b32 v%d, 1, v%d" % (t1, t1))
    I("v_xor_b32 v%d, v%d, v%d" % (t0, t0, t1))
    I("v_lshlrev_b32 v%d, 5, v%d" % (V_RW, t0))
    for bit, n, sh in ((0, 2, 3), (2, 2, 8), (4, 2, 11)):
        I("v_bfe_u32 v%d, v0, %d, %d" % (t0, bit, n))
        I("v_lshl_add_u32 v%d, v%d, %d, v%d" % (V_RW, t0, sh, V_RW))
    if s_tx is not None:
        I("v_xor_b32 v%d, s%d, v%d" % (V_RW, s_tx, V_RW))
    I("v_xor_b32 v%d, 32, v%d" % (V_RW + 1, V_RW))


def wread(a, u):
    I = a.I
    d = {2: 65536, 4: 65536, 5: -131072, 7: 65536}.get(u)
    if d:
        for t in range(2):
            I("v_add_u32 v%d, 0x%x, v%d" % (V_RW + t, d & 0xffffffff, V_RW + t))
    for ks in range(4):
        for t in range(2):
            d = ((u * 4 + ks) * 2 + t) * 4
            for hf in range(2):
                I("ds_read_b64_tr_b16 a[%d:%d], v%d offset:%d" % (d + 2 * hf, d + 2 * hf + 1, V_RW + t, ((u % 5) & 1) * 32768 + ks * 8192 + hf * 1024))
        if ks == 1:
            I("s_waitcnt lgkmcnt(0)")
    I("s_waitcnt lgkmcnt(0)")


def program(a, st):
    I = a.I
    t0, t1 = 24, 25
    a.C("======== K / V projection (weights stationary)")
    I("s_cmp_eq_u32 s%d, 3" % S_XW)
    I("s_cselect_b64 s[%d:%d], s[%d:%d], s[%d:%d]" % (SW, SW + 1, ptr(B_WV), ptr(B_WV) + 1, ptr(B_WK), ptr(B_WK) + 1))
    I("s_cmp_eq_u32 s%d, 1" % S_XW)
    I("s_cselect_b64 s[%d:%d], s[%d:%d], s[%d:%d]" % (SW, SW + 1, ptr(B_WQ), ptr(B_WQ) + 1, SW, SW + 1))
    I("s_and_b32 s%d, s%d, 0xffff" % (SW + 1, SW + 1))
    I("s_mov_b32 s%d, 0x%x" % (SW + 2, 8 * MB))
    I("s_mov_b32 s%d, 0x00020000" % (SW + 3))
    I("s_lshl_b32 s%d, s%d, 8" % (S_WO, S_RK))
    wunit = wload_setup(a, 13, False, " nt")
    wunit(0)
    a.srd(SX, ptr(B_X), 0, 4 * MB)
    a.srd(SO, ptr(D_WS), 0, X_PXF + 32 * MB)
    I("v_and_b32 v%d, 63, v0" % t0)
    I("v_lshlrev_b32 v%d, 4, v%d" % (V_LIN, t0))
    I("v_add_u32 v%d, 4096, v%d" % (V_L4, V_LIN))
    I("v_lshlrev_b32 v%d, 7, v%d" % (V_TCH, t0))
    I("s_lshl_b32 s%d, s%d, 13" % (S_TO, S_RK))
    I("s_and_b32 s%d, s%d, 1" % (T0, S_WV))
    I("s_lshl_b32 s%d, s%d, 18" % (T0, T0))
    I("s_add_u32 s%d, s%d, s%d" % (T0, T0, S_TO))
    I("buffer_load_dword v13, v%d, %s, s%d offen" % (V_TCH, srd_s(SX), T0))
    I("s_add_u32 s%d, s%d, 0x80000" % (S_TO, S_TO))
    for u in range(1, 5):
        wunit(u)
    I("v_bfe_u32 v%d, v0, 4, 3" % t0)
    I("v_and_b32 v%d, 7, v0" % t1)
    I("v_xor_b32 v%d, v%d, v%d" % (t0, t0, t1))
    I("v_lshlrev_b32 v%d, 4, v%d" % (V_DX, t0))
    I("v_lshrrev_b32 v%d, 3, v0" % t0)
    I("v_lshl_add_u32 v%d, v%d, 11, v%d" % (V_DX, t0, V_DX))
    I("v_bfe_u32 v%d, v0, 1, 3" % t0)
    I("v_bfe_u32 v%d, v0, 4, 2" % t1)
    I("v_xor_b32 v%d, v%d, v%d" % (t0, t0, t1))
    I("v_lshlrev_b32 v%d, 4, v%d" % (V_RX, t0))
    I("v_and_b32 v%d, 15, v0" % t1)
    I("v_lshl_add_u32 v%d, v%d, 7, v%d" % (V_RX, t1, V_RX))
    I("v_add_u32 v%d, %d, v%d" % (V_RX, 3 * 32768, V_RX))
    I("v_xor_b32 v%d, 64, v%d" % (V_RX + 1, V_RX))
    wread_setup(a)
    for i in range(4):
        I("v_mov_b32 v%d, -1" % (V_ONE + i))
    I("s_lshl_b32 s%d, s%d, 10" % (S_M, S_WV))
    I("s_add_u32 s%d, s%d, %d" % (S_M, S_M, 3 * 32768))
    I("s_mov_b32 s%d, %d" % (S_R, 3 * 32768))
    I("s_mov_b32 s%d, 0" % S_XO)
    I("s_mov_b32 s%d, 32768" % S_C32)
    I("s_lshl_b32 s%d, s%d, 16" % (S_KB, S_RK))
    I("s_cmp_eq_u32 s%d, 3" % S_XW)
    I("s_cselect_b32 s%d, 11, 10" % T0)
    I("s_cselect_b32 s%d, 0x4000, 0" % T1)
    I("s_lshl_b32 s%d, s%d, s%d" % (T0, S_WV, T0))
    I("s_add_u32 s%d, s%d, s%d" % (S_KB, S_KB, T0))
    I("s_add_u32 s%d, s%d, s%d" % (S_KB, S_KB, T1))
    I("s_lshl_b32 s%d, s%d, 14" % (S_PB, S_RK))
    I("s_lshr_b32 s%d, s%d, 2" % (T1, T1))
    I("s_add_u32 s%d, s%d, s%d" % (S_PB, S_PB, T1))
    I("s_lshl_b32 s%d, s%d, 10" % (T0, S_WV))
    I("s_add_u32 s%d, s%d, s%d" % (S_PB, S_PB, T0))
    I("s_add_u32 s%d, s%d, 0x%x" % (S_PB, S_PB, X_PXF))
    I("s_cmp_eq_u32 s%d, 1" % S_XW)
    I("s_cselect_b32 s%d, 0x%x, s%d" % (S_PB, X_PXF + 32 * MB, S_PB))
    I("s_cselect_b32 s%d, 0x8000, 0" % T0)
    I("s_add_u32 s%d, s%d, s%d" % (S_KB, S_KB, T0))
    for u in range(8):
        I("s_waitcnt vmcnt(%d)" % (33 if u == 0 else 24))
        I("s_barrier")
        if u == 0:
            st(1)
        if u >= 1:
            if u + 4 < 8:
                wunit(u + 4)
            elif u < 7:
                for m, l in xdma():
                    I(m)
                    I("s_nop 0")
                    I(l)
                for l in XADV + ring(S_M):
                    I(l)
        if u == 3:
            I("v_mov_b32 v%d, %d" % (t0, D_CAL * 4))
            I("global_load_dword v%d, v%d, s[%d:%d] sc1" % (V_POLV, t0, ptr(D_DBG), ptr(D_DBG) + 1))
        wread(a, u)
    I("s_waitcnt vmcnt(16)")
    I("s_barrier")
    get_polarity(a, V_POLV, t0)
    I("s_xor_b32 s%d, s%d, s%d" % (S_PB, S_PB, S_POL))
    I("s_xor_b32 s%d, s%d, s%d" % (S_KB, S_KB, S_POL))
    I("s_mov_b32 s%d, 0" % S_SEG)
    I("s_mov_b32 s%d, 0" % (SO + 2))
    st(2)
    lv, le = a.uid("L_kvv"), a.uid("L_kve")
    I("s_cmp_eq_u32 s%d, 3" % S_XW)
    I("s_cbranch_scc1 %s" % lv)
    stream(a, 'k', le)
    a.L(lv)
    stream(a, 'v', le)
    a.L(le)
    st(3)


def stream(a, kind, end):
    I = a.I
    nm = "kvs" + kind
    D = 3
    rd = lambda ks, tau: "ds_read_b128 v[%d:%d], v%d offset:%d" % (V_F + (ks & 3) * 8 + tau * 4, V_F + (ks & 3) * 8 + tau * 4 + 3, V_RX + (ks & 1), ((ks & 15) >> 1) * 4096 + tau * 2048)
    idx = (lambda tau, t: tau * 2 + t) if kind == 'k' else (lambda tau, t: t * 2 + tau)
    cvt = ["v_cvt_pk_bf16_f32 v%d, v%d, v%d" % (V_PK + i, V_OUT + 2 * i, V_OUT + 2 * i + 1) for i in range(8)]
    addr = ["s_lshl_b32 s%d, s%d, 21" % (S_KO, S_SEG), "s_lshl_b32 s%d, s%d, 13" % (T2, S_SEG), "s_and_b32 s%d, s%d, 0x2000" % (T2, T2),
            "s_xor_b32 s%d, s%d, s%d" % (T2, T2, S_KB), "s_add_u32 s%d, s%d, s%d" % (S_KO, S_KO, T2),
            "s_lshl_b32 s%d, s%d, 19" % (S_PO, S_SEG), "s_lshl_b32 s%d, s%d, 11" % (T2, S_SEG), "s_and_b32 s%d, s%d, 0x2000" % (T2, T2),
            "s_xor_b32 s%d, s%d, s%d" % (T2, T2, S_PB), "s_add_u32 s%d, s%d, s%d" % (S_PO, S_PO, T2)]
    stores = ["buffer_store_dwordx4 v[%d:%d], v%d, %s, s%d offen sc1" % (V_PK, V_PK + 3, V_LIN, srd_s(SO), S_KO),
              "buffer_store_dwordx4 v[%d:%d], v%d, %s, s%d offen%s sc1" % (V_PK + 4, V_PK + 7, V_L4 if kind == 'k' else V_LIN, srd_s(SO), S_KO, "" if kind == 'k' else " offset:1024"),
              "buffer_store_dwordx4 v[%d:%d], v%d, %s, s%d offen sc1" % (V_ONE, V_ONE + 3, V_LIN, srd_s(SO), S_PO)]
    radv = [["s_cmp_ge_u32 s%d, %d" % (S_R, LDS_END - 32768), "s_cselect_b32 s%d, 0x%x, s%d" % (S_D, (-131072) & 0xffffffff, S_C32), "s_add_u32 s%d, s%d, s%d" % (S_R, S_R, S_D)],
            ["v_add_u32 v%d, s%d, v%d" % (V_RX, S_D, V_RX)], ["v_add_u32 v%d, s%d, v%d" % (V_RX + 1, S_D, V_RX + 1)]]
    for ks in range(D):
        for tau in range(2):
            I(rd(ks, tau))
    items = []
    add = lambda s, ls: items.append((s, ls, False))
    E = lambda k, d: int(os.environ.get(k, str(d)))
    add(3, cvt)
    for i, l in enumerate(stores):
        add(E("KST0", 8) + E("KSTD", 4) * i, [l])
    add(0, ["buffer_load_dword v13, v%d, %s, s%d offen" % (V_TCH, srd_s(SX), S_TC)])
    mk = sum(1 << g for g in GROUP_END if g >= 3) | (1 << 62)
    for un in range(2):
        if un:
            add(64, ["s_mov_b32 s%d, 0x%x" % (SO + 2, X_PXF + 32 * MB)])
        for q, (m, l) in enumerate(xdma()):
            add(un * 64 + (22, 2)[un] + (3, 5)[un] * q, [m, l])
            if q == 6:
                add(0, radv[0])
        add(un * 64 + 4 * (14 - D) + 2, radv[1])
        add(un * 64 + 4 * (15 - D) + 2, radv[2])
        if un == 0:
            add(0, ["s_cmp_lt_u32 s%d, 4" % S_SEG])
        add(un * 64 + 52, XADV + ring(S_M))
    add(0, ["s_add_u32 s%d, s%d, 1" % (S_SEG, S_SEG), "s_sub_u32 s%d, s%d, 2" % (T1, S_SEG), "s_bitcmp1_b64 s[%d:%d], s%d" % (S_MK, S_MK + 1, T1)])
    pre = addr + ["s_add_u32 s%d, s%d, 0x10000" % (S_TO, S_TO), "s_andn2_b32 s%d, 3, s%d" % (T1, S_SEG), "s_or_b32 s%d, s%d, s%d" % (T1, T1, S_WV),
                  "s_cselect_b32 s%d, 0x400000, s%d" % (S_TC, S_TO)]
    k = next(i for i, it in enumerate(items) if it[0] == 64)
    grp = [pre[0:3], pre[3:6], pre[6:8], pre[8:10], pre[10:]]
    for n, g in enumerate(grp):
        items.insert(k + 2 + 2 * n, (0, g, False))
    fill = place(items, [(1, 1, 2, 1)[i & 3] for i in range(128)])
    pos = {l: k for k in fill for l in fill[k]}
    assert 46 <= min(k for k in fill if radv[1][0] in fill[k]) < 52 and pos["s_cmp_lt_u32 s%d, 4" % S_SEG] < 52
    assert max(k for k in fill if radv[2][0] in fill[k]) < 64 + 56 and max(k for k in fill if radv[1][0] in fill[k]) < 64 + 52
    I("s_mov_b32 s%d, 0x%x" % (S_MK, mk & 0xffffffff))
    I("s_mov_b32 s%d, 0x%x" % (S_MK + 1, (mk >> 32) & 0x7fffffff))
    I("s_cmp_eq_u32 s%d, 0" % S_WV)
    I("s_cselect_b32 s%d, s%d, 0x400000" % (S_TC, S_TO))
    I("s_mov_b32 s%d, 0" % S_KO)
    I("s_mov_b32 s%d, 0" % S_PO)
    a.L(nm)
    XP = os.environ.get("XP", "")
    for k in fill:
        if "kvnost" in XP:
            fill[k] = [l for l in fill[k] if not l.startswith("buffer_store")]
        if "kvnodma" in XP:
            fill[k] = [l for l in fill[k] if not l.endswith(" lds")]
        if "kvnotch" in XP:
            fill[k] = [l for l in fill[k] if not l.startswith("buffer_load_dword v13")]
    for ks in range(32):
        if ks % 16 == 16 - D:
            if ks < 16:
                I("s_waitcnt vmcnt(20)")
                I("s_cbranch_scc1 %s_early" % nm)
                I("s_barrier")
                a.L(nm + "_mid")
            else:
                I("s_waitcnt vmcnt(%d)" % E("KVW", 16))
                I("s_barrier")
        I("s_waitcnt lgkmcnt(%d)" % (2 * D - 2))
        k = 0
        for tau, t in ((0, 0), (0, 1), (1, 1), (1, 0)):
            c = V_ACC + idx(tau, t) * 4
            d = V_OUT + idx(tau, t) * 4 if ks == 31 else c
            w, x = "a[%d:%d]" % ((ks * 2 + t) * 4, (ks * 2 + t) * 4 + 3), "v[%d:%d]" % (V_F + (ks & 3) * 8 + tau * 4, V_F + (ks & 3) * 8 + tau * 4 + 3)
            I("v_mfma_f32_16x16x32_bf16 v[%d:%d], %s, %s, %s" % (d, d + 3, w if kind == 'k' else x, x if kind == 'k' else w, "0" if ks == 0 else "v[%d:%d]" % (c, c + 3)))
            if k < 2 and "kvnord" not in XP:
                I(rd(ks + D, k))
            for l in fill.get(ks * 4 + k, []):
                I(l)
            k += 1
    I("s_cbranch_scc0 %s" % nm)
    I("s_cmp_eq_u32 s%d, 64" % S_SEG)
    I("s_cbranch_scc1 %s_fin" % nm)
    I("s_cmp_lg_u32 s%d, 0" % S_WV)
    I("s_cbranch_scc1 %s" % nm)
    group_word(a, T1, T0)
    signal_lines(a, T0)
    I("s_branch %s" % nm)
    a.L(nm + "_early")
    I("s_waitcnt vmcnt(8)")
    I("s_barrier")
    I("s_cmp_eq_u32 s%d, 0" % S_SEG)
    I("s_cbranch_scc1 %s_mid" % nm)
    I("s_cmp_lg_u32 s%d, 0" % S_WV)
    I("s_cbranch_scc1 %s_mid" % nm)
    I("s_lshl_b32 s%d, s%d, 2" % (T0, S_SEG))
    I("s_add_u32 s%d, s%d, %d" % (T0, T0, D_EV * 4 - 4))
    signal_lines(a, T0)
    I("s_branch %s_mid" % nm)
    a.L(nm + "_fin")
    for l in ["s_nop 7"] + cvt + stores:
        I(l)
    I("s_waitcnt vmcnt(0) lgkmcnt(0)")
    I("s_barrier")
    I("s_cmp_lg_u32 s%d, 0" % S_WV)
    I("s_cbranch_scc1 %s" % end)
    I("s_mov_b32 s%d, %d" % (T0, (D_EV + len(GROUP_END) - 1) * 4))
    signal_lines(a, T0)
    I("s_branch %s" % end)


def group_word(a, s_seg, d, p0=T2):
    I = a.I
    m = sum(1 << g for g in GROUP_END)
    I("s_bfm_b64 s[%d:%d], s%d, 0" % (p0, p0 + 1, s_seg))
    I("s_and_b32 s%d, s%d, 0x%x" % (p0, p0, m & 0xffffffff))
    I("s_and_b32 s%d, s%d, 0x%x" % (p0 + 1, p0 + 1, m >> 32))
    I("s_bcnt1_i32_b64 s%d, s[%d:%d]" % (d, p0, p0 + 1))
    I("s_lshl_b32 s%d, s%d, 2" % (d, d))
    I("s_add_u32 s%d, s%d, %d" % (d, d, D_EV * 4))
```

```python
from asmlib import *
from L2 import *
import gemm2 as G
from gemm2 import S_XW, S_RK, S_WV, S_POL, T0, T1, T2, T3, srd_s, SPIN_LIMIT, LDS_END
import kvs
import os

E = lambda k, d: int(os.environ.get(k, str(d)))
PSTR = E("PSTR", 3)
PFIRST = [int(x) for x in os.environ.get("PFIRST", "0,0,1,2").split(",")]
PCNT = [int(x) for x in os.environ.get("PCNT", "0,20,20,20").split(",")]
TLIST = [[int(y) for y in x.split(",") if y] for x in os.environ.get("TLIST", "60,61,63;62;;").split(";")]
assert sorted([PFIRST[x] + PSTR * i for x in range(4) for i in range(PCNT[x])] + sum(TLIST, [])) == list(range(64))
SWS, SOUT = 8, 16
W = srd_s(SWS)
S_M, S_R, S_D, S_OA, S_PS, S_OUTO, S_TICK, S_FL = 20, 21, 22, 23, 24, 25, 26, 27
S_C32, S_SPIN, S_HB, S_SEG, S_NEED, S_LASTS, S_TL, S_TA, S_TD, S_CNT, S_FIN = 29, 30, 31, 33, 34, 35, 36, 37, 38, 39, 40
V_LIN, V_L4, V_RO, V_TCH, V_OA, V_PA, V_PT, V_PV, V_PS, V_PL, V_Z, V_TK = 1, 2, 4, 10, 15, 16, 18, 19, 20, 23, 11, 12
V_ACC, V_OUT, V_H, V_F, V_RL = 32, 48, 64, 72, 104


class VM:
    def __init__(self, a, prev=()):
        self.a, self.seq, self.prev = a, [], list(prev)

    def I(self, l):
        if "@wait " in l:
            n = 63
            for tag in l.split("@wait ")[1].split():
                back = tag.count("<")
                tag = tag.rstrip("<")
                allq = self.prev + self.seq
                idx = [i for i, t in enumerate(allq) if t == tag and (i + 1 == len(allq) or allq[i + 1] != tag)]
                if len(idx) > back:
                    n = min(n, len(allq) - 1 - idx[-1 - back])
            self.a.I("s_waitcnt vmcnt(%d)" % n)
            return
        if l.endswith(":"):
            self.a.raw(l)
            return
        tag = None
        if " #" in l:
            l, tag = l.split(" #")
        if tag and tag in os.environ.get("SXP", "").split(","):
            return
        if l.startswith(("buffer_", "global_")):
            self.seq.append(tag)
        self.a.I(l)


def o_dma(tag):
    out = []
    for hf in range(2):
        out += ["s_add_u32 m0, s%d, %d" % (S_M, hf * 4096), "s_nop 0"]
        out += ["buffer_load_dwordx4 v%d, %s, s%d offen offset:%d lds #%s" % ((V_LIN, V_L4)[hf], W, S_OA, i * 1024, tag) for i in range(4)]
    return out


def seg_addr(s):
    return ["s_lshl_b32 s%d, s%d, 13" % (T1, s), "s_and_b32 s%d, s%d, 0x2000" % (T1, T1), "s_xor_b32 s%d, s%d, s%d" % (T1, T1, S_HB),
            "s_lshl_b32 s%d, s%d, 21" % (S_OA, s), "s_add_u32 s%d, s%d, s%d" % (S_OA, S_OA, T1),
            "s_cmp_gt_u32 s%d, s%d" % (s, S_LASTS), "s_cselect_b32 s%d, 0x%x, s%d" % (S_OA, WS_END, S_OA)]


HALF2 = ["s_add_u32 s%d, s%d, 0x40000" % (S_OA, S_OA)]
PST = ["buffer_store_dwordx4 v[%d:%d], v%d, %s, s%d offen #pst" % (V_OUT + 4 * e, V_OUT + 4 * e + 3, V_PS + e, W, S_PS) for e in range(3)]
RED = ["buffer_load_dwordx4 v[%d:%d], v%d, %s, s%d offen offset:%d sc1 #red" % (V_RL + 4 * e, V_RL + 4 * e + 3, V_PL, W, S_PS, e * 1024) for e in range(3)]


def red_fin(hold):
    r = V_RL
    pa = lambda d, x, y: "v_pk_add_f32 v[%d:%d], v[%d:%d], v[%d:%d]" % (d, d + 1, x, x + 1, y, y + 1)
    o = [pa(r, r, hold), pa(r + 2, r + 2, hold + 2), pa(r + 4, r + 4, r + 8), pa(r + 6, r + 6, r + 10), pa(r, r, r + 4), pa(r + 2, r + 2, r + 6)]
    o += ["v_cvt_pk_bf16_f32 v%d, 0, v%d" % (r + i, r + i) for i in range(4)]
    o += ["buffer_store_dwordx4 v[%d:%d], v%d, %s, s%d offen #out" % (r, r + 3, V_OA, srd_s(SOUT), S_OUTO)]
    return o


PUBLISH = ["s_add_u32 s%d, s%d, 1" % (S_TICK, S_TICK), "v_mov_b32 v%d, s%d" % (V_TK, S_TICK),
           "buffer_store_dword v%d, v%d, %s, s%d offen #fl" % (V_TK, V_Z, W, S_FL)]
POLL = "global_load_dword v%d, v[%d:%d], off sc1 #poll" % (V_PV, V_PA, V_PA + 1)
TARGETS = ["v_mov_b32 v%d, s%d" % (V_PT, S_TICK), "v_writelane_b32 v%d, s%d, 32" % (V_PT, S_NEED), "v_writelane_b32 v%d, s%d, 33" % (V_PT, S_FIN)]


def poll_loop(a, sleep=1):
    I = a.I
    lp, ok = a.uid("L_sp"), a.uid("L_spok")
    a.L(lp)
    I(POLL.split(" #")[0])
    I("s_add_u32 s%d, s%d, 1" % (S_SPIN, S_SPIN))
    I("s_cmp_gt_u32 s%d, 0x%x" % (S_SPIN, SPIN_LIMIT))
    I("s_cbranch_scc1 %s" % G.ABORT[0])
    I("s_waitcnt vmcnt(0)")
    I("v_cmp_lt_u32 vcc, v%d, v%d" % (V_PV, V_PT))
    I("s_cbranch_vccz %s" % ok)
    if sleep:
        I("s_sleep %d" % sleep)
    I("s_branch %s" % lp)
    a.L(ok)


D = 3


def rd(ks, tl, lin=False):
    o = (ks >> 2) * 8192 if lin else ((ks & 15) >> 2) * 8192
    return "ds_read_b128 v[%d:%d], v%d offset:%d" % (V_F + (ks & 3) * 8 + tl * 4, V_F + (ks & 3) * 8 + tl * 4 + 3, V_RO + tl, o + (ks & 3) * 1024)


def op_body(v, fill, bars, cyc):
    for ks in range(32):
        for l in bars.get(ks, []):
            v.I(l)
        v.I("s_waitcnt lgkmcnt(%d)" % (2 * D - 2 if cyc else min(2 * D - 2, 2 * (31 - ks))))
        k = 0
        for tl, t in ((0, 0), (0, 1), (1, 1), (1, 0)):
            c = V_ACC + (tl * 2 + t) * 4
            d = V_OUT + (tl * 2 + t) * 4 if ks == 31 else c
            w = (ks * 2 + t) * 4
            x = V_F + (ks & 3) * 8 + tl * 4
            v.I("v_mfma_f32_16x16x32_bf16 v[%d:%d], a[%d:%d], v[%d:%d], %s" % (d, d + 3, w, w + 3, x, x + 3, "0" if ks == 0 else "v[%d:%d]" % (c, c + 3)))
            if k < 2 and (cyc or ks + D < 32):
                v.I(rd(ks + D, k, not cyc))
            for l in fill.get(ks * 4 + k, []):
                v.I(l)
            k += 1


def table(a, d, vals, bits=8):
    a.I("s_mul_i32 s%d, s%d, %d" % (d, S_XW, bits))
    a.I("s_lshr_b32 s%d, 0x%x, s%d" % (d, sum(x << (bits * i) for i, x in enumerate(vals)), d))
    a.I("s_and_b32 s%d, s%d, %d" % (d, d, (1 << bits) - 1))


def ring_reset(a):
    I = a.I
    I("s_lshl_b32 s%d, s%d, 13" % (S_M, S_WV))
    I("s_mov_b32 s%d, 0" % S_R)
    I("s_lshr_b32 s%d, s%d, 4" % (T0, S_RK))
    I("s_lshl_b32 s%d, s%d, 12" % (T0, T0))
    I("v_add_u32 v%d, s%d, v%d" % (V_RO + 1, T0, V_LIN))
    I("v_xor_b32 v%d, 4096, v%d" % (V_RO, V_RO + 1))


def setup(a):
    I = a.I
    t0, t1 = 24, 25
    a.srd(SWS, ptr(D_WS), 0, WS_END)
    a.srd(SOUT, ptr(D_OUT), 0, 16 * MB)
    I("v_and_b32 v%d, 63, v0" % t0)
    I("v_lshlrev_b32 v%d, 4, v%d" % (V_LIN, t0))
    I("v_add_u32 v%d, 4096, v%d" % (V_L4, V_LIN))
    I("v_lshlrev_b32 v%d, 7, v%d" % (V_TCH, t0))
    I("v_mov_b32 v%d, 0" % V_Z)
    I("s_lshl_b32 s%d, s%d, 8" % (T0, S_XW))
    I("s_add_u32 s%d, s%d, 0x%x" % (T0, T0, X_SF))
    I("s_lshl2_add_u32 s%d, s%d, s%d" % (S_FL, S_RK, T0))
    I("s_and_b32 s%d, s%d, 7" % (S_TD, S_RK))
    I("s_lshl_b32 s%d, s%d, 16" % (S_TD, S_TD))
    I("s_cmp_eq_u32 s%d, 0" % S_WV)
    I("s_cselect_b32 s%d, s%d, 0x%x" % (S_FL, S_FL, WS_END))
    I("s_cselect_b32 s%d, s%d, 0x%x" % (S_TD, S_TD, WS_END))
    I("s_add_u32 s%d, s%d, s%d" % (T0, T0, ptr(D_WS)))
    I("s_addc_u32 s%d, s%d, 0" % (T1, ptr(D_WS) + 1))
    I("v_and_b32 v%d, 31, v0" % t1)
    I("v_lshlrev_b32 v%d, 2, v%d" % (t1, t1))
    I("v_add_u32 v%d, s%d, v%d" % (V_PA, T0, t1))
    I("v_mov_b32 v%d, s%d" % (V_PA + 1, T1))
    I("s_add_u32 s%d, s%d, %d" % (T0, ptr(D_DBG), D_PROG * 4))
    I("s_addc_u32 s%d, s%d, 0" % (T1, ptr(D_DBG) + 1))
    I("v_writelane_b32 v%d, s%d, 32" % (V_PA, T0))
    I("v_writelane_b32 v%d, s%d, 32" % (V_PA + 1, T1))
    I("buffer_store_dword v%d, v%d, %s, s%d offen" % (V_Z, V_Z, W, S_FL))
    for r in (S_TICK, S_SPIN, S_FIN):
        I("s_mov_b32 s%d, 0" % r)
    I("s_mov_b32 s%d, 32768" % S_C32)
    I("v_and_b32 v%d, 15, v0" % t0)
    I("v_lshlrev_b32 v%d, 13, v%d" % (V_OA, t0))
    I("v_bfe_u32 v%d, v0, 4, 2" % t0)
    I("v_lshl_add_u32 v%d, v%d, 4, v%d" % (V_OA, t0, V_OA))
    I("s_lshr_b32 s%d, s%d, 4" % (T0, S_RK))
    I("s_lshl_b32 s%d, s%d, 17" % (T0, T0))
    I("s_and_b32 s%d, s%d, 7" % (T1, S_RK))
    I("s_lshl_b32 s%d, s%d, 9" % (T1, T1))
    I("s_add_u32 s%d, s%d, s%d" % (T0, T0, T1))
    I("s_lshl_b32 s%d, s%d, 7" % (T1, S_WV))
    I("s_add_u32 s%d, s%d, s%d" % (T0, T0, T1))
    I("s_and_b32 s%d, s%d, 8" % (T1, S_RK))
    I("s_lshl_b32 s%d, s%d, 3" % (T1, T1))
    I("s_add_u32 s%d, s%d, s%d" % (T0, T0, T1))
    I("s_add_u32 s%d, s%d, 4096" % (T0, T0))
    I("v_add_u32 v%d, s%d, v%d" % (V_OA, T0, V_OA))
    I("s_lshl_b32 s%d, s%d, 12" % (T1, S_WV))
    for e in range(4):
        I("s_xor_b32 s%d, s%d, %d" % (T0, S_RK, (e ^ 3) << 3))
        I("s_lshl_b32 s%d, s%d, 14" % (T0, T0))
        I("s_add_u32 s%d, s%d, s%d" % (T0, T0, T1))
        I("s_add_u32 s%d, s%d, %d" % (T0, T0, (e % 3) * 1024))
        I("v_add_u32 v%d, s%d, v%d" % (V_PS + e, T0, V_LIN))
    I("s_lshl_b32 s%d, s%d, 20" % (S_PS, S_XW))
    I("s_add_u32 s%d, s%d, 0x%x" % (S_PS, S_PS, X_SP))
    I("s_and_b32 s%d, s%d, 24" % (T0, S_RK))
    I("s_add_u32 s%d, s%d, s%d" % (T0, T0, S_WV))
    I("s_lshl_b32 s%d, s%d, 16" % (S_HB, T0))
    I("s_add_u32 s%d, s%d, 0xc000" % (S_HB, S_HB))
    I("s_add_u32 s%d, s%d, s%d" % (S_HB, S_HB, S_POL))
    table(a, S_SEG, PFIRST)
    table(a, S_CNT, PCNT)
    for x in range(4):
        I("s_cmp_eq_u32 s%d, %d" % (S_XW, x))
        I("s_cmov_b32 s%d, 0x%x" % (S_TL, sum(s << (8 * i) for i, s in enumerate(TLIST[x]))))


def plain(a, lines):
    for l in lines:
        a.I(l.split(" #")[0])


def sync(a):
    a.I("s_waitcnt vmcnt(0)")
    a.I("s_barrier")
    plain(a, PUBLISH + TARGETS)
    poll_loop(a, 0)


def program(a, wstamp):
    I = a.I
    st = lambda i: wstamp(a, i, 250)
    a.C("======== output projection")
    I("s_waitcnt vmcnt(0) lgkmcnt(0)")
    I("s_barrier")
    a.srd(kvs.SW, ptr(B_WO), 0, 8 * MB)
    I("s_lshr_b32 s%d, s%d, 3" % (T0, S_RK))
    I("s_lshl_b32 s%d, s%d, 21" % (kvs.S_WO, T0))
    I("s_and_b32 s%d, s%d, 7" % (T0, S_RK))
    I("s_lshl_b32 s%d, s%d, 8" % (T0, T0))
    I("s_add_u32 s%d, s%d, s%d" % (kvs.S_WO, kvs.S_WO, T0))
    wunit = kvs.wload_setup(a, 11, True, " nt" if E("SEGNT", 1) else "")
    wunit(0)
    setup(a)
    for u in range(1, 5):
        wunit(u)
    I("s_andn2_b32 s%d, 8, s%d" % (T0, S_RK))
    I("s_lshl_b32 s%d, s%d, 2" % (T0, T0))
    kvs.wread_setup(a, T0)
    for u in range(8):
        I("s_waitcnt vmcnt(%d)" % (32 if u == 0 else 8 * min(3, 7 - u)))
        I("s_barrier")
        if u == 0:
            lab = a.uid("L_si")
            I("s_cmp_lg_u32 s%d, 0" % S_WV)
            I("s_cbranch_scc1 %s" % lab)
            I("s_lshl_b32 s%d, s%d, 2" % (T0, S_XW))
            I("s_add_u32 s%d, s%d, %d" % (T0, T0, D_SI * 4))
            I("s_mov_b32 s%d, 1" % T1)
            I("s_atomic_add s%d, s[%d:%d], s%d" % (T1, ptr(D_DBG), ptr(D_DBG) + 1, T0))
            a.L(lab)
        if 1 <= u < 4:
            wunit(u + 4)
        kvs.wread(a, u)
    st(13)
    lab = a.uid("L_si")
    I("s_cmp_lg_u32 s%d, 0" % S_WV)
    I("s_cbranch_scc1 %s" % lab)
    I("s_lshl_b32 s%d, s%d, 2" % (T0, S_XW))
    I("s_add_u32 s%d, s%d, %d" % (T0, T0, D_SI * 4))
    G.scalar_wait(a, T0, 32)
    a.L(lab)
    I("s_barrier")
    I("s_cmp_eq_u32 s%d, 0" % S_CNT)
    I("s_cbranch_scc1 seg_t0")
    ring_reset(a)
    I("s_sub_u32 s%d, s%d, 1" % (T0, S_CNT))
    I("s_mul_i32 s%d, s%d, %d" % (T0, T0, PSTR))
    I("s_add_u32 s%d, s%d, s%d" % (S_LASTS, S_SEG, T0))
    I("s_add_u32 s%d, s%d, %d" % (S_NEED, S_SEG, 2 * PSTR + 3))
    I("s_lshl_b32 s%d, s%d, 18" % (S_OUTO, S_SEG))
    I("s_sub_u32 s%d, s%d, 0x%x" % (S_OUTO, S_OUTO, 2 * PSTR << 18))
    I("s_mov_b32 s%d, 0" % (SOUT + 2))
    plain(a, TARGETS)
    poll_loop(a, 4)
    nxt = ["s_add_u32 s%d, s%d, %d" % (S_SEG, S_SEG, PSTR)] + seg_addr(S_SEG)
    plain(a, seg_addr(S_SEG) + o_dma("") + kvs.ring(S_M) + HALF2 + o_dma("") + kvs.ring(S_M) + nxt + o_dma("") + kvs.ring(S_M) + HALF2)
    I("s_mov_b32 s%d, 0x%x" % (S_TA, WS_END))
    I("s_waitcnt vmcnt(8)")
    I("s_barrier")
    st(14)
    for ks in range(D):
        I(rd(ks, 0))
        I(rd(ks, 1))
    radv = [["s_cmp_ge_u32 s%d, %d" % (S_R, LDS_END - 32768), "s_cselect_b32 s%d, 0x%x, s%d" % (S_D, (-131072) & 0xffffffff, S_C32), "s_add_u32 s%d, s%d, s%d" % (S_R, S_R, S_D)],
            ["v_add_u32 v%d, s%d, v%d" % (V_RO + i, S_D, V_RO + i) for i in range(2)]]

    def pbody(v):
        items = []
        add = lambda s, ls, at=False: items.append((s, ls, at))
        sp = lambda ls, s0, d: [add(s0 + d * i, [l]) for i, l in enumerate(ls)]
        nn = lambda ls: [l for l in ls if l != "s_nop 0"]
        add(0, ["@wait red"] + red_fin(V_H)[:2] + ["s_xor_b32 s%d, s%d, 0x80000" % (S_PS, S_PS)])
        sp(PST, 3, 2)
        add(0, ["buffer_load_dword v13, v%d, %s, s%d offen #tch" % (V_TCH, W, S_TA)])
        add(0, ["v_mov_b32 v%d, v%d" % (V_H + i, V_OUT + 12 + i) for i in range(4)] + red_fin(V_H)[2:])
        sp(nn(o_dma("a")), E("OD0", 24), 2)
        add(0, radv[0])
        add(50, radv[1])
        add(52, PUBLISH + kvs.ring(S_M) + nxt)
        add(0, ["s_add_u32 s%d, s%d, %d" % (S_NEED, S_NEED, PSTR), "s_add_u32 s%d, s%d, 3" % (T2, S_LASTS), "s_min_u32 s%d, s%d, s%d" % (S_NEED, S_NEED, T2)] + TARGETS)
        add(E("SP0", 72), [POLL])
        sp(nn(o_dma("b")), E("OD1", 74), 2)
        add(0, radv[0])
        add(E("SP1", 100), ["@wait poll", "v_cmp_lt_u32 vcc, v%d, v%d" % (V_PV, V_PT)], True)
        add(E("SP1", 100) + 3, ["s_cbranch_vccnz seg_pslow", "seg_pok:"], True)
        sp(RED, 0, 0)
        add(114, radv[1])
        add(116, kvs.ring(S_M) + ["s_add_u32 s%d, s%d, 0x%x" % (S_TA, S_OA, PSTR << 21)] + (["s_xor_b32 s%d, s%d, 0x2000" % (S_TA, S_TA)] if PSTR & 1 else []) +
            ["s_cmp_ge_u32 s%d, s%d" % (S_SEG, S_LASTS), "s_cselect_b32 s%d, 0x%x, s%d" % (T2, WS_END, S_TD), "s_add_u32 s%d, s%d, s%d" % (S_TA, S_TA, T2)] + HALF2 +
            ["s_add_u32 s%d, s%d, 0x%x" % (S_OUTO, S_OUTO, PSTR << 18), "s_cmp_ge_u32 s%d, 2" % S_TICK, "s_cselect_b32 s%d, 0x%x, 0" % (SOUT + 2, 16 * MB),
             "s_cmp_lt_u32 s%d, s%d" % (S_TICK, S_CNT)])
        items = [(s, [l.replace(" lds #", " lds#") for l in ls], at) for s, ls, at in items]
        fill = place(items, [(1, 1, 2, 1)[i & 3] for i in range(116)] + [2] * 12, lambda l: " lds#" in l)
        fill = {k: [l.replace(" lds#", " lds #") for l in ls] for k, ls in fill.items()}
        for k in fill:
            if radv[1][1] in fill[k]:
                assert k % 64 in (50, 51), k
        op_body(v, fill, {13: ["@wait a< pst", "s_barrier"], 29: ["@wait b<", "s_barrier"]}, True)
    v0 = VM(Asm())
    pbody(v0)
    a.L("seg_p")
    pbody(VM(a, v0.seq))
    I("s_cbranch_scc1 seg_p")
    st(16)
    I("s_xor_b32 s%d, s%d, 0x80000" % (S_PS, S_PS))
    I("s_waitcnt vmcnt(0)")
    plain(a, red_fin(V_H) + PST)
    I("s_add_u32 s%d, s%d, 0x%x" % (S_OUTO, S_OUTO, PSTR << 18))
    sync(a)
    plain(a, RED)
    I("s_waitcnt vmcnt(0) lgkmcnt(0)")
    plain(a, red_fin(V_OUT + 12))
    a.L("seg_t0")
    I("s_mov_b32 s%d, 63" % S_LASTS)
    I("s_lshr_b32 s%d, s%d, 3" % (T0, S_RK))
    I("s_lshl_b32 s%d, s%d, 8" % (T0, T0))
    I("s_add_u32 s%d, s%d, 0x%x" % (T0, T0, X_LF + 4096))
    I("s_add_u32 s%d, s%d, s%d" % (S_TA, T0, ptr(D_WS)))
    I("s_addc_u32 s%d, s%d, 0" % (S_TD, ptr(D_WS) + 1))
    a.L("seg_t")
    I("s_and_b32 s%d, s%d, 0xff" % (S_SEG, S_TL))
    I("s_cbranch_scc0 seg_end")
    I("s_lshr_b32 s%d, s%d, 8" % (S_TL, S_TL))
    ring_reset(a)
    plain(a, seg_addr(S_SEG))
    I("s_xor_b32 s%d, s%d, 0x80000" % (S_PS, S_PS))
    I("s_lshl_b32 s%d, s%d, 18" % (S_OUTO, S_SEG))
    I("s_add_u32 s%d, s%d, 3" % (S_NEED, S_SEG))
    I("s_min_u32 s%d, s%d, 64" % (S_NEED, S_NEED))
    plain(a, TARGETS)
    poll_loop(a, 2)
    lab = a.uid("L_tf")
    I("s_cmp_lt_u32 s%d, 62" % S_SEG)
    I("s_cbranch_scc1 %s" % lab)
    I("v_writelane_b32 v%d, s%d, 33" % (V_PA, S_TA))
    I("v_writelane_b32 v%d, s%d, 33" % (V_PA + 1, S_TD))
    I("s_mov_b32 s%d, 32" % S_FIN)
    plain(a, TARGETS)
    poll_loop(a, 0)
    a.L(lab)
    v = VM(a)
    for l in o_dma("a") + kvs.ring(S_M) + HALF2 + o_dma("b") + ["@wait a", "s_barrier"] + [rd(ks, tl) for ks in range(D) for tl in range(2)]:
        v.I(l)
    op_body(v, {}, {13: ["@wait b", "s_barrier"]}, False)
    I("s_nop 7")
    plain(a, PST)
    sync(a)
    plain(a, RED)
    I("s_waitcnt vmcnt(0)")
    plain(a, red_fin(V_OUT + 12))
    I("s_branch seg_t")
    a.L("seg_end")
    st(15)
    I("s_endpgm")
    a.L("seg_pslow")
    poll_loop(a, 2)
    I("s_branch seg_pok")
```

```python
from asmlib import *
from L2 import *
import gemm2 as G
from gemm2 import *
import os

WSTAMP = [lambda a, i: None]


def ws_srd(a, d, off, size):
    a.srd(d, ptr(D_WS), off, size)


def next_proj(a, wsel, s_ct, s_tt, two=False):
    I = a.I
    I("s_lshl_b32 s%d, s%d, 19" % (T0, s_tt))
    next_op(a, NP, ptr(B_X), "s%d" % T0, 4 * MB, *PAT_D['nat'])
    I("s_lshl_b32 s%d, s%d, 9" % (T0, s_ct))
    next_op(a, NS, ptr(B_WK if wsel == 'kv' else wsel), "s%d" % T0, 8 * MB, 4 * 8192, 32 * 8192, 64 * 8192)
    if wsel == 'kv':
        I("s_cmp_ge_u32 s%d, 2" % S_XW)
        I("s_cselect_b32 s%d, s%d, s%d" % (NS, ptr(B_WV), ptr(B_WK)))
        I("s_cselect_b32 s%d, s%d, s%d" % (NS + 1, ptr(B_WV) + 1, ptr(B_WK) + 1))
        I("s_and_b32 s%d, s%d, 0xffff" % (NS + 1, NS + 1))
    pat_n(a, V_NDP, 'nat')
    pat_t(a, V_NDS, 13)
    keys(a, s_ct, s_tt, two)


def keys(a, kp, ks, two=False):
    if "nokey" in os.environ.get("XP", ""):
        a.I("s_mov_b32 s%d, 0" % S_NKP)
        a.I("s_mov_b32 s%d, 0" % S_NKS)
        return
    a.I("s_mov_b32 s%d, s%d" % (S_NKP, kp))
    a.I("s_lshl_b32 s%d, s%d, %d" % (S_NKS, ks, 1 if two else 0))


def coords44(a, c, t, cadd, tadd):
    I = a.I
    I("s_lshr_b32 s%d, s%d, 4" % (c, S_RK))
    I("s_and_b32 s%d, s%d, 3" % (t, S_RK))
    I("s_lshl2_add_u32 s%d, s%d, s%d" % (c, c, t))
    I("s_bfe_u32 s%d, s%d, 0x20002" % (t, S_RK))
    I("s_add_u32 s%d, s%d, %s" % (c, c, cadd))
    I("s_add_u32 s%d, s%d, %s" % (t, t, tadd))


def next_none(a):
    a.I("s_mov_b32 s%d, 0" % (NP + 2))
    a.I("s_mov_b32 s%d, 0" % (NS + 2))


def store_proj(a, kind, s_ct, s_tt):
    I = a.I
    I("s_and_b32 s%d, s%d, 1" % (T0, S_WV))
    I("s_lshl1_add_u32 s%d, s%d, s%d" % (T0, s_tt, T0))
    I("s_lshl_b32 s%d, s%d, 22" % (S_STB, T0))
    I("s_lshr_b32 s%d, s%d, 1" % (T0, S_WV))
    I("s_lshl1_add_u32 s%d, s%d, s%d" % (T0, s_ct, T0))
    I("s_lshl_b32 s%d, s%d, 15" % (T0, T0))
    I("s_add_u32 s%d, s%d, s%d" % (S_STB, S_STB, T0))
    I("s_add_u32 s%d, s%d, s%d" % (S_STB, S_STB, S_POL))
    if kind == 'q':
        I("s_xor_b32 s%d, s%d, 0x%x" % (S_STB, S_STB, 0x2000 ^ KVF))
    else:
        I("s_cmp_ge_u32 s%d, 2" % S_XW)
        I("s_cselect_b32 s%d, 0x4000, 0" % T0)
        I("s_add_u32 s%d, s%d, s%d" % (S_STB, S_STB, T0))
    I("s_mov_b32 s%d, 2048" % S_STD0)
    I("s_mov_b32 s%d, 0x100000" % S_STD1)
    I("s_mov_b32 s%d, 0x202000" % T0)
    I("s_bitcmp1_b32 s%d, 13" % S_STB)
    I("s_cselect_b32 s%d, 0x1fe000, s%d" % (S_STD2, T0))
    I("v_mov_b32 v%d, v%d" % (V_STA, V_LIN))
    I("v_add_u32 v%d, 1024, v%d" % (V_STA + 1, V_LIN))
    I("s_mov_b32 s%d, 0x%x" % (S_SO + 2, 128 * MB))


def call_kv(a):
    lv, le = a.uid("L_cv"), a.uid("L_ce")
    a.I("s_cmp_ge_u32 s%d, 2" % S_XW)
    a.I("s_cbranch_scc1 %s" % lv)
    call(a, "t_kq")
    a.I("s_branch %s" % le)
    a.L(lv)
    call(a, "t_v")
    a.L(le)


def signal_now(a, word):
    I = a.I
    lab = a.uid("L_ns")
    I("s_waitcnt vmcnt(0)")
    I("s_barrier")
    I("s_cmp_lg_u32 s%d, 0" % S_WV)
    I("s_cbranch_scc1 %s" % lab)
    I("s_mov_b32 s%d, %s" % (T0, word))
    signal_lines(a, T0)
    a.L(lab)


def cmul(d, x, y, t):
    return ["v_pk_mul_f32 v[%d:%d], v[%d:%d], v[%d:%d] op_sel:[0,0] op_sel_hi:[0,1]" % (t, t + 1, x, x + 1, y, y + 1),
            "v_pk_fma_f32 v[%d:%d], v[%d:%d], v[%d:%d], v[%d:%d] op_sel:[1,1,0] op_sel_hi:[1,0,1] neg_lo:[1,0,0]" % (d, d + 1, x, x + 1, y, y + 1, t, t + 1)]


def cfma(d, x, y, c, t):
    return ["v_pk_fma_f32 v[%d:%d], v[%d:%d], v[%d:%d], v[%d:%d] op_sel:[0,0,0] op_sel_hi:[0,1,1]" % (t, t + 1, x, x + 1, y, y + 1, c, c + 1),
            "v_pk_fma_f32 v[%d:%d], v[%d:%d], v[%d:%d], v[%d:%d] op_sel:[1,1,0] op_sel_hi:[1,0,1] neg_lo:[1,0,0]" % (d, d + 1, x, x + 1, y, y + 1, t, t + 1)]


def zipl(lists):
    out = []
    for i in range(max(map(len, lists))):
        for l in lists:
            if i < len(l):
                out.append(l[i])
    return out


LAM, C2, L32, L64 = 88, 96, 104, 112
L128 = 120


def g1_params(a, s_cg, loads=False, R=192):
    I = a.I
    va = V_X
    if loads:
        I("v_and_b32 v%d, 15, v0" % va)
        I("v_bfe_u32 v%d, v0, 7, 1" % (va + 1))
        I("v_lshl_add_u32 v%d, v%d, 6, v%d" % (va, va + 1, va))
        I("v_lshlrev_b32 v%d, 1, v%d" % (va, va))
        I("s_lshl_b32 s%d, s%d, 8" % (S_STO, s_cg))
        for i, src in enumerate((A_LRE, A_LIM, A_LOGDT)):
            a.srd(60, ptr(src), 0, 2048)
            for ct in range(4):
                I("buffer_load_ushort v%d, v%d, s[60:63], s%d offen offset:%d" % (R + 8 * ct + i, va, S_STO, ct * 32))
        return
    seqs = []
    for ct in range(4):
        lr, li, ld, x, y, z, u, w = [R + 8 * ct + i for i in range(8)]
        lam, c2 = LAM + 2 * ct, C2 + 2 * ct
        s = ["v_lshlrev_b32 v%d, 16, v%d" % (r, r) for r in (lr, li, ld)]
        s += ["v_mul_f32 v%d, 0x3fb8aa3b, v%d" % (ld, ld), "v_exp_f32 v%d, v%d" % (ld, ld),
              "v_cvt_pk_bf16_f32 v%d, 0, v%d" % (ld, ld),
              "v_mul_f32 v%d, v%d, v%d" % (x, ld, lr), "v_mul_f32 v%d, v%d, v%d" % (y, ld, li),
              "v_mul_f32 v%d, 0x3fb8aa3b, v%d" % (x, x), "v_exp_f32 v%d, v%d" % (x, x),
              "v_mul_f32 v%d, 0x3e22f983, v%d" % (y, y), "v_fract_f32 v%d, v%d" % (y, y),
              "v_cos_f32 v%d, v%d" % (z, y), "v_sin_f32 v%d, v%d" % (u, y),
              "v_mul_f32 v%d, v%d, v%d" % (lam, x, z), "v_mul_f32 v%d, v%d, v%d" % (lam + 1, x, u),
              "v_add_f32 v%d, -1.0, v%d" % (z, lam),
              "v_mul_f32 v%d, v%d, v%d" % (u, z, lr), "v_fma_f32 v%d, v%d, v%d, v%d" % (u, lam + 1, li, u),
              "v_mul_f32 v%d, v%d, v%d" % (w, lam + 1, lr), "v_fma_f32 v%d, -v%d, v%d, v%d" % (w, z, li, w),
              "v_mul_f32 v%d, v%d, v%d" % (x, lr, lr), "v_fma_f32 v%d, v%d, v%d, v%d" % (x, li, li, x),
              "v_rcp_f32 v%d, v%d" % (x, x), "v_add_f32 v%d, v%d, v%d" % (x, x, x),
              "v_mul_f32 v%d, v%d, v%d" % (c2, u, x), "v_mul_f32 v%d, v%d, v%d" % (c2 + 1, w, x)]
        p, t = L32 + 2 * ct, lr
        s += cmul(p, lam, lam, t)
        for _ in range(4):
            s += cmul(p, p, p, t)
        s += cmul(L64 + 2 * ct, p, p, t)
        s += cmul(y, L64 + 2 * ct, L64 + 2 * ct, t)
        seqs.append(s)
    for l in zipl(seqs):
        I(l)
    pick(a, L128, [R + 8 * ct + 4 for ct in range(4)])


def pick(a, d, srcs):
    I = a.I
    for g in range(4):
        m = (0xffffffffffffffff << (16 * g)) & 0xffffffffffffffff
        I("s_mov_b32 exec_lo, 0x%x" % (m & 0xffffffff))
        I("s_mov_b32 exec_hi, 0x%x" % (m >> 32))
        I("v_mov_b32 v%d, v%d" % (d, srcs[g]))
        I("v_mov_b32 v%d, v%d" % (d + 1, srcs[g] + 1))
    I("s_mov_b64 exec, -1")


def acc_g1(ip, js):
    return (ip * 8 + js) * 4


def ht_base(a, d, s_tt):
    I = a.I
    I("s_lshl_b32 s%d, s%d, 13" % (T1, s_tt))
    I("s_andn2_b32 s%d, 0x2000, s%d" % (T1, T1))
    I("s_xor_b32 s%d, s%d, s%d" % (T1, T1, S_POL))
    I("s_lshl_b32 s%d, s%d, 21" % (d, s_tt))
    I("s_add_u32 s%d, s%d, s%d" % (d, d, T1))


def g1_scan(a, s_cg, s_tt):
    I = a.I
    a.C("---- scan epilogue")
    E, U, T, X, Y, P0, P1, H = 40, 48, 56, 64, 72, 80, 24, 32
    A = 122
    rd = lambda ct, k, d: ["v_accvgpr_read_b32 v%d, a%d" % (d + i, acc_g1(k >> 2, 4 * i + ct) + (k & 3)) for i in range(2)]
    I("s_nop 7")
    for l in zipl([rd(ct, 0, E + 2 * ct) for ct in range(4)]):
        I(l)
    for k in range(1, 32):
        u = U if k & 1 else X
        for l in zipl([rd(ct, k, u + 2 * ct) + cfma(E + 2 * ct, LAM + 2 * ct, E + 2 * ct, u + 2 * ct, T + 2 * ct) for ct in range(4)]):
            I(l)
    for i in range(8):
        I("v_mov_b32 v%d, v%d" % (X + i, E + i))
        I("v_mov_b32 v%d, v%d" % (Y + i, E + i))
    I("s_nop 1")
    for i in range(8):
        I("v_permlane16_swap_b32 v%d, v%d" % (X + i, Y + i))
    for l in zipl([cfma(P0 + 2 * ct, L32 + 2 * ct, X + 2 * ct, Y + 2 * ct, T + 2 * ct) for ct in range(4)]):
        I(l)
    for i in range(8):
        I("v_mov_b32 v%d, v%d" % (P1 + i, P0 + i))
    I("s_nop 1")
    for i in range(8):
        I("v_permlane32_swap_b32 v%d, v%d" % (P0 + i, P1 + i))
    for l in zipl([cfma(E + 2 * ct, L64 + 2 * ct, P0 + 2 * ct, P1 + 2 * ct, T + 2 * ct) for ct in range(4)]):
        I(l)
    pick(a, A, [E + 2 * ct for ct in range(4)])
    I("v_min_u32 v%d, 0xfffffffe, v%d" % (A, A))
    I("v_min_u32 v%d, 0xfffffffe, v%d" % (A + 1, A + 1))
    va = 124
    I("s_and_b32 s%d, s%d, 1" % (S_STO, S_WV))
    I("s_lshl1_add_u32 s%d, s%d, s%d" % (S_STO, s_tt, S_STO))
    I("s_lshl_b32 s%d, s%d, 13" % (S_STO, S_STO))
    I("s_lshr_b32 s%d, s%d, 1" % (S_IDX, S_WV))
    I("s_lshl1_add_u32 s%d, s%d, s%d" % (S_IDX, s_cg, S_IDX))
    I("s_lshl_b32 s%d, s%d, 9" % (S_IDX, S_IDX))
    I("s_add_u32 s%d, s%d, s%d" % (S_STO, S_STO, S_IDX))
    I("v_lshrrev_b32 v%d, 1, v%d" % (va, V_LIN))
    I("v_add_u32 v%d, s%d, v%d" % (va, S_STO, va))
    ws_srd(a, 60, X_AGG, 131072)
    I("buffer_store_dwordx2 v[%d:%d], v%d, s[60:63], 0 offen sc1" % (A, A + 1, va))
    LB = V_ST
    for j in range(15):
        I("v_subrev_u32 v%d, %d, v%d" % (LB + 32 + j, 8192 * (j + 1), va))
    I("s_mov_b32 s%d, 0" % S_STO)
    rt = a.uid("L_lb")
    a.L(rt)
    for j in range(15):
        I("buffer_load_dwordx2 v[%d:%d], v%d, s[60:63], 0 offen sc1" % (LB + 2 * j, LB + 2 * j + 1, LB + 32 + j))
    I("s_add_u32 s%d, s%d, 1" % (S_STO, S_STO))
    I("s_cmp_gt_u32 s%d, 0x%x" % (S_STO, SPIN_LIMIT))
    I("s_cbranch_scc1 %s" % G.ABORT[0])
    I("s_waitcnt vmcnt(0)")
    I("v_max_u32 v%d, v%d, v%d" % (T, LB, LB + 1))
    for j in range(1, 15):
        I("v_max3_u32 v%d, v%d, v%d, v%d" % (T, T, LB + 2 * j, LB + 2 * j + 1))
    I("v_cmp_eq_u32 vcc, -1, v%d" % T)
    I("s_cbranch_vccnz %s" % rt)
    for j in range(13, -1, -1):
        for l in cfma(LB + 2 * j, L128, LB + 2 * j + 2, LB + 2 * j, T):
            I(l)
    for i in range(2):
        I("v_mov_b32 v%d, v%d" % (H + i, LB + i))
        I("v_mov_b32 v%d, v%d" % (H + 2 + i, LB + i))
    I("s_nop 1")
    for i in range(2):
        I("v_permlane16_swap_b32 v%d, v%d" % (H + i, H + 2 + i))
    for i in range(4):
        I("v_mov_b32 v%d, v%d" % (H + 4 + i, H + i))
    I("s_nop 1")
    for i in range(4):
        I("v_permlane32_swap_b32 v%d, v%d" % (H + i, H + 4 + i))
    I("s_mov_b32 exec_lo, 0")
    for l in zipl([cfma(H + 2 * ct, L64 + 2 * ct, H + 2 * ct, P0 + 2 * ct, T + 2 * ct) for ct in range(4)]):
        I(l)
    I("s_mov_b32 exec_lo, 0xffff0000")
    I("s_mov_b32 exec_hi, 0xffff0000")
    for l in zipl([cfma(H + 2 * ct, L32 + 2 * ct, H + 2 * ct, X + 2 * ct, T + 2 * ct) for ct in range(4)]):
        I(l)
    I("s_mov_b64 exec, -1")
    O = (Y, P0)
    for k in range(32):
        u = U if k & 1 else X
        o = O[k & 1]
        e = k >> 3
        sq = []
        for ct in range(4):
            c2, h = C2 + 2 * ct, H + 2 * ct
            s = rd(ct, k, u + 2 * ct) + cfma(h, LAM + 2 * ct, h, u + 2 * ct, T + 2 * ct)
            s += ["v_pk_mul_f32 v[%d:%d], v[%d:%d], v[%d:%d] op_sel:[0,0] op_sel_hi:[0,1]" % (E + 2 * ct, E + 2 * ct + 1, c2, c2 + 1, h, h + 1),
                  "v_pk_fma_f32 v[%d:%d], v[%d:%d], v[%d:%d], v[%d:%d] op_sel:[1,1,0] op_sel_hi:[1,0,1] neg_lo:[1,0,0] neg_hi:[1,0,1]" % (
                      o + 2 * ct, o + 2 * ct + 1, c2, c2 + 1, h, h + 1, E + 2 * ct, E + 2 * ct + 1)]
            if k & 1:
                for ri in range(2):
                    n = (ri * 2 + (e >> 1)) * 8 + ct * 2 + (e & 1)
                    s.append("v_cvt_pk_bf16_f32 v%d, v%d, v%d" % (V_ST + 4 * n + ((k & 7) >> 1), O[0] + 2 * ct + ri, O[1] + 2 * ct + ri))
            sq.append(s)
        for l in zipl(sq):
            I(l)
    ht_base(a, S_STB, s_tt)
    I("s_lshr_b32 s%d, s%d, 2" % (T0, s_cg))
    I("s_lshl_b32 s%d, s%d, 20" % (T0, T0))
    I("s_add_u32 s%d, s%d, s%d" % (S_STB, S_STB, T0))
    I("s_lshl_b32 s%d, s%d, 7" % (S_IDX, S_IDX))
    I("s_and_b32 s%d, s%d, 0x7ffff" % (S_IDX, S_IDX))
    I("s_add_u32 s%d, s%d, s%d" % (S_STB, S_STB, S_IDX))
    I("s_and_b32 s%d, s%d, 1" % (T0, S_WV))
    I("s_lshl_b32 s%d, s%d, 12" % (T0, T0))
    I("s_add_u32 s%d, s%d, s%d" % (S_STB, S_STB, T0))
    I("s_add_u32 s%d, s%d, 0x%x" % (S_STB, S_STB, WS_HT))
    I("s_mov_b32 s%d, 16384" % S_STD0)
    I("s_mov_b32 s%d, 2048" % S_STD1)
    I("s_mov_b32 s%d, 0x80000" % S_STD2)
    I("v_bfe_u32 v%d, v0, 4, 1" % V_STA)
    I("v_lshlrev_b32 v%d, 6, v%d" % (V_STA, V_STA))
    I("v_xor_b32 v%d, v%d, v%d" % (V_STA, V_STA, V_LIN))
    I("v_add_u32 v%d, 1024, v%d" % (V_STA + 1, V_STA))


def g2_epilogue(a, s_dt, s_tt):
    I = a.I
    a.C("---- G2 epilogue")
    vx, vo, vd, vw, vr_ = 24, 25, 26, 27, 28
    DD = 40
    RB = 528
    BUF = 16 * RB
    I("s_waitcnt vmcnt(0)")
    I("s_barrier")
    I("v_and_b32 v%d, 31, v0" % vd)
    I("v_bfe_u32 v%d, v0, 6, 1" % vo)
    I("v_lshl_add_u32 v%d, v%d, 5, v%d" % (vw, vo, vd))
    I("v_bfe_u32 v%d, v0, 5, 1" % vr_)
    I("v_bfe_u32 v%d, v0, 7, 1" % vx)
    I("v_lshl_add_u32 v%d, v%d, 7, v%d" % (vx, vx, vr_))
    I("v_lshlrev_b32 v%d, 13, v%d" % (vo, vx))
    I("v_lshl_add_u32 v%d, v%d, 4, v%d" % (vo, vw, vo))
    I("v_lshlrev_b32 v%d, 11, v%d" % (vx, vx))
    I("v_lshl_add_u32 v%d, v%d, 3, v%d" % (vx, vw, vx))
    I("v_lshlrev_b32 v%d, 3, v%d" % (vw, vw))
    a.srd(60, ptr(A_DSKIP), 0, 2048)
    I("s_lshl_b32 s%d, s%d, 9" % (S_STO, s_dt))
    I("buffer_load_dwordx2 v[44:45], v%d, s[60:63], s%d offen" % (vw, S_STO))
    a.srd(S_SP, ptr(A_X), 0, 4 * MB)
    a.srd(S_SS, ptr(D_OUT), 0, 16 * MB)
    I("s_lshl_b32 s%d, s%d, 19" % (S_STB, s_tt))
    I("s_add_u32 s%d, s%d, s%d" % (S_STB, S_STB, S_STO))
    trow = lambda js, i: 64 * (js & 1) + 8 * (js >> 1) + 32 * (i >> 2) + 2 * (i & 3)

    def xload(js):
        for i in range(8):
            r = V_ST + (js * 8 + i) * 2
            I("s_add_u32 s%d, s%d, 0x%x" % (S_STO, S_STB, trow(js, i) * 2048))
            I("buffer_load_dwordx2 v[%d:%d], v%d, %s, s%d offen" % (r, r + 1, vx, srd_s(S_SP), S_STO))
    for js in range(4):
        xload(js)
    I("s_mul_i32 s%d, s%d, %d" % (T0, S_WV, 4 * BUF))
    I("v_mul_u32_u24 v%d, %d, v%d" % (vr_, RB, vr_))
    I("v_lshl_add_u32 v%d, v%d, 4, v%d" % (vr_, vd, vr_))
    I("v_add_u32 v%d, s%d, v%d" % (vr_, T0, vr_))
    I("v_and_b32 v%d, 15, v0" % vw)
    I("v_mul_u32_u24 v%d, %d, v%d" % (vw, RB, vw))
    I("v_bfe_u32 v%d, v0, 4, 2" % vd)
    I("v_lshl_add_u32 v%d, v%d, 4, v%d" % (vw, vd, vw))
    I("v_add_u32 v%d, s%d, v%d" % (vw, T0, vw))
    I("s_lshl_b32 s%d, s%d, 21" % (S_STD1, s_tt))
    I("s_lshl_b32 s%d, s%d, 10" % (S_STD2, s_dt))
    I("s_add_u32 s%d, s%d, s%d" % (S_STD1, S_STD1, S_STD2))

    def wr(js):
        for ip in range(8):
            c = acc_g1(ip, js)
            I("ds_write_b128 v%d, a[%d:%d] offset:%d" % (vw, c, c + 3, (js & 3) * BUF + ip * 64))

    def rdb(js):
        for i in range(8):
            r = 48 + (js & 1) * 32 + 4 * i
            I("ds_read_b128 v[%d:%d], v%d offset:%d" % (r, r + 3, vr_, (js & 3) * BUF + 2 * i * RB))
    wr(0)
    rdb(0)
    wr(1)
    I("s_waitcnt vmcnt(32)")
    for i in range(2):
        I("v_lshlrev_b32 v%d, 16, v%d" % (DD + 2 * i, 44 + i))
        I("v_and_b32 v%d, 0xffff0000, v%d" % (DD + 2 * i + 1, 44 + i))
    for js in range(8):
        I("s_waitcnt vmcnt(%d) lgkmcnt(%d)" % (8 * min(3, 7 - js) + 8 * min(js, 3), 8 if js < 7 else 0))
        if js < 7:
            rdb(js + 1)
        if js < 6:
            wr(js + 2)
        for i in range(8):
            r = V_ST + (js * 8 + i) * 2
            t = 112 + (i & 1) * 4
            y = 48 + (js & 1) * 32 + 4 * i
            I("v_lshlrev_b32 v%d, 16, v%d" % (t, r))
            I("v_and_b32 v%d, 0xffff0000, v%d" % (t + 1, r))
            I("v_lshlrev_b32 v%d, 16, v%d" % (t + 2, r + 1))
            I("v_and_b32 v%d, 0xffff0000, v%d" % (t + 3, r + 1))
            I("v_pk_mul_f32 v[%d:%d], v[%d:%d], v[%d:%d]" % (t, t + 1, t, t + 1, DD, DD + 1))
            I("v_pk_mul_f32 v[%d:%d], v[%d:%d], v[%d:%d]" % (t + 2, t + 3, t + 2, t + 3, DD + 2, DD + 3))
            I("s_add_u32 s%d, s%d, 0x%x" % (S_STD2, S_STD1, trow(js, i) * 8192))
            for k in range(4):
                I("v_cvt_pk_bf16_f32 v%d, 0, v%d" % (t + k, t + k))
            I("v_pk_add_f32 v[%d:%d], v[%d:%d], v[%d:%d]" % (y, y + 1, y, y + 1, t, t + 1))
            I("v_pk_add_f32 v[%d:%d], v[%d:%d], v[%d:%d]" % (y + 2, y + 3, y + 2, y + 3, t + 2, t + 3))
            I("buffer_store_dwordx4 v[%d:%d], v%d, %s, s%d offen%s" % (y, y + 3, vo, srd_s(S_SS), S_STD2, os.environ.get("G2ST", "")))
        if js + 4 < 8:
            xload(js + 4)


CT, TT = 0, 85


def subroutines(a):
    Tile(a, "t_g2", 'b', False, acc_g1, 8).gen(cont=True)
    Tile(a, "t_g1", 'n', False, acc_g1).gen()
    a.L("t_scan")
    g1_scan(a, CT, TT)
    a.I("s_setpc_b64 s[%d:%d]" % (S_RET, S_RET + 1))


def program(a, done):
    import kvs
    I = a.I
    st = lambda i: WSTAMP[0](a, i)
    st(0)
    lbig = a.uid("L_big")
    I("s_cmp_eq_u32 s%d, 0" % S_XW)
    I("s_cbranch_scc1 %s" % lbig)
    kvs.program(a, st)
    I("s_branch %s" % done)
    a.L(lbig)
    if "nobig" in os.environ.get("XP", ""):
        I("s_branch %s" % done)
    G.setup(a)
    I("s_and_b32 s%d, s%d, 3" % (CT, S_RK))
    I("s_lshr_b32 s%d, s%d, 2" % (TT, S_RK))
    keys(a, CT, TT)
    I("s_lshl_b32 s%d, s%d, 19" % (T0, TT))
    next_op(a, NP, ptr(A_X), "s%d" % T0, 4 * MB, *PAT_D['time'])
    I("s_lshl_b32 s%d, s%d, 18" % (T0, CT))
    next_op(a, NS, ptr(A_BRE), "s%d" % T0, 2 * MB, *PAT_D['chan'], 128)
    I("s_cmp_ge_u32 s%d, 2" % S_WV)
    I("s_cselect_b32 s%d, s%d, s%d" % (NS, ptr(A_BIM), ptr(A_BRE)))
    I("s_cselect_b32 s%d, s%d, s%d" % (NS + 1, ptr(A_BIM) + 1, ptr(A_BRE) + 1))
    I("s_and_b32 s%d, s%d, 0xffff" % (NS + 1, NS + 1))
    pat_n(a, V_NDP, 'time')
    pat_n(a, V_NDS, 'chan')
    g1_params(a, CT, True)
    prologue(a)
    I("s_add_u32 s%d, s%d, 0x100000" % (NS + 3, NS + 3))
    ws_srd(a, S_SO, 0, WS_END)
    for i in range(4):
        I("v_mov_b32 v%d, -1" % (V_STT + i))
    I("v_lshlrev_b32 v%d, 4, v0" % (V_X + 2))
    I("s_lshl_b32 s%d, s%d, 12" % (T0, S_RK))
    I("s_add_u32 s%d, s%d, 0x%x" % (T0, T0, X_AGG))
    I("buffer_store_dwordx4 v[%d:%d], v%d, %s, s%d offen sc1" % (V_STT, V_STT + 3, V_X + 2, srd_s(S_SO), T0))
    I("s_mov_b32 s%d, 0" % (S_SO + 2))
    I("s_waitcnt vmcnt(25)")
    g1_params(a, CT)

    def sig0(word):
        I("s_cmp_eq_u32 s%d, 0" % S_WV)
        I("s_cselect_b32 s%d, %d, 0" % (S_SIG0, word * 4))
    sig0(D_AGG)
    I("s_mov_b32 s%d, 0" % S_SIG)
    I("s_mov_b32 s%d, %d" % (S_WAIT, D_AGG * 4))
    I("s_mov_b32 s%d, 32" % S_WTG)
    for r in (S_STB, S_STD0, S_STD1, S_STD2):
        I("s_mov_b32 s%d, 0" % r)
    I("s_waitcnt vmcnt(9)")
    I("s_barrier")
    st(4)
    call(a, "t_g1")
    st(5)
    I("v_mov_b32 v125, 0")
    kvs.get_polarity(a, 125, V_X)
    call(a, "t_scan")
    I("s_add_u32 s%d, s%d, 4" % (CT, CT))
    g1_params(a, CT, True, 40)

    def next_g2(q):
        I("s_and_b32 s%d, s%d, 7" % (T2, S_RK))
        I("s_lshr_b32 s%d, s%d, 3" % (T3, S_RK))
        I("s_lshl_b32 s%d, s%d, 19" % (T0, T3))
        I("s_add_u32 s%d, s%d, %d" % (T0, T0, (q >> 1) * 1024))
        next_op(a, NP, ptr(A_CIM if q & 1 else A_CRE), "s%d" % T0, 2 * MB, *PAT_D['nat'])
        ht_base(a, T0, T2)
        I("s_add_u32 s%d, s%d, 0x%x" % (T0, T0, q * 0x80000))
        next_op(a, NS, ptr(D_WS), "s%d" % T0, 16 * MB, 2048, 32768, 65536, cst=WS_HT)
        keys(a, T2, T3)
        if q == 0:
            pat_n(a, V_NDP, 'nat')
            pat_b(a, V_NDS)
    next_g2(0)
    I("s_mov_b32 s%d, 0x%x" % (S_SO + 2, WS_END))
    I("s_mov_b32 s%d, %d" % (S_SIG, D_EH * 4))
    I("s_mov_b32 s%d, %d" % (S_WAIT, D_EH * 4))
    I("s_waitcnt vmcnt(0)")
    g1_params(a, CT, False, 40)
    st(6)
    call(a, "t_g1")
    st(7)
    call(a, "t_scan")
    st(8)
    next_g2(1)
    I("s_mov_b32 s%d, 0" % S_WAIT)
    call(a, "t_g2")
    next_g2(2)
    I("s_mov_b32 s%d, 0" % (S_SO + 2))
    sig0(D_EH + 1)
    I("s_mov_b32 s%d, %d" % (S_WAIT, (D_EH + 1) * 4))
    call(a, "t_g2_c")
    st(9)
    next_g2(3)
    I("s_mov_b32 s%d, 0" % S_WAIT)
    call(a, "t_g2_c")
    next_none(a)
    call(a, "t_g2_c")
    st(11)
    I("s_and_b32 s%d, s%d, 7" % (TT, S_RK))
    I("s_lshr_b32 s%d, s%d, 3" % (CT, S_RK))
    g2_epilogue(a, CT, TT)
    st(12)
```

```python
import sys, os
sys.path.insert(0, os.path.dirname(os.path.abspath(__file__)))
from asmlib import *
from L2 import *
import gemm2, worker2

NAME = "concat_heads__ssm_conv_s5__memory_aug_recurrent_mem_tr__prompt"
HEADER = open(os.path.join(os.path.dirname(os.path.abspath(__file__)), "header.txt")).read()
ABL = os.environ.get("ABL", "")
WT = int(os.environ.get("WT", "0"))
STAMP = int(os.environ.get("STAMP", "0"))
L_ROLE = 31744


def wstamp(a, idx, vr=126):
    if not WT:
        return
    I = lambda l: a.I(l.replace("v127", "v%d" % (vr + 1)).replace("v126", "v%d" % vr))
    I("s_memrealtime s[62:63]")
    I("s_lshl_b32 vcc_lo, s%d, 5" % gemm2.S_XW)
    I("s_add_u32 vcc_lo, vcc_lo, s%d" % gemm2.S_RK)
    I("s_lshl_b32 vcc_lo, vcc_lo, 8")
    I("s_add_u32 vcc_lo, vcc_lo, 0x%x" % (WS_DBG + 131072 + idx * 4))
    I("v_mov_b32 v127, vcc_lo")
    I("s_waitcnt lgkmcnt(0)")
    I("v_mov_b32 v126, s62")
    I("s_memtime s[62:63]")
    I("s_mov_b64 exec, 1")
    I("global_store_dword v127, v126, s[%d:%d]" % (ptr(D_WS), ptr(D_WS) + 1))
    I("s_waitcnt lgkmcnt(0)")
    I("v_mov_b32 v126, s62")
    I("global_store_dword v127, v126, s[%d:%d] offset:128" % (ptr(D_WS), ptr(D_WS) + 1))
    I("s_mov_b64 exec, -1")


worker2.WSTAMP[0] = wstamp


def entry(a, name):
    I = a.I
    I("s_load_dwordx4 s[%d:%d], s[0:1], 128" % (PTR0 + 32, PTR0 + 35))
    I("s_load_dwordx2 s[%d:%d], s[0:1], 144" % (PTR0 + 36, PTR0 + 37))
    I("s_load_dwordx16 s[%d:%d], s[0:1], 0" % (PTR0, PTR0 + 15))
    I("s_load_dwordx16 s[%d:%d], s[0:1], 64" % (PTR0 + 16, PTR0 + 31))
    I("s_getreg_b32 s16, hwreg(HW_REG_XCC_ID)")
    I("s_and_b32 s16, s16, 7")
    I("v_lshrrev_b32 v1, 6, v0")
    I("s_nop 0")
    I("v_readfirstlane_b32 s18, v1")
    I("s_waitcnt lgkmcnt(0)")
    lab, lcal = a.uid("L_role"), a.uid("L_cal")
    I("s_cmp_lg_u32 s18, 0")
    I("s_cbranch_scc1 %s" % lcal)
    I("s_lshl_b32 s3, s16, 2")
    I("s_add_u32 s3, s3, %d" % (D_ROLE * 4))
    I("s_mov_b32 s17, 1")
    I("s_atomic_add s17, s[%d:%d], s3 glc" % (ptr(D_DBG), ptr(D_DBG) + 1))
    I("v_mov_b32 v2, %d" % L_ROLE)
    I("s_waitcnt lgkmcnt(0)")
    I("v_mov_b32 v1, s17")
    I("ds_write_b32 v2, v1")
    I("s_waitcnt lgkmcnt(0)")
    I("s_branch %s" % lab)
    a.L(lcal)
    I("s_cmp_lg_u32 s18, 1")
    I("s_cbranch_scc1 %s" % lab)
    I("s_cmp_ge_u32 s2, 15")
    I("s_cbranch_scc1 %s" % lab)
    I("s_lshl_b32 s3, s2, 14")
    I("s_add_u32 s3, s3, 0x%x" % X_CAL)
    I("s_add_u32 s4, s%d, s3" % ptr(D_WS))
    I("s_addc_u32 s5, s%d, 0" % (ptr(D_WS) + 1))
    I("s_mov_b32 s6, 0")
    I("s_atomic_or s6, s[4:5], 0")
    I("s_atomic_or s6, s[4:5], 0x2000")
    I("s_waitcnt lgkmcnt(0)")
    I("s_memtime s[8:9]")
    I("s_atomic_or s6, s[4:5], 0")
    I("s_waitcnt lgkmcnt(0)")
    I("s_memtime s[10:11]")
    I("s_atomic_or s6, s[4:5], 0x2000")
    I("s_waitcnt lgkmcnt(0)")
    I("s_memtime s[12:13]")
    I("s_waitcnt lgkmcnt(0)")
    I("s_sub_u32 s12, s12, s10")
    I("s_sub_u32 s10, s10, s8")
    I("s_cmp_lt_u32 s12, s10")
    I("s_cselect_b32 s6, 0x100, 0")
    I("s_lshl_b32 s7, s16, 6")
    I("s_and_b32 s7, s7, 0x100")
    I("s_xor_b32 s6, s6, s7")
    I("s_add_u32 s6, s6, 1")
    I("s_atomic_add s6, s[%d:%d], %d" % (ptr(D_DBG), ptr(D_DBG) + 1, D_CAL * 4))
    a.L(lab)
    I("s_barrier")
    I("v_mov_b32 v2, %d" % L_ROLE)
    I("ds_read_b32 v1, v2")
    I("s_waitcnt lgkmcnt(0)")
    I("v_readfirstlane_b32 s17, v1")
    I("s_barrier")


def kernel(a, name):
    I = a.I
    a.raw(".globl %s\n.p2align 8\n.type %s,@function" % (name, name))
    a.L(name)
    I("s_cmp_ge_u32 s2, 256")
    I("s_cbranch_scc1 %s_end" % name)
    entry(a, name)
    I("s_cmp_ge_u32 s17, 32")
    I("s_cbranch_scc1 %s_end" % name)
    I("s_cmp_ge_u32 s16, 4")
    I("s_cbranch_scc1 %s_worker" % name)
    if 'nochain' not in ABL:
        import chain2 as chain
        import diag
        chain.chain_main(a, name, diag.setup(a, chain, STAMP))
    a.L("%s_end" % name)
    I("s_endpgm")
    a.L("%s_worker" % name)
    gemm2.ABORT[0] = name + "_wabort"
    I("s_sub_u32 s%d, s16, 4" % gemm2.S_XW)
    I("s_mov_b32 s%d, s17" % gemm2.S_RK)
    I("s_mov_b32 s%d, s18" % gemm2.S_WV)
    if 'nowork' not in ABL:
        worker2.program(a, name + "_seg")
    a.L(name + "_seg")
    if 'noseg' not in ABL and 'nowork' not in ABL:
        import seg
        seg.program(a, wstamp)
    I("s_endpgm")
    a.L(name + "_wabort")
    I("s_mov_b64 exec, 1")
    I("v_mov_b32 v1, 0xdeadbeef")
    I("v_mov_b32 v2, 120")
    I("global_store_dword v2, v1, s[%d:%d]" % (ptr(D_DBG), ptr(D_DBG) + 1))
    I("s_endpgm")
    if 'nowork' not in ABL:
        worker2.subroutines(a)


def build():
    a = Asm()
    out = HEADER
    out += "; @launch kernel=chain_kernel grid=(256,1,1) block=(256,1,1) lds=163840\n"
    out += '.amdgcn_target "amdgcn-amd-amdhsa--gfx950"\n.text\n'
    kernel(a, "chain_kernel")
    out += a.text()
    out += kernel_desc("chain_kernel")
    return out


if __name__ == "__main__":
    dst = sys.argv[1] if len(sys.argv) > 1 else "/code/%s.s" % NAME
    open(dst, "w").write(build())
    print("wrote", dst)
```

```python
import sys, os
sys.path.insert(0, os.path.dirname(os.path.abspath(__file__)))
from asmlib import *
from L2 import *
import gemm2, worker2

NAME = "concat_heads__ssm_conv_s5__memory_aug_recurrent_mem_tr__prompt"
HEADER = open(os.path.join(os.path.dirname(os.path.abspath(__file__)), "header.txt")).read()
ABL = os.environ.get("ABL", "")
WT = int(os.environ.get("WT", "0"))
STAMP = int(os.environ.get("STAMP", "0"))
L_ROLE = 31744


def wstamp(a, idx, vr=126):
    if not WT:
        return
    I = lambda l: a.I(l.replace("v127", "v%d" % (vr + 1)).replace("v126", "v%d" % vr))
    I("s_memrealtime s[62:63]")
    I("s_lshl_b32 vcc_lo, s%d, 5" % gemm2.S_XW)
    I("s_add_u32 vcc_lo, vcc_lo, s%d" % gemm2.S_RK)
    I("s_lshl_b32 vcc_lo, vcc_lo, 8")
    I("s_add_u32 vcc_lo, vcc_lo, 0x%x" % (WS_DBG + 131072 + idx * 4))
    I("v_mov_b32 v127, vcc_lo")
    I("s_waitcnt lgkmcnt(0)")
    I("v_mov_b32 v126, s62")
    I("s_memtime s[62:63]")
    I("s_mov_b64 exec, 1")
    I("global_store_dword v127, v126, s[%d:%d]" % (ptr(D_WS), ptr(D_WS) + 1))
    I("s_waitcnt lgkmcnt(0)")
    I("v_mov_b32 v126, s62")
    I("global_store_dword v127, v126, s[%d:%d] offset:128" % (ptr(D_WS), ptr(D_WS) + 1))
    I("s_mov_b64 exec, -1")


worker2.WSTAMP[0] = wstamp


def entry(a, name):
    I = a.I
    I("s_load_dwordx4 s[%d:%d], s[0:1], 128" % (PTR0 + 32, PTR0 + 35))
    I("s_load_dwordx2 s[%d:%d], s[0:1], 144" % (PTR0 + 36, PTR0 + 37))
    I("s_load_dwordx16 s[%d:%d], s[0:1], 0" % (PTR0, PTR0 + 15))
    I("s_load_dwordx16 s[%d:%d], s[0:1], 64" % (PTR0 + 16, PTR0 + 31))
    I("s_getreg_b32 s16, hwreg(HW_REG_XCC_ID)")
    I("s_and_b32 s16, s16, 7")
    I("v_lshrrev_b32 v1, 6, v0")
    I("s_nop 0")
    I("v_readfirstlane_b32 s18, v1")
    I("s_waitcnt lgkmcnt(0)")
    lab, lcal = a.uid("L_role"), a.uid("L_cal")
    I("s_cmp_lg_u32 s18, 0")
    I("s_cbranch_scc1 %s" % lcal)
    I("s_lshl_b32 s3, s16, 2")
    I("s_add_u32 s3, s3, %d" % (D_ROLE * 4))
    I("s_mov_b32 s17, 1")
    I("s_atomic_add s17, s[%d:%d], s3 glc" % (ptr(D_DBG), ptr(D_DBG) + 1))
    I("v_mov_b32 v2, %d" % L_ROLE)
    I("s_waitcnt lgkmcnt(0)")
    I("v_mov_b32 v1, s17")
    I("ds_write_b32 v2, v1")
    I("s_waitcnt lgkmcnt(0)")
    I("s_branch %s" % lab)
    a.L(lcal)
    if os.environ.get("PROBE"):
        lp = a.uid("L_prb")
        I("s_cmp_lg_u32 s18, 2")
        I("s_cbranch_scc1 %s" % lp)
        I("s_cmp_ge_u32 s2, 160")
        I("s_cbranch_scc1 %s" % lp)
        I("s_and_b32 s14, s2, 31")
        I("s_lshr_b32 s15, s2, 5")
        I("s_lshl_b32 s3, s14, 23")
        I("s_lshl_b32 s6, s15, 14")
        I("s_add_u32 s3, s3, s6")
        I("s_add_u32 s4, s%d, s3" % ptr(D_WS))
        I("s_addc_u32 s5, s%d, 0" % (ptr(D_WS) + 1))
        I("s_mov_b32 s6, 0")
        I("s_atomic_or s6, s[4:5], 0")
        I("s_atomic_or s6, s[4:5], 0x2000")
        I("s_waitcnt lgkmcnt(0)")
        I("s_mov_b32 s20, -1")
        I("s_mov_b32 s21, -1")
        for rep in range(3):
            I("s_memtime s[8:9]")
            I("s_atomic_or s6, s[4:5], 0")
            I("s_waitcnt lgkmcnt(0)")
            I("s_memtime s[10:11]")
            I("s_atomic_or s6, s[4:5], 0x2000")
            I("s_waitcnt lgkmcnt(0)")
            I("s_memtime s[12:13]")
            I("s_waitcnt lgkmcnt(0)")
            I("s_sub_u32 s12, s12, s10")
            I("s_sub_u32 s10, s10, s8")
            I("s_min_u32 s20, s20, s10")
            I("s_min_u32 s21, s21, s12")
        I("s_cmp_lt_u32 s21, s20")
        I("s_cselect_b32 s6, 1, 0")
        I("s_lshr_b32 s7, s16, 2")
        I("s_xor_b32 s6, s6, s7")
        I("s_lshl_b32 s6, s6, s14")
        I("s_lshl_b32 s15, s15, 2")
        I("s_add_u32 s15, s15, 32")
        I("s_atomic_or s6, s[%d:%d], s15" % (ptr(D_DBG), ptr(D_DBG) + 1))
        a.L(lp)
    I("s_cmp_lg_u32 s18, 1")
    I("s_cbranch_scc1 %s" % lab)
    I("s_cmp_ge_u32 s2, 15")
    I("s_cbranch_scc1 %s" % lab)
    I("s_lshl_b32 s3, s2, 14")
    I("s_add_u32 s3, s3, 0x%x" % X_CAL)
    I("s_add_u32 s4, s%d, s3" % ptr(D_WS))
    I("s_addc_u32 s5, s%d, 0" % (ptr(D_WS) + 1))
    I("s_mov_b32 s6, 0")
    I("s_atomic_or s6, s[4:5], 0")
    I("s_atomic_or s6, s[4:5], 0x2000")
    I("s_waitcnt lgkmcnt(0)")
    I("s_memtime s[8:9]")
    I("s_atomic_or s6, s[4:5], 0")
    I("s_waitcnt lgkmcnt(0)")
    I("s_memtime s[10:11]")
    I("s_atomic_or s6, s[4:5], 0x2000")
    I("s_waitcnt lgkmcnt(0)")
    I("s_memtime s[12:13]")
    I("s_waitcnt lgkmcnt(0)")
    I("s_sub_u32 s12, s12, s10")
    I("s_sub_u32 s10, s10, s8")
    I("s_cmp_lt_u32 s12, s10")
    I("s_cselect_b32 s6, 0x100, 0")
    I("s_lshl_b32 s7, s16, 6")
    I("s_and_b32 s7, s7, 0x100")
    I("s_xor_b32 s6, s6, s7")
    I("s_add_u32 s6, s6, 1")
    I("s_atomic_add s6, s[%d:%d], %d" % (ptr(D_DBG), ptr(D_DBG) + 1, D_CAL * 4))
    a.L(lab)
    I("s_barrier")
    I("v_mov_b32 v2, %d" % L_ROLE)
    I("ds_read_b32 v1, v2")
    I("s_waitcnt lgkmcnt(0)")
    I("v_readfirstlane_b32 s17, v1")
    I("s_barrier")


def kernel(a, name):
    I = a.I
    a.raw(".globl %s\n.p2align 8\n.type %s,@function" % (name, name))
    a.L(name)
    I("s_cmp_ge_u32 s2, 256")
    I("s_cbranch_scc1 %s_end" % name)
    entry(a, name)
    I("s_cmp_ge_u32 s17, 32")
    I("s_cbranch_scc1 %s_end" % name)
    I("s_cmp_ge_u32 s16, 4")
    I("s_cbranch_scc1 %s_worker" % name)
    if 'nochain' not in ABL:
        import chain2 as chain
        import diag
        chain.chain_main(a, name, diag.setup(a, chain, STAMP))
    a.L("%s_end" % name)
    I("s_endpgm")
    a.L("%s_worker" % name)
    gemm2.ABORT[0] = name + "_wabort"
    I("s_sub_u32 s%d, s16, 4" % gemm2.S_XW)
    I("s_mov_b32 s%d, s17" % gemm2.S_RK)
    I("s_mov_b32 s%d, s18" % gemm2.S_WV)
    if 'nowork' not in ABL:
        worker2.program(a, name + "_seg")
    a.L(name + "_seg")
    if 'noseg' not in ABL and 'nowork' not in ABL:
        import seg
        seg.program(a, wstamp)
    I("s_endpgm")
    a.L(name + "_wabort")
    I("s_mov_b64 exec, 1")
    I("v_mov_b32 v1, 0xdeadbeef")
    I("v_mov_b32 v2, 120")
    I("global_store_dword v2, v1, s[%d:%d]" % (ptr(D_DBG), ptr(D_DBG) + 1))
    I("s_endpgm")
    if 'nowork' not in ABL:
        worker2.subroutines(a)


def build():
    a = Asm()
    out = HEADER
    out += "; @launch kernel=chain_kernel grid=(256,1,1) block=(256,1,1) lds=163840\n"
    out += '.amdgcn_target "amdgcn-amd-amdhsa--gfx950"\n.text\n'
    kernel(a, "chain_kernel")
    out += a.text()
    out += kernel_desc("chain_kernel")
    return out


if __name__ == "__main__":
    dst = sys.argv[1] if len(sys.argv) > 1 else "/code/%s.s" % NAME
    open(dst, "w").write(build())
    print("wrote", dst)
```

```python
import os
class Asm:
    def __init__(self):
        self.lines = []
        self._uid = 0

    def I(self, s):
        self.lines.append("    " + s)

    def C(self, s):
        self.lines.append("    ; " + s)

    def L(self, label):
        self.lines.append(label + ":")

    def raw(self, s):
        self.lines.append(s)

    def uid(self, base):
        self._uid += 1
        return "%s_%d" % (base, self._uid)

    def text(self):
        return "\n".join(self.lines) + "\n"

    def smov(self, sreg, val):
        val &= 0xFFFFFFFF
        self.I("s_mov_b32 s%d, 0x%x" % (sreg, val))

    def vmov(self, vreg, val):
        val &= 0xFFFFFFFF
        self.I("v_mov_b32 v%d, 0x%x" % (vreg, val))

    def srd(self, d, ptr, off, size):
        assert d % 4 == 0
        if off == 0:
            self.I("s_mov_b32 s%d, s%d" % (d, ptr))
            self.I("s_and_b32 s%d, s%d, 0xffff" % (d + 1, ptr + 1))
        else:
            self.I("s_add_u32 s%d, s%d, 0x%x" % (d, ptr, off & 0xFFFFFFFF))
            self.I("s_addc_u32 s%d, s%d, 0" % (d + 1, ptr + 1))
            self.I("s_and_b32 s%d, s%d, 0xffff" % (d + 1, d + 1))
        self.I("s_mov_b32 s%d, 0x%x" % (d + 2, size))
        self.I("s_mov_b32 s%d, 0x00020000" % (d + 3))


def vr(a, n=1):
    return "v%d" % a if n == 1 else "v[%d:%d]" % (a, a + n - 1)


def ar(a, n=1):
    return "a%d" % a if n == 1 else "a[%d:%d]" % (a, a + n - 1)


def sr(a, n=1):
    return "s%d" % a if n == 1 else "s[%d:%d]" % (a, a + n - 1)


def kernel_desc(name, vgpr=512, accum=256, sgpr=102):
    return """.section .rodata,"a"
.p2align 6
.amdhsa_kernel %s
  .amdhsa_next_free_vgpr %d
  .amdhsa_next_free_sgpr %d
  .amdhsa_accum_offset %d
  .amdhsa_group_segment_fixed_size 0
  .amdhsa_kernarg_size 152
  .amdhsa_user_sgpr_count 2
  .amdhsa_user_sgpr_kernarg_segment_ptr 1
  .amdhsa_system_sgpr_workgroup_id_x 1
  .amdhsa_float_denorm_mode_32 3
  .amdhsa_float_denorm_mode_16_64 3
.end_amdhsa_kernel
""" % (name, vgpr, sgpr, accum)


def place(items, cap, is_dma=lambda l: l.split(" #")[0].endswith(" lds")):
    out = {}
    cap = list(cap)
    s = 0
    for first, lines, atomic in items:
        s = max(s, first)
        if atomic:
            while cap[s] <= 0:
                s += 1
            out.setdefault(s, []).extend(lines)
            cap[s] -= len(lines)
            continue
        for l in lines:
            if is_dma(l) and out.get(s) and " m0," in out[s][-1]:
                s += 1
            while cap[s] <= 0:
                s += 1
            out.setdefault(s, []).append(l)
            cap[s] -= 2 if l.startswith("buffer_") else 1
    return out


class VM:
    def __init__(self, a, prev=()):
        self.a, self.seq, self.prev = a, [], list(prev)

    def I(self, l):
        if "@wait " in l:
            n = 63
            for tag in l.split("@wait ")[1].split():
                back = tag.count("<")
                tag = tag.rstrip("<")
                allq = self.prev + self.seq
                idx = [i for i, t in enumerate(allq) if t == tag]
                if len(idx) > back:
                    n = min(n, len(allq) - 1 - idx[-1 - back])
            self.a.I("s_waitcnt vmcnt(%d)" % n)
            return
        if l.endswith(":"):
            self.a.raw(l)
            return
        tag = None
        if " #" in l:
            l, tag = l.split(" #")
        if tag and tag in os.environ.get("SXP", "").split(","):
            return
        if l.startswith(("buffer_", "global_")):
            self.seq.append(tag)
        self.a.I(l)
```

```python
from asmlib import *
from L2 import *
import kvs
import os

E = lambda k, d: int(os.environ.get(k, str(d)))
PRE_Q, PACE = E("PRE_Q", 44), E("PACE", 14)
GAP_S = E("GAP_S", 14)
PRE_S = E("PRE_S", 28)
VPRE, VMID = E("VPRE", 2), E("VMID", 2)
PF = os.environ.get("PF", "B")
NREP = E("PXR", 2)
OSTA, TCHA = E("OSTA", 1), E("TCHA", 0)
KQW = os.environ.get("KQW", "AD")
SB = E("SB", 0)
if SB:
    KQW, OSTA, TCHA = "B", 0, 0
KB = E("KB", 0)
TS = E("TS", 2)
OSS = E("OSS", 1)
if OSS:
    OSTA = 0
WNT = " nt" if E("WNT", 1) else ""
KVP = os.environ.get("KVP", "near")
PRE_O = E("PRE_O", 36)
PRE_P, GAP_P = E("PRE_P", 0), E("GAP_P", 0)

S_WS, S_TMPSRD = 8, 12
S_X, S_J, S_W, S_STEP = 16, 17, 18, 19
S_T0, S_T1, S_T2, S_T3 = 20, 21, 22, 23
S_M8 = 24
S_EV = 26
S_REL = 30
S_KV = 31
S_KM = 32
S_SPIN = 33
S_PXB = 52
S_EXB = 53
S_KVL = 54
S_CUR, S_NXT, S_POI, S_PX0, S_PX1, S_PP0, S_PP1 = 40, 41, 42, 43, 44, 45, 46
S_ID = 47
S_KVB, S_KMB, S_POL, S_LF = 48, 49, 50, 62
S_TCH = 63
S_W01, S_WT = 38, 39
S_JQ, S_JM = 28, 29
S_GATE = 55
S_DBG = 60
S_C = 56
S_SCL = 58

V_LIN = 1
V_GLD = 2
V_OLD = 3
V_QXST, V_QXLD, V_OXST, V_MEMST, V_PXST = 4, 5, 6, 7, 8
V_PXLD = 9
V_RQW = 12
V_RQR, V_RW, V_ROR, V_SEL, V_IDX, V_CHK = 15, 16, 17, 18, 19, 20
V_KVR = 21
V_H0, V_H1, V_H2, V_H3 = 22, 23, 24, 25
V_L8 = 26
V_M0LD = 27
V_ONES = 28
V_M = 32
V_MR = 48
V_AQ = 64
V_AV = 72
V_AO = 76
V_R = 80
V_KF = 104
V_VT = 136
V_VM = 144
V_QS = (148, 164, 32, 48)
V_SC = (80, 92, 220)
V_S0, V_S1, V_S2 = 180, 184, 188
V_P = 192
V_O = 200
V_T = 208
V_L = 220
V_Y = 246
V_KXW = 234
V_ROW = 238
V_D0, V_D1, V_D2 = 235, 236, 237
V_SMP = 248
V_ONEB = 216
V_XQ, V_XKM, V_XT, V_XB = 148, 164, 86, 226
V_XKA, V_XQA, V_KQ, V_B4 = 241, 242, 243, 245

L_RQK, L_RV, L_RO, L_VMF, L_ROLE, L_KX, L_KV = 0, 12288, 20480, 28672, 31744, 29696, 32768
L_STAGE = 32768
L_Q, L_QXC = L_KV + 10240, L_KV + 18432

SPIN_LIMIT = 1 << 20
LAST = E("LAST", 63)
ABL = os.environ.get('ABL', '')
ABORT = [None]
DUMP = [None]
COLD = []
LOOPSTART = [None, None]
W = "s[%d:%d]" % (S_WS, S_WS + 3)


def a_qk(t, b):
    return (t * 4 + b) * 8


def a_v(t, b):
    return 128 + (t * 4 + b) * 8


def a_wo(t, b):
    return 192 + (t * 4 + b) * 8


def fill(a, work, n):
    k = 0
    while work and k < n:
        a.I(work.pop(0))
        k += 1
    n -= k
    if E("SLP", 0) and n >= 16:
        a.I("s_sleep %d" % (n // 16))
        n %= 16
    while n > 0:
        q = min(n, 16)
        a.I("s_nop %d" % (q - 1))
        n -= q


def spin_lines(cnt=None, bound=True):
    pre = ["s_add_u32 s%d, s%d, 1" % (94 + cnt, 94 + cnt)] if (cnt is not None and os.environ.get("STAMP") == "2") else []
    if not bound:
        return pre
    return pre + ["s_add_u32 s%d, s%d, 1" % (S_SPIN, S_SPIN), "s_cmp_gt_u32 s%d, 0x%x" % (S_SPIN, SPIN_LIMIT), "s_cbranch_scc1 %s" % ABORT[0]]


def gather_fifo(a, tag, loads, accs, wts, extra=[]):
    uid = a.uid("G" + tag)
    done = uid + "_done"
    nm = lambda st, p: "".join(map(str, st)) + ("" if p is None else "p%d" % p)
    lab = lambda st, p: uid + "_s" + nm(st, p)
    cnt = {"q": 0, "o": 2}[tag]
    U = lambda b: [smf(c, wts(k, 0, b), V_M + 4 * b) for k, c in enumerate(accs)]
    R = lambda b: [smf(c, wts(k, 1, b), V_MR + 4 * b) for k, c in enumerate(accs)]
    ror = lambda b: ["v_mov_b32_dpp v%d, v%d row_ror:8 row_mask:0xf bank_mask:0xf" % (V_MR + 4 * b + i, V_M + 4 * b + i) for i in range(4)]
    ind = lambda ls: ["    " + l for l in ls]
    defer = len(accs) == 2
    emitted, todo = set(), []

    def body(st, p, hot):
        c = st[0]
        f = uid + "_f" + nm(st, p)
        o = ror(c)
        seq = ["s_waitcnt vmcnt(%d)" % (len(st) - 1), "v_cmp_eq_u32 vcc, -1, v%d" % (V_M + 4 * c)]
        seq += o if p is None else [R(p)[0], o[0], o[1], R(p)[1], o[2], o[3]]
        seq += ["s_cbranch_vccnz %s" % f] + U(c)
        if not defer or len(st) == 1:
            seq += R(c)
        nxt = st[1:] + (c,)
        stub = [f + ":"] + ind([loads[c]] + spin_lines(cnt, not hot) + ["s_branch %s" % lab(nxt, None)])
        emitted.add((st, p))
        todo.append((nxt, None))
        return [lab(st, p) + ":"] + ind(seq), stub, (st[1:], c if defer else None)
    st, p = (0, 1, 2, 3), None
    while st:
        out, stub, (st, p) = body(st, p, len(st) == 4)
        for l in out:
            a.raw(l)
        COLD.extend(stub)
    a.L(done)
    COLD.extend([uid + "_redo:"] + ind(loads + spin_lines(cnt) + ["s_nop 5"] + ["v_mov_b32 v%d, 0" % (x + i) for x in accs + extra for i in range(4)] +
                                       ["s_branch %s" % lab((0, 1, 2, 3), None)]))
    while todo:
        st, p = todo.pop(0)
        stubs = []
        while st and (st, p) not in emitted:
            out, stub, (st, p) = body(st, p, False)
            COLD.extend(out)
            stubs.extend(stub)
            if not st or (st, p) in emitted:
                COLD.append("    s_branch %s" % (lab(st, p) if st else done))
        COLD.extend(stubs)
    t0, t1 = V_CHK, V_T
    m = lambda b, i: V_M + 4 * b + i
    return ["v_max3_u32 v%d, v%d, v%d, v%d" % (t0, m(0, 1), m(0, 2), m(0, 3)),
            "v_max3_u32 v%d, v%d, v%d, v%d" % (t1, m(1, 1), m(1, 2), m(1, 3)),
            "v_max3_u32 v%d, v%d, v%d, v%d" % (t1 + 1, m(2, 1), m(2, 2), m(2, 3)),
            "v_max3_u32 v%d, v%d, v%d, v%d" % (t1 + 2, m(3, 1), m(3, 2), m(3, 3)),
            "v_max_u32 v%d, v%d, v%d" % (t0, t0, t1),
            "v_max3_u32 v%d, v%d, v%d, v%d" % (t0, t0, t1 + 1, t1 + 2),
            "v_cmp_eq_u32 vcc, -1, v%d" % t0], "s_cbranch_vccnz %s_redo" % uid


def prologue_addrs(a):
    I = a.I
    T = V_T
    a.C("---- chain address registers")
    I("s_mov_b32 s%d, 0x00ff00ff" % S_M8)
    I("s_mov_b32 s%d, 0x00ff00ff" % (S_M8 + 1))
    I("s_mov_b32 s%d, 0x55555555" % S_EV)
    I("s_mov_b32 s%d, 0x55555555" % (S_EV + 1))
    I("s_mov_b32 s%d, 0x3fb8aa3b" % S_C)
    I("s_mov_b32 s%d, 0x3fb8aa3b" % (S_C + 1))
    I("s_mov_b32 s%d, 0x3db504f3" % S_SCL)
    I("s_mov_b32 s%d, 0x3db504f3" % (S_SCL + 1))
    I("s_lshl_b32 s%d, s%d, 16" % (S_EXB, S_X))
    I("s_add_u32 s%d, s%d, 0x%x" % (S_EXB, S_EXB, X_EX))
    I("s_lshl_b32 s%d, s%d, 5" % (S_ID, S_X))
    I("s_add_u32 s%d, s%d, s%d" % (S_ID, S_ID, S_J))
    I("s_mov_b64 s[%d:%d], s[%d:%d]" % (S_DBG, S_DBG + 1, ptr(D_DBG), ptr(D_DBG) + 1))
    for i in range(4):
        I("v_mov_b32 v%d, -1" % (V_ONES + i))
    n, g, l, t0, t1, t2 = T, T + 1, T + 2, T + 4, T + 5, T + 6
    I("v_and_b32 v%d, 63, v0" % l)
    I("v_and_b32 v%d, 15, v0" % n)
    I("v_bfe_u32 v%d, v0, 4, 2" % g)
    I("v_lshlrev_b32 v%d, 4, v%d" % (V_LIN, l))
    I("v_lshlrev_b32 v%d, 3, v%d" % (V_L8, l))
    I("s_lshl_b32 s%d, s%d, 12" % (S_T1, S_W))
    I("v_add_u32 v%d, s%d, v%d" % (V_GLD, S_T1, V_LIN))
    I("s_xor_b32 s%d, s%d, 3" % (S_T2, S_W))
    I("s_lshl_b32 s%d, s%d, 4" % (S_T2, S_T2))
    if 'noperm' in ABL:
        I("s_mov_b32 s%d, 0" % S_T2)
    I("v_xor_b32 v%d, s%d, v%d" % (V_OLD, S_T2, V_GLD))
    I("v_add_u32 v%d, 16384, v%d" % (V_OLD, V_OLD))
    I("s_and_b32 s%d, s%d, 16" % (S_T2, S_T2))
    I("s_lshl_b32 s%d, s%d, 1" % (S_T2, S_T2))
    I("v_xor_b32 v%d, s%d, v%d" % (V_GLD, S_T2, V_GLD))
    I("v_mov_b32 v%d, 0xeeeeeeee" % V_IDX)
    I("v_mov_b32 v%d, 0x44444444" % t0)
    I("v_cndmask_b32 v%d, v%d, v%d, s[%d:%d]" % (V_IDX, V_IDX, t0, S_M8, S_M8 + 1))
    I("v_mov_b32 v%d, 0x03020706" % V_SEL)
    I("v_mov_b32 v%d, 0x05040100" % t0)
    I("v_cndmask_b32 v%d, v%d, v%d, s[%d:%d]" % (V_SEL, V_SEL, t0, S_EV, S_EV + 1))
    I("s_lshr_b32 s%d, s%d, 2" % (S_T1, S_J))
    I("s_lshl_b32 s%d, s%d, 12" % (S_T1, S_T1))
    I("s_add_u32 s%d, s%d, 32768" % (S_T1, S_T1))
    I("v_add_u32 v%d, s%d, v%d" % (V_QXLD, S_T1, V_LIN))
    I("s_and_b32 s%d, s%d, 1" % (S_T2, S_JQ))
    I("s_lshl_b32 s%d, s%d, 11" % (S_T2, S_T2))
    I("s_add_u32 s%d, s%d, s%d" % (S_T1, S_T1, S_T2))
    I("s_bfe_u32 s%d, s%d, 0x10001" % (S_T2, S_JQ))
    I("s_lshl_b32 s%d, s%d, 7" % (S_T2, S_T2))
    I("s_add_u32 s%d, s%d, s%d" % (S_T3, S_T1, S_T2))
    I("v_and_b32 v%d, 1, v%d" % (t0, g))
    I("v_lshlrev_b32 v%d, 6, v%d" % (V_KXW, t0))
    I("v_and_b32 v%d, 1, v%d" % (t0, n))
    I("v_lshl_add_u32 v%d, v%d, 4, v%d" % (V_KXW, t0, V_KXW))
    I("v_bfe_u32 v%d, v%d, 1, 2" % (t0, n))
    I("v_lshl_add_u32 v%d, v%d, 2, v%d" % (V_KXW, t0, V_KXW))
    I("s_and_b32 s%d, s%d, 1" % (S_T2, S_W))
    I("s_lshl_b32 s%d, s%d, 5" % (S_T2, S_T2))
    I("v_add_u32 v%d, s%d, v%d" % (V_KXW, S_T2, V_KXW))
    I("v_lshrrev_b32 v%d, 3, v%d" % (t0, n))
    I("v_and_b32 v%d, 2, v%d" % (t1, g))
    I("v_add_u32 v%d, v%d, v%d" % (t0, t0, t1))
    I("s_and_b32 s%d, s%d, 2" % (S_T2, S_W))
    I("s_lshl_b32 s%d, s%d, 1" % (S_T2, S_T2))
    I("v_add_u32 v%d, s%d, v%d" % (t0, S_T2, t0))
    I("v_lshl_add_u32 v%d, v%d, 8, v%d" % (V_QXST, t0, V_KXW))
    I("v_lshl_add_u32 v%d, v%d, 7, v%d" % (V_KXW, t0, V_KXW))
    I("v_add_u32 v%d, s%d, v%d" % (V_QXST, S_T3, V_QXST))
    I("v_lshrrev_b32 v%d, 3, v%d" % (t0, l))
    I("v_and_b32 v%d, 7, v%d" % (t1, l))
    I("v_lshlrev_b32 v%d, 8, v%d" % (V_H0, t0))
    I("v_lshl_add_u32 v%d, v%d, 4, v%d" % (V_H0, t1, V_H0))
    I("v_add_u32 v%d, s%d, v%d" % (V_H0, S_T3, V_H0))
    I("s_lshr_b32 s%d, s%d, 2" % (S_T0, S_ID))
    I("s_lshl_b32 s%d, s%d, 16" % (S_KVB, S_T0))
    I("s_and_b32 s%d, s%d, 3" % (S_T1, S_J))
    I("s_lshl_b32 s%d, s%d, 11" % (S_T2, S_T1))
    I("s_add_u32 s%d, s%d, 0x4000" % (S_T2, S_T2))
    I("v_add_u32 v%d, s%d, v%d" % (V_D2, S_T2, V_LIN))
    I("v_lshlrev_b32 v%d, 7, v%d" % (V_D1, n))
    I("v_and_b32 v%d, 1, v%d" % (t0, g))
    I("v_lshl_add_u32 v%d, v%d, 15, v%d" % (V_D1, t0, V_D1))
    I("s_lshl_b32 s%d, s%d, 11" % (S_T2, S_T1))
    I("v_add_u32 v%d, s%d, v%d" % (V_D1, S_T2, V_D1))
    if KB:
        I("v_or_b32 v%d, 0x8000, v%d" % (V_D1, V_D1))
        I("v_add_u32 v%d, 0x1000, v%d" % (V_B4, V_LIN))
    if SB:
        I("v_lshrrev_b32 v%d, 1, v%d" % (t0, g))
        I("v_lshlrev_b32 v%d, 14, v%d" % (t0, t0))
        I("v_and_b32 v%d, 0xffff7fff, v%d" % (t1, V_D1))
        I("v_add_u32 v%d, v%d, v%d" % (t1, t1, t0))
        I("v_cmp_lt_u32 vcc, 1, v%d" % g)
        I("s_nop 1")
        I("v_cndmask_b32 v%d, v%d, v%d, vcc" % (V_D1, V_D1, t1))
        for i in range(3):
            I("v_add_u32 v%d, 0x%x, v%d" % (V_B4 + i, (0x1000, 0x8000, 0x9000)[i], V_LIN))
    if TCHA == 1 or TS == 1:
        I("v_or_b32 v%d, 0x8000, v%d" % (V_H3, V_D1))
        I("v_xor_b32 v%d, 0x8000, v%d" % (V_D1, V_H3))
    else:
        I("v_mov_b32 v%d, v%d" % (V_H3, V_D1))
    I("s_cmp_lt_u32 s%d, 2" % S_W)
    I("s_cselect_b32 s%d, 0xf0000000, 0" % S_W01)
    I("s_cmp_lg_u32 s%d, 1" % S_W)
    I("s_cselect_b32 s%d, 0xf0000000, 0" % S_WT)
    I("s_lshr_b32 s%d, s%d, 1" % (S_T2, S_W))
    I("s_mul_i32 s%d, s%d, %d" % (S_KVL, S_T2, L_Q - L_KV))
    I("s_lshl_b32 s%d, s%d, 15" % (S_T2, S_T2))
    I("s_and_b32 s%d, s%d, 1" % (S_T3, S_W))
    I("s_lshl_b32 s%d, s%d, 12" % (S_T3, S_T3))
    I("s_add_u32 s%d, s%d, s%d" % (S_KVL, S_KVL, S_T3))
    I("s_add_u32 s%d, s%d, %d" % (S_KVL, S_KVL, L_KV))
    I("s_add_u32 s%d, s%d, s%d" % (S_T2, S_T2, S_T3))
    I("v_add_u32 v%d, s%d, v%d" % (V_D0, S_T2, V_LIN))
    I("s_lshl_b32 s%d, s%d, 11" % (S_KVL - 3, S_W))
    I("v_add_u32 v%d, s%d, v%d" % (V_KQ, S_KVL - 3, V_LIN))
    I("v_add_u32 v%d, 0x8000, v%d" % (V_KQ + 1, V_KQ))
    I("v_lshrrev_b32 v%d, 3, v%d" % (t0, l))
    I("v_lshl_add_u32 v%d, v%d, 7, v%d" % (V_H2, t0, V_QXLD))
    I("v_add_u32 v%d, 128, v%d" % (V_H2, V_H2))
    I("s_and_b32 s%d, s%d, 1" % (S_T2, S_W))
    I("s_lshl_b32 s%d, s%d, 12" % (S_T2, S_T2))
    I("v_add_u32 v%d, s%d, v%d" % (V_XQA, S_T2, V_LIN))
    I("s_lshl_b32 s%d, s%d, 10" % (S_T1, S_T1))
    I("s_add_u32 s%d, s%d, 0xc000" % (S_T1, S_T1))
    I("v_add_u32 v%d, s%d, v%d" % (V_H1, S_T1, V_XQA))
    I("v_lshlrev_b32 v%d, 7, v%d" % (V_XKA, g))
    for bit, sh in ((2, 6), (3, 5), (0, 4)):
        I("v_bfe_u32 v%d, v0, %d, 1" % (t0, bit))
        I("v_lshl_add_u32 v%d, v%d, %d, v%d" % (V_XKA, t0, sh, V_XKA))
    I("v_and_b32 v%d, 7, v%d" % (t0, n))
    I("v_lshlrev_b32 v%d, 4, v%d" % (V_OXST, t0))
    I("v_lshl_add_u32 v%d, v%d, 7, v%d" % (V_OXST, g, V_OXST))
    I("s_lshl_b32 s%d, s%d, 9" % (S_T1, S_J))
    I("s_add_u32 s%d, s%d, 16384" % (S_T2, S_T1))
    I("v_add_u32 v%d, s%d, v%d" % (V_OXST, S_T2, V_OXST))
    I("v_lshrrev_b32 v%d, 3, v%d" % (t0, n))
    I("v_and_b32 v%d, 2, v%d" % (t1, g))
    I("v_add_u32 v%d, v%d, v%d" % (t0, t0, t1))
    I("v_lshlrev_b32 v%d, 7, v%d" % (V_MEMST, t0))
    I("v_and_b32 v%d, 1, v%d" % (t0, g))
    I("v_lshl_add_u32 v%d, v%d, 6, v%d" % (V_MEMST, t0, V_MEMST))
    I("v_bfe_u32 v%d, v%d, 1, 2" % (t0, n))
    I("v_lshl_add_u32 v%d, v%d, 2, v%d" % (V_MEMST, t0, V_MEMST))
    I("s_lshl_b32 s%d, s%d, 9" % (S_T1, S_JM))
    I("s_lshl_b32 s%d, s%d, 4" % (S_T2, S_W))
    I("s_add_u32 s%d, s%d, s%d" % (S_T1, S_T1, S_T2))
    I("v_add_u32 v%d, s%d, v%d" % (V_MEMST, S_T1, V_MEMST))
    I("v_bfe_u32 v%d, v%d, 1, 3" % (t0, l))
    I("v_and_b32 v%d, 1, v%d" % (t1, l))
    I("v_lshlrev_b32 v%d, 11, v%d" % (V_M0LD, t0))
    I("v_lshl_add_u32 v%d, v%d, 3, v%d" % (V_M0LD, t1, V_M0LD))
    I("v_lshl_add_u32 v%d, v%d, 4, v%d" % (V_M0LD, g, V_M0LD))
    I("s_lshl_b32 s%d, s%d, 6" % (S_T1, S_JM))
    I("v_add_u32 v%d, s%d, v%d" % (V_M0LD, S_T1, V_M0LD))
    I("v_lshlrev_b32 v%d, 2, v%d" % (t0, l))
    for e in range(3):
        I("s_xor_b32 s%d, s%d, %d" % (S_T1, S_W, e ^ 3))
        I("s_mul_i32 s%d, s%d, 768" % (S_T1, S_T1))
        I("s_add_u32 s%d, s%d, %d" % (S_T1, S_T1, e * 256))
        I("v_add_u32 v%d, s%d, v%d" % (V_ROW + e, S_T1, t0))
        I("v_lshlrev_b32 v%d, 1, v%d" % (V_RQW + e, V_ROW + e))
    I("s_mul_i32 s%d, s%d, 768" % (S_T1, S_W))
    I("v_add_u32 v%d, s%d, v%d" % (V_ROR, S_T1, t0))
    I("v_lshlrev_b32 v%d, 1, v%d" % (V_RQR, V_ROR))
    I("s_lshl_b32 s%d, s%d, 10" % (S_T1, S_W))
    I("v_add_u32 v%d, s%d, v%d" % (V_RW, S_T1, V_LIN))


def dbg_wait(a, word, target, mask=None):
    I = a.I
    I("v_mov_b32 v%d, %s" % (V_SMP, word * 4 if isinstance(word, int) else word))
    rt, ok = a.uid("L_kvw"), a.uid("L_kvok")
    I("s_branch %s_c" % rt)
    a.L(rt)
    I("global_load_dword v%d, v%d, s[%d:%d] sc1" % (V_SMP + 1, V_SMP, S_DBG, S_DBG + 1))
    for l in spin_lines():
        I(l)
    I("s_waitcnt vmcnt(0)")
    a.L(rt + "_c")
    I("v_readfirstlane_b32 s%d, v%d" % (S_T0, V_SMP + 1))
    if mask:
        I("s_and_b32 s%d, s%d, 0x%x" % (S_T1, S_T0, mask))
    I("s_cmp_ge_u32 s%d, %d" % (S_T1 if mask else S_T0, target))
    I("s_cbranch_scc1 %s" % ok)
    I("s_sleep 16")
    I("s_branch %s" % rt)
    a.L(ok)


def relay_wait(a, g):
    I = a.I
    lp, lo, ok = a.uid("L_rl"), a.uid("L_rlo"), a.uid("L_rlok")
    I("v_mov_b32 v%d, 0" % V_SMP)
    I("s_lshl2_add_u32 s%d, s%d, s%d" % (S_T0, S_J, S_W))
    I("s_cmp_lg_u32 s%d, 5" % S_T0)
    I("s_cbranch_scc1 %s" % lo)
    a.L(lp)
    I("s_load_dword s%d, s[%d:%d], %d glc" % (S_T0, S_DBG, S_DBG + 1, (D_EV + g) * 4))
    for l in spin_lines():
        I(l)
    I("s_waitcnt lgkmcnt(0)")
    I("s_cmp_lt_u32 s%d, %d" % (S_T0, NKV))
    I("s_cbranch_scc1 %s" % lp)
    I("v_mov_b32 v%d, %d" % (V_SMP + 1, g + 1))
    I("buffer_store_dword v%d, v%d, %s, s%d offen offset:128" % (V_SMP + 1, V_SMP, W, S_LF))
    I("s_branch %s" % ok)
    a.L(lo)
    I("buffer_load_dword v%d, v%d, %s, s%d offen offset:128 sc1" % (V_SMP + 1, V_SMP, W, S_LF))
    for l in spin_lines():
        I(l)
    I("s_waitcnt vmcnt(0)")
    I("v_readfirstlane_b32 s%d, v%d" % (S_T0, V_SMP + 1))
    I("s_cmp_ge_u32 s%d, %d" % (S_T0, g + 1))
    I("s_cbranch_scc1 %s" % ok)
    I("s_sleep 1")
    I("s_branch %s" % lo)
    a.L(ok)


def px_setup(a):
    I = a.I
    dbg_wait(a, D_CAL, 15, 0xff)
    I("s_cmp_ge_u32 s%d, 0x800" % S_T0)
    I("s_cselect_b32 s%d, 0x2000, 0" % S_POL)
    I("s_add_u32 s%d, s%d, 0x%x" % (S_PXB, S_POL, X_PXF))
    I("s_add_u32 s%d, s%d, s%d" % (S_KVB, S_KVB, S_POL))
    t = V_T
    I("v_and_b32 v%d, 63, v0" % t)
    I("v_lshlrev_b32 v%d, 2, v%d" % (t, t))
    I("s_lshr_b32 s%d, s%d, 3" % (S_T2, S_J))
    I("s_lshl_b32 s%d, s%d, 14" % (S_T2, S_T2))
    I("s_and_b32 s%d, s%d, 7" % (S_T3, S_J))
    I("s_lshl_b32 s%d, s%d, 10" % (S_T3, S_T3))
    I("s_add_u32 s%d, s%d, s%d" % (S_T2, S_T2, S_T3))
    I("s_lshl_b32 s%d, s%d, 8" % (S_T3, S_W))
    I("s_add_u32 s%d, s%d, s%d" % (S_T2, S_T2, S_T3))
    for xo in range(4):
        I("s_xor_b32 s%d, s%d, %d" % (S_T1, S_X, xo))
        I("s_lshl_b32 s%d, s%d, 16" % (S_T1, S_T1))
        I("s_add_u32 s%d, s%d, s%d" % (S_T1, S_T1, S_T2))
        I("v_add_u32 v%d, s%d, v%d" % (V_PXST if xo == 0 else V_PXLD + xo - 1, S_T1, t))


def load_weights(a, filler, mid, late):
    I = a.I
    T = 160
    S_T2, S_T3 = 80, 81
    a.C("---- load weights")
    t0, t1, va, vq, vg, vg2, vr_, vw = T, T + 1, T + 2, T + 3, T + 5, T + 6, T + 7, T + 11
    I("s_lshl_b32 s%d, s%d, 10" % (S_T0, S_X))
    I("s_lshr_b32 s%d, s%d, 2" % (S_T1, S_J))
    I("s_lshl_b32 s%d, s%d, 7" % (S_T1, S_T1))
    I("s_add_u32 s%d, s%d, s%d" % (S_T0, S_T0, S_T1))
    I("v_bfe_u32 v%d, v0, 5, 1" % t0)
    I("v_lshlrev_b32 v%d, 1, v%d" % (va, t0))
    I("v_bfe_u32 v%d, v0, 3, 1" % t0)
    I("v_add_u32 v%d, v%d, v%d" % (va, va, t0))
    I("v_bfe_u32 v%d, v0, 4, 1" % t0)
    I("v_lshl_add_u32 v%d, v%d, 3, v%d" % (va, t0, va))
    I("v_lshrrev_b32 v%d, 6, v0" % t0)
    I("v_lshl_add_u32 v%d, v%d, 8, v%d" % (va, t0, va))
    I("v_and_b32 v%d, 7, v0" % t1)
    I("v_lshlrev_b32 v%d, 13, v%d" % (vq, va))
    I("v_lshl_add_u32 v%d, v%d, 4, v%d" % (vq, t1, vq))
    I("s_and_b32 s%d, s%d, 1" % (S_T1, S_JQ))
    I("s_lshl_b32 s%d, s%d, 6" % (S_T1, S_T1))
    I("s_add_u32 s%d, s%d, s%d" % (S_T1, S_T1, S_T0))
    I("s_lshl_b32 s%d, s%d, 1" % (S_T1, S_T1))
    I("v_add_u32 v%d, s%d, v%d" % (vq, S_T1, vq))
    I("v_add_u32 v%d, 0x8000, v%d" % (vq + 1, vq))
    I("v_bfe_u32 v%d, v0, 4, 2" % t0)
    I("v_lshlrev_b32 v%d, 1, v%d" % (va, t0))
    I("v_bfe_u32 v%d, v0, 2, 1" % t0)
    I("v_add_u32 v%d, v%d, v%d" % (va, va, t0))
    I("v_bfe_u32 v%d, v0, 3, 1" % t0)
    I("v_lshl_add_u32 v%d, v%d, 3, v%d" % (va, t0, va))
    I("v_lshrrev_b32 v%d, 6, v0" % t0)
    I("v_lshl_add_u32 v%d, v%d, 8, v%d" % (va, t0, va))
    I("v_and_b32 v%d, 3, v0" % t1)
    I("v_lshlrev_b32 v%d, 13, v%d" % (vg, va))
    I("v_lshl_add_u32 v%d, v%d, 4, v%d" % (vg, t1, vg))
    I("s_and_b32 s%d, s%d, 3" % (S_T1, S_J))
    I("s_lshl_b32 s%d, s%d, 5" % (S_T1, S_T1))
    I("s_add_u32 s%d, s%d, s%d" % (S_T1, S_T1, S_T0))
    I("s_lshl_b32 s%d, s%d, 1" % (S_T1, S_T1))
    I("v_add_u32 v%d, s%d, v%d" % (vg, S_T1, vg))
    I("v_bfe_u32 v%d, v0, 2, 1" % vg2)
    for bit, sh in ((4, 1), (3, 2), (5, 4)):
        I("v_bfe_u32 v%d, v0, %d, 1" % (t0, bit))
        I("v_lshl_add_u32 v%d, v%d, %d, v%d" % (vg2, t0, sh, vg2))
    I("v_lshrrev_b32 v%d, 6, v0" % t0)
    I("v_lshl_add_u32 v%d, v%d, 8, v%d" % (vg2, t0, vg2))
    I("s_lshl_b32 s%d, s%d, 10" % (S_T1, S_X))
    I("v_add_u32 v%d, s%d, v%d" % (vg2, S_T1, vg2))
    I("v_lshlrev_b32 v%d, 11, v%d" % (vg2, vg2))
    I("v_lshl_add_u32 v%d, v%d, 4, v%d" % (vg2, t1, vg2))
    I("s_lshl_b32 s%d, s%d, 6" % (S_T1, S_JM))
    I("v_add_u32 v%d, s%d, v%d" % (vg2, S_T1, vg2))
    I("s_lshl_b32 s%d, s%d, 15" % (S_T2, S_W))
    I("s_add_u32 s%d, s%d, %d" % (S_T2, S_T2, L_STAGE))
    RV_, RO_ = 32, 96

    def safe(i):
        for l in filler[i:]:
            op = l.split()[0]
            if op.startswith(("s_cselect", "s_addc", "s_cmov", "s_cbranch")):
                return False
            if op.startswith(("s_cmp", "s_bitcmp", "s_add", "s_and", "s_lsh", "s_xor", "s_or", "s_bfe", "s_sub")):
                return True
        return True
    cut = [next(i for i in range(p * len(filler) // 8, len(filler) + 1) if safe(i)) for p in range(9)]
    I("s_bitcmp1_b32 s%d, 1" % S_JQ)
    I("s_cselect_b32 s%d, s%d, s%d" % (S_TMPSRD, ptr(B_WK), ptr(B_WQ)))
    I("s_cselect_b32 s%d, s%d, s%d" % (S_TMPSRD + 1, ptr(B_WK) + 1, ptr(B_WQ) + 1))
    I("s_and_b32 s%d, s%d, 0xffff" % (S_TMPSRD + 1, S_TMPSRD + 1))
    I("s_mov_b32 s%d, 0x%x" % (S_TMPSRD + 2, 8 * MB))
    I("s_mov_b32 s%d, 0x00020000" % (S_TMPSRD + 3))
    a.srd(4, ptr(B_WV), 0, 8 * MB)
    a.srd(40, ptr(B_WO), 0, 8 * MB)
    for p in range(8):
        for l in filler[cut[p]:cut[p + 1]] if p else []:
            a.raw(l)
        if p == 2:
            lc = a.uid("L_cal")
            I("s_or_b32 s76, s%d, s%d" % (S_X, S_W))
            I("s_or_b32 s76, s76, s2")
            I("s_cbranch_scc1 %s" % lc)
            I("s_waitcnt lgkmcnt(0)")
            I("s_lshr_b32 s74, s95, 8")
            I("s_cmp_ge_u32 s74, 15")
            I("s_cbranch_scc1 %s" % lc)
            kvs.calibrate(a, 74, False, 76, 64)
            a.L(lc)
        if p == 6:
            kvs.ROLE[1](a, (S_X, 0), S_W, 76, ABORT[0])
        if p >= 6:
            I("s_waitcnt vmcnt(44)")
        for i in range(4 * p, 4 * p + 4):
            I("s_add_u32 m0, s%d, %d" % (S_T2, i * 1024))
            I("s_mov_b32 s%d, %d" % (S_T3, (i >> 1) * 16 * 8192))
            I("buffer_load_dwordx4 v%d, s[%d:%d], s%d offen%s lds" % (vq + (i & 1), S_TMPSRD, S_TMPSRD + 3, S_T3, WNT))
        for i in range(2 * p, 2 * p + 2):
            I("s_mov_b32 s%d, %d" % (S_T3, i * 16 * 8192))
            I("buffer_load_dwordx4 v[%d:%d], v%d, s[4:7], s%d offen%s" % (RV_ + 4 * i, RV_ + 4 * i + 3, vg, S_T3, WNT))
            I("s_mov_b32 s%d, %d" % (S_T3, (32 * (i >> 1) + 8 * (i & 1)) * 2048))
            I("buffer_load_dwordx4 v[%d:%d], v%d, s[40:43], s%d offen%s" % (RO_ + 4 * i, RO_ + 4 * i + 3, vg2, S_T3, WNT))
        if p == 0:
            for l in filler[:cut[1]]:
                a.raw(l)
    mid()
    I("v_bfe_u32 v%d, v0, 4, 2" % t0)
    I("v_lshlrev_b32 v%d, 3, v%d" % (t0, t0))
    I("v_bfe_u32 v%d, v0, 2, 2" % va)
    I("v_add_u32 v%d, v%d, v%d" % (t0, t0, va))
    I("v_and_b32 v%d, 3, v0" % t1)
    I("v_bfe_u32 v%d, v0, 3, 1" % vq)
    I("v_lshlrev_b32 v%d, 7, v%d" % (va, t0))
    I("v_and_b32 v%d, 1, v0" % (vq + 1))
    I("v_lshl_add_u32 v%d, v%d, 5, v%d" % (va, vq + 1, va))
    I("v_bfe_u32 v%d, v0, 1, 1" % (vq + 1))
    I("v_lshl_add_u32 v%d, v%d, 3, v%d" % (va, vq + 1, va))
    I("v_lshl_add_u32 v%d, v%d, 4, v%d" % (va, vq, va))
    for X in range(2):
        I("s_lshr_b32 s%d, s%d, 1" % (S_T1, S_W))
        I("s_xor_b32 s%d, s%d, %d" % (S_T1, S_T1, X ^ 1))
        I("s_lshl_b32 s%d, s%d, 6" % (S_T1, S_T1))
        I("s_add_u32 s%d, s%d, s%d" % (S_T1, S_T1, S_T2))
        I("v_add_u32 v%d, s%d, v%d" % (vr_ + 2 * X, S_T1, va))
        I("v_xor_b32 v%d, 256, v%d" % (vr_ + 2 * X + 1, vr_ + 2 * X))
    for b in range(4):
        I("s_waitcnt vmcnt(%d)" % min(44, 9 + 16 * (3 - b)))
        for t in range(4):
            d = a_qk(t, b)
            for u, o in enumerate((0, 4, 32, 36)):
                I("ds_read_b64_tr_b16 a[%d:%d], v%d offset:%d" % (d + 2 * u, d + 2 * u + 1, vr_ + t, (b * 64 + o) * 128))
            if t & 1:
                I("s_waitcnt lgkmcnt(0)")
    I("v_add_u32 v%d, s%d, v%d" % (vw, S_T2, V_LIN))
    I("v_lshlrev_b32 v%d, 6, v%d" % (va, t0))
    I("v_add_u32 v%d, s%d, v%d" % (va, S_T2, va))
    I("v_lshl_add_u32 v%d, v%d, 3, v%d" % (vr_ + 2, t1, va))
    I("v_lshl_add_u32 v%d, v%d, 5, v%d" % (vr_ + 2, vq, vr_ + 2))
    I("v_xor_b32 v%d, 128, v%d" % (vr_ + 3, vr_ + 2))
    for vb, areg, vra, half, cnt in ((RV_, a_v, vr_ + 2, 0, 0), (RO_, a_wo, vr_ + 2, 1, 0)):
        if half == 0:
            I("s_waitcnt vmcnt(0)")
            late()
        for i in range(16):
            I("ds_write_b128 v%d, v[%d:%d] offset:%d" % (vw, vb + 4 * i, vb + 4 * i + 3, half * 16384 + i * 1024))
        I("s_waitcnt lgkmcnt(0)")
        for b in range(4):
            for t in range(2):
                d = areg(t, b)
                for u, o in enumerate((0, 4, 32, 36)):
                    I("ds_read_b64_tr_b16 a[%d:%d], v%d offset:%d" % (d + 2 * u, d + 2 * u + 1, vra + t, half * 16384 + (b * 64 + o) * 64))
            I("s_waitcnt lgkmcnt(0)")


def blk_addr(d, delta):
    out = ["s_add_u32 s%d, s%d, %d" % (S_T1, S_STEP, delta)]
    if delta >= 0:
        out += ["s_min_u32 s%d, s%d, %d" % (S_T1, S_T1, 0 if 'samekv' in ABL else 63)]
    return out + ["s_lshl_b32 s%d, s%d, 21" % (d, S_T1), "s_lshl_b32 s%d, s%d, 13" % (S_T1, S_T1), "s_and_b32 s%d, s%d, 0x2000" % (S_T1, S_T1),
                  "s_xor_b32 s%d, s%d, s%d" % (S_T1, S_T1, S_KVB), "s_add_u32 s%d, s%d, s%d" % (d, d, S_T1)]


def kv_dma(w):
    if 'nopf' in ABL:
        return []
    ld = lambda v, o: "buffer_load_dwordx4 v%d, %s, s%d offen offset:%d lds" % (v, W, S_KV, o)
    if w == 't':
        return ["buffer_load_dword v%d, v%d, %s, s%d offen" % (V_SMP + 2, V_D1, W, S_KV)]
    grp = lambda base, v, o0, n: ["s_mov_b32 m0, %d" % base, "s_nop 0"] + [ld(v, (o0 + i) * 1024) for i in range(n)]
    if w == 'kb':
        return grp(L_KV, V_LIN, 0, 4) + grp(L_KV + 4096, V_B4, 0, 4)
    if w == 'b1':
        return grp(L_KV, V_LIN, 0, 4) + grp(L_KV + 4096, V_B4, 0, 2)
    if w == 'b2':
        return grp(L_Q, V_B4 + 1, 0, 4) + grp(L_Q + 4096, V_B4 + 2, 0, 3)
    if w == 'b3':
        return grp(L_KV + 4096, V_B4, 2, 2) + grp(L_KV + 8192, V_D2, 0, 2) + grp(L_Q + 4096, V_B4 + 2, 3, 1)
    if w == 't2':
        return ["buffer_load_dword v%d, v%d, %s, s%d offen sc1" % (V_SMP + 2, V_D1, W, S_TCH)]
    if w in ('k', 'q'):
        return ["s_add_u32 m0, s%d, %d" % (S_KVL - 3, L_KV if w == 'k' else L_Q)] + [ld(V_KQ + (w == 'q'), i * 1024) for i in range(2)]
    if w == 'v':
        return ["s_mov_b32 m0, %d" % (L_KV + 8192), "s_nop 0"] + [ld(V_D2, i * 1024) for i in range(2)]
    return ["s_mov_b32 m0, s%d" % S_KVL, "s_nop 0"] + [ld(V_D0, i * 1024) for i in range(4)]


def xatt1():
    kf = lambda i: V_KF + 4 * i
    o = []
    for c in range(4):
        o += ["ds_read_b128 v[%d:%d], v%d offset:%d" % (V_XQ + 4 * c, V_XQ + 4 * c + 3, V_XQA, L_Q + c * 1024)]
        o += ["ds_read_b128 v[%d:%d], v%d offset:%d" % (kf(2 * c + t), kf(2 * c + t) + 3, V_LIN, L_KV + (t * 4 + c) * 1024) for t in range(2)]
    o += ["ds_read_b128 v[%d:%d], v%d offset:%d" % (V_VT + 4 * t, V_VT + 4 * t + 3, V_LIN, L_KV + 8192 + t * 1024) for t in range(2)]
    for c in range(4):
        o += ["s_waitcnt lgkmcnt(%d)" % (11 - 3 * c)]
        o += ["v_mfma_f32_16x16x32_bf16 v[%d:%d], v[%d:%d], v[%d:%d], %s" % (d, d + 3, kf(2 * c + t), kf(2 * c + t) + 3, V_XQ + 4 * c, V_XQ + 4 * c + 3, "0" if c == 0 else "v[%d:%d]" % (d, d + 3))
              for t, d in enumerate((V_S0, V_S1))]
    post = ["v_cvt_pk_bf16_f32 v%d, 0, v%d" % (v, v) for v in range(V_S0, V_S0 + 8)]
    post += ["v_pk_mul_f32 v[%d:%d], v[%d:%d], s[%d:%d]" % (p, p + 1, p, p + 1, S_SCL, S_SCL + 1) for p in range(V_S0, V_S0 + 8, 2)]
    post += post[:8]
    post += [pk("add", V_S0 + i, V_S0 + i, V_XB + i) for i in range(0, 8, 2)]
    m, t = V_XT, V_XT + 1
    post += ["v_max3_f32 v%d, v%d, v%d, v%d" % (m, V_S0, V_S0 + 1, V_S0 + 2), "v_max3_f32 v%d, v%d, v%d, v%d" % (t, V_S0 + 3, V_S1, V_S1 + 1),
             "v_max3_f32 v%d, v%d, v%d, v%d" % (m, m, V_S1 + 2, V_S1 + 3), "v_max_f32 v%d, v%d, v%d" % (m, m, t)]
    return o, post


def xatt2():
    SM, m, t, sm = V_S2, V_XT, V_XT + 1, V_XT + 2
    o = ["ds_read_b128 v[%d:%d], v%d offset:%d" % (V_XKM + 4 * c, V_XKM + 4 * c + 3, V_XKA, L_QXC + c * 512) for c in range(4)]
    for c in range(4):
        o += ["s_waitcnt lgkmcnt(%d)" % (3 - c),
              "v_mfma_f32_16x16x32_bf16 v[%d:%d], v[%d:%d], v[%d:%d], %s" % (SM, SM + 3, V_XKM + 4 * c, V_XKM + 4 * c + 3, V_XQ + 4 * c, V_XQ + 4 * c + 3, "0" if c == 0 else "v[%d:%d]" % (SM, SM + 3))]
    rn = ["v_cvt_pk_bf16_f32 v%d, 0, v%d" % (v, v) for v in (SM, SM + 1)]
    o += ["s_nop 7"] + rn + ["v_pk_mul_f32 v[%d:%d], v[%d:%d], s[%d:%d]" % (SM, SM + 1, SM, SM + 1, S_SCL, S_SCL + 1)] + rn
    o += ["v_max3_f32 v%d, v%d, v%d, v%d" % (m, m, SM, SM + 1)]

    def xred(op, v):
        r = []
        for sw in ("v_permlane16_swap_b32", "v_permlane32_swap_b32"):
            r += ["v_mov_b32 v%d, v%d" % (t, v), "s_nop 1", "%s v%d, v%d" % (sw, v, t), "%s v%d, v%d, v%d" % (op, v, v, t)]
        return r
    prs = [V_S0, V_S0 + 2, V_S1, V_S1 + 2, SM]
    o += xred("v_max_f32", m) + ["v_mul_f32 v%d, s%d, v%d" % (m, S_C, m)]
    o += ["v_pk_fma_f32 v[%d:%d], v[%d:%d], s[%d:%d], v[%d:%d] op_sel_hi:[1,1,0] neg_lo:[0,0,1] neg_hi:[0,0,1]" % (p, p + 1, p, p + 1, S_C, S_C + 1, m, m + 1) for p in prs]
    o += ["v_exp_f32 v%d, v%d" % (v, v) for v in range(V_S0, V_S0 + 10)]
    o += [pk("add", sm, V_S0, V_S0 + 2), pk("add", sm + 2, V_S1, V_S1 + 2), pk("add", sm, sm, SM), pk("add", sm, sm, sm + 2), "v_add_f32 v%d, v%d, v%d" % (sm, sm, sm + 1)]
    o += xred("v_add_f32", sm) + ["v_rcp_f32 v%d, v%d" % (sm, sm), "s_nop 0"]
    o += [pk("mul", p, p, sm, " op_sel_hi:[1,0]") for p in prs]
    o += ["v_cvt_pk_bf16_f32 v%d, v%d, v%d" % (V_P + i, V_S0 + 2 * i, V_S0 + 2 * i + 1) for i in range(4)]
    o += ["v_cvt_pk_bf16_f32 v%d, v%d, v%d" % (V_P + 4, SM, SM + 1), "v_cvt_pk_bf16_f32 v%d, v%d, v%d" % (V_P + 7, SM, SM + 1)]
    o += ["v_mfma_f32_16x16x32_bf16 v[%d:%d], v[%d:%d], v[%d:%d], 0" % (V_O + 4 * tt, V_O + 4 * tt + 3, V_VT + 4 * tt, V_VT + 4 * tt + 3, V_P, V_P + 3) for tt in range(2)]
    o += ["v_mfma_f32_16x16x16_bf16 v[%d:%d], v[%d:%d], v[%d:%d], v[%d:%d]" % (
        V_O + 4 * tt, V_O + 4 * tt + 3, V_VM, V_VM + 1, V_P + 4 + 2 * tt, V_P + 5 + 2 * tt, V_O + 4 * tt, V_O + 4 * tt + 3) for tt in range(2)]
    fin = ["v_cvt_pk_bf16_f32 v%d, v%d, v%d" % (V_O + i, V_O + 2 * i, V_O + 2 * i + 1) for i in range(4)]
    return o, fin


def smf(c, areg, m):
    return "v_smfmac_f32_16x16x64_bf16 v[%d:%d], v[%d:%d], a[%d:%d], v%d" % (c, c + 3, m, m + 3, areg, areg + 7, V_IDX)


def pk(op, d, x, y, extra=""):
    return "v_pk_%s_f32 v[%d:%d], v[%d:%d], v[%d:%d]%s" % (op, d, d + 1, x, x + 1, y, y + 1, extra)


def slot_update():
    out = ["s_add_u32 s%d, s%d, 0x40000" % (S_REL, S_REL),
           "s_and_b32 s%d, s%d, 0xc0000" % (S_REL, S_REL),
           "s_xor_b32 s%d, s%d, 0x80000" % (S_T0, S_REL),
           "s_add_u32 s%d, s%d, s%d" % (S_POI, S_EXB, S_T0)]
    out += ["s_lshl_b32 s%d, s%d, 19" % (S_PX0, S_STEP),
            "s_lshl_b32 s%d, s%d, 11" % (S_T0, S_STEP),
            "s_and_b32 s%d, s%d, 0x2000" % (S_T0, S_T0),
            "s_xor_b32 s%d, s%d, s%d" % (S_T0, S_T0, S_PXB),
            "s_add_u32 s%d, s%d, s%d" % (S_PX0, S_PX0, S_T0),
            "s_add_u32 s%d, s%d, 0x40000" % (S_PX1, S_PX0)]
    out += ["s_add_u32 s%d, s%d, 0x40000" % (S_T0, S_REL),
            "s_and_b32 s%d, s%d, 0xc0000" % (S_T0, S_T0),
            "s_add_u32 s%d, s%d, s%d" % (S_NXT, S_EXB, S_T0)]
    return out


STAMPF = [None]


def step_body(a, name, stamp0):
    I = a.I
    STAMPF[0] = stamp0
    stamp = (lambda i: None if i in (1, 2, 8, 7) else stamp0(i)) if os.environ.get("GST") else stamp0
    loop, done = name + "_loop", name + "_done"
    lhelp, lb4 = a.uid("L_help"), a.uid("L_b4")
    a.L(loop)
    stamp(0)
    a.C("==== Q phase")
    zero = ["v_mov_b32 v%d, 0" % (V_AQ + i) for i in range(16)]
    PADW = list(zero) if E("PADP", 0) >= 16 else []
    XN2 = E("XN2", 0)
    xt = xatt2()[0][-XN2:] if XN2 else []
    work = ["s_mov_b32 s%d, s%d" % (S_CUR, S_NXT)] + xt + ([] if PADW else zero) + slot_update()
    if OSTA:
        work += xatt2()[1] + blk_addr(S_KM, -1) + ["s_or_b32 s%d, s%d, s%d" % (S_KM, S_KM, S_W01)]
    if TCHA:
        work += blk_addr(S_KV, 1) + ["s_cmp_eq_u32 s%d, 0" % S_STEP, "s_cselect_b32 s%d, 0x%x, s%d" % (S_T1, 0xf0000000, S_WT), "s_or_b32 s%d, s%d, s%d" % (S_KV, S_KV, S_T1)]
    fill(a, work, max(PRE_Q, 1))
    loads = ["buffer_load_dwordx4 v[%d:%d], v%d, %s, s%d offen offset:%d sc1" % (V_M + 4 * b, V_M + 4 * b + 3, V_GLD, W, S_CUR, b * 1024) for b in range(4)]
    for b in range(4):
        I(loads[b])
        fill(a, work, PACE if b < 3 else len(work))
    ver, vbr = gather_fifo(a, "q", loads, [V_AQ, V_AQ + 4], lambda k, ty, b: a_qk(2 * k + ty, b), [V_AV])
    stamp(1)
    vm = [smf(V_AV, a_v(t, b), (V_M, V_MR)[t] + 4 * b) for b in range(4) for t in range(2)]
    for l in ver[:4]:
        I(l)
    I("ds_write_b64 v%d, v[%d:%d] offset:%d" % (V_RQW, V_AQ, V_AQ + 1, L_RQK))
    I("ds_write_b64 v%d, v[%d:%d] offset:%d" % (V_RQW + 1, V_AQ + 2, V_AQ + 3, L_RQK))
    for l in ver[4:6]:
        I(l)
    I("ds_write_b64 v%d, v[%d:%d] offset:%d" % (V_RQW + 2, V_AQ + 4, V_AQ + 5, L_RQK))
    kd_ = kv_dma('k') if 'A' in KQW else []
    for l in kd_[:1] + ver[6:] + kd_[1:]:
        I(l)
    for _ in range(VPRE):
        I(vm.pop(0))
    I(vbr)
    I("s_waitcnt lgkmcnt(0)")
    I("s_barrier")
    for i in range(3):
        I("ds_read_b64 v[%d:%d], v%d offset:%d" % (V_R + 2 * i, V_R + 2 * i + 1, V_RQR, L_RQK + i * 512))
    if OSTA and 'nopub' not in ABL:
        I("buffer_store_dwordx4 v[%d:%d], v%d, %s, s%d offen sc1" % (V_O, V_O + 3, V_H1, W, S_KM))
    if TCHA:
        I("buffer_load_dword v%d, v%d, %s, s%d offen" % (V_SMP + 2, V_H3, W, S_KV))
    for _ in range(VMID):
        I(vm.pop(0))
    A = V_AQ + 6
    I("s_waitcnt lgkmcnt(2)")
    I(pk("add", A, A, V_R))
    I("s_waitcnt lgkmcnt(0)")
    I(pk("add", V_R + 2, V_R + 2, V_R + 4))
    I(pk("add", A, A, V_R + 2))
    I("v_cvt_pk_bf16_f32 v%d, v%d, v%d" % (A, A, A + 1))
    I("s_cmp_lg_u32 s%d, 0" % S_W)
    I("s_nop 0")
    I("v_mov_b32_dpp v%d, v%d quad_perm:[1,0,3,2] row_mask:0xf bank_mask:0xf" % (A + 1, A))
    I("v_perm_b32 v%d, v%d, v%d, v%d" % (A, A + 1, A, V_SEL))
    I("v_min_u32 v%d, 0xfffffffe, v%d" % (A, A))
    I("buffer_store_dword v%d, v%d, %s, s%d offen" % (A, V_QXST, W, S_CUR))
    late = len(vm) > 0
    for l in vm:
        I(l)
    if late:
        I("s_nop 7")
    I("ds_write_b128 v%d, v[%d:%d] offset:%d" % (V_RW, V_AV, V_AV + 3, L_RV))
    I("s_cbranch_scc1 %s" % lhelp)
    stamp(2)
    a.C("==== S phase, wave 0")
    fill(a, [], PRE_S)
    NS = E("NSET", 3)
    ql = [["buffer_load_dwordx4 v[%d:%d], v%d, %s, s%d offen offset:%d sc1" % (q + 4 * c, q + 4 * c + 3, V_QXLD, W, S_CUR, c * 1024) for c in range(4)] for q in V_QS[:NS]]
    for l in ql[0]:
        I(l)
    I("s_waitcnt %slgkmcnt(0)" % ("vmcnt(%d) " % (5 + OSTA + (TCHA > 0)) if 'A' in KQW else ""))
    I("s_barrier")
    work = ["ds_read_b128 v[%d:%d], v%d offset:%d" % (V_KF + 4 * i, V_KF + 4 * i + 3, V_LIN, L_KV + i * 1024) for i in range(10)]
    for k in range(1, NS):
        fill(a, work, GAP_S - (4 if k == 1 else 0))
        for l in ql[k]:
            I(l)
    for l in work:
        I(l)
    I("s_waitcnt lgkmcnt(0)")
    lsd = a.uid("L_sd")
    ror = lambda d, s, bm: "v_mov_b32_dpp v%d, v%d row_ror:8 row_mask:0xf bank_mask:0x%x" % (d, s, bm)
    slab = lambda k, c: "%s_%d_%d" % (lsd, k, c)
    for k in range(NS + 1):
        out, stubs = [], []
        for c in range(4):
            r = V_QS[k % NS] + 4 * c
            dst = V_SC[c] if c < 3 else V_S0
            mf = lambda i, ar_: "    v_mfma_f32_16x16x32_bf16 v[%d:%d], v[%d:%d], v[%d:%d], %s" % (
                dst + 4 * i, dst + 4 * i + 3, ar_, ar_ + 3, r, r + 3, "0" if c == 0 else "v[%d:%d]" % (V_SC[c - 1] + 4 * i, V_SC[c - 1] + 4 * i + 3))
            f = slab(k, c) + "f"
            direct = k < NS - 1 and os.environ.get("STAMP") != "2"
            out += [slab(k, c) + ":", "    s_waitcnt vmcnt(%d)" % (4 * max(NS - 1 - k, 0) + 3 - c),
                    "    v_max3_u32 v%d, v%d, v%d, v%d" % (V_CHK, r, r + 1, r + 2), mf(2, r),
                    "    v_max_u32 v%d, v%d, v%d" % (V_CHK, V_CHK, r + 3),
                    "    v_cmp_eq_u32 vcc, -1, v%d" % V_CHK,
                    mf(1, V_KF + 16 + 4 * c), mf(0, V_KF + 4 * c)]
            if c == 3:
                out += ["    " + ror(V_S2, V_S2 + 1, 0xc), "    " + ror(V_S2 + 2, V_S2 + 3, 0xc)]
            out += ["    s_cbranch_vccnz %s" % (slab(k + 1, c) if direct else f)]
            if k < NS - 1:
                stubs += [f + ":"] + ["    " + l for l in spin_lines(1, False)] + ["    s_branch %s" % slab(k + 1, c)]
            else:
                stubs += [f + ":"] + ["    " + l for l in ql[0][c:] + spin_lines(1)] + ["    s_branch %s" % slab(NS, c)]
        if k == 0:
            for l in out:
                a.raw(l)
        else:
            COLD.extend(out + ["    s_branch %s" % lsd])
        COLD.extend(stubs)
    a.L(lsd)
    I("s_barrier")
    stamp(8)
    ror = lambda d, s, bm: "v_mov_b32_dpp v%d, v%d row_ror:8 row_mask:0xf bank_mask:0x%x" % (d, s, bm)
    rnd = lambda v: "v_cvt_pk_bf16_f32 v%d, 0, v%d" % (v, v)
    A0, F, m, t = V_S0, V_S2 + 2, V_T, V_T + 1
    I("v_permlane32_swap_b32 v%d, v%d" % (V_S2, V_S2 + 2))
    I("ds_read_b64 v[%d:%d], v%d offset:%d" % (V_VM, V_VM + 1, V_L8, L_VMF))
    I("s_cmp_eq_u32 s%d, %d" % (S_STEP, LAST))
    I("s_cbranch_scc1 %s" % (name + "_fin"))
    for i in range(4):
        I(ror(A0 + i, V_S1 + i, 0xc))
    I("v_max3_f32 v%d, v%d, v%d, v%d" % (m, F, A0, A0 + 1))
    I("v_max3_f32 v%d, v%d, v%d, v%d" % (m, m, A0 + 2, A0 + 3))
    I(rnd(A0))
    I(rnd(A0 + 1))
    I("v_max_f32_dpp v%d, v%d, v%d row_ror:8 row_mask:0xf bank_mask:0xf" % (m, m, m))
    I("v_mov_b32 v%d, v%d" % (t, m))
    I(rnd(A0 + 2))
    I(rnd(A0 + 3))
    I("v_permlane16_swap_b32 v%d, v%d" % (m, t))
    I(rnd(F))
    I("v_max_f32 v%d, v%d, v%d" % (m, m, t))
    I("v_mov_b32 v%d, v%d" % (t, m))
    I("v_pk_mul_f32 v[%d:%d], v[%d:%d], s[%d:%d]" % (A0, A0 + 1, A0, A0 + 1, S_SCL, S_SCL + 1))
    I("v_pk_mul_f32 v[%d:%d], v[%d:%d], s[%d:%d]" % (A0 + 2, A0 + 3, A0 + 2, A0 + 3, S_SCL, S_SCL + 1))
    I("v_permlane32_swap_b32 v%d, v%d" % (m, t))
    I("v_mul_f32 v%d, s%d, v%d" % (F, S_SCL, F))
    I("v_max_f32 v%d, v%d, v%d" % (m, m, t))
    I(rnd(F))
    I(rnd(m))
    I(rnd(A0))
    I("v_mul_f32 v%d, s%d, v%d" % (m, S_SCL, m))
    I(rnd(A0 + 1))
    I(rnd(m))
    I(rnd(A0 + 2))
    I("v_mul_f32 v%d, s%d, v%d" % (m, S_C, m))
    I(rnd(A0 + 3))
    pf = lambda i: "v_pk_fma_f32 v[%d:%d], v[%d:%d], s[%d:%d], v[%d:%d] op_sel_hi:[1,1,0] neg_lo:[0,0,1] neg_hi:[0,0,1]" % (A0 + i, A0 + i + 1, A0 + i, A0 + i + 1, S_C, S_C + 1, m, m + 1)
    ex = lambda v: "v_exp_f32 v%d, v%d" % (v, v)
    sm = V_S1
    mm = lambda d, x: "v_mfma_f32_16x16x32_bf16 v[%d:%d], v[%d:%d], v[%d:%d], v[%d:%d]" % (d, d + 3, x, x + 3, V_P, V_P + 3, d, d + 3)
    m16 = lambda d, x, tt: "v_mfma_f32_16x16x16_bf16 v[%d:%d], v[%d:%d], v[%d:%d], 0" % (d, d + 3, x, x + 1, V_P + 4 + 2 * tt, V_P + 5 + 2 * tt)
    for l in ["v_fma_f32 v%d, v%d, s%d, -v%d" % (F, F, S_C, m), pf(0), ex(F), pf(2), ex(A0), ror(t, F, 0xf), ex(A0 + 1),
              "v_cvt_pk_bf16_f32 v%d, v%d, v%d" % (V_P + 4, F, t), "v_cvt_pk_bf16_f32 v%d, v%d, v%d" % (V_P + 7, F, t), ex(A0 + 2),
              m16(sm, V_ONEB, 0), ex(A0 + 3), "s_waitcnt lgkmcnt(0)", m16(V_O, V_VM, 0),
              "v_cvt_pk_bf16_f32 v%d, v%d, v%d" % (V_P, A0, A0 + 1), "v_cvt_pk_bf16_f32 v%d, v%d, v%d" % (V_P + 1, A0 + 2, A0 + 3),
              m16(V_O + 4, V_VM, 1), ror(V_P + 2, V_P, 0xf), ror(V_P + 3, V_P + 1, 0xf),
              "s_mov_b64 exec, s[%d:%d]" % (S_M8, S_M8 + 1), "s_nop 0",
              mm(sm, V_ONEB), mm(V_O, V_VT), mm(V_O + 4, V_VT + 4), "s_nop 0",
              "v_rcp_f32 v%d, v%d" % (sm, sm), "s_nop %d" % E("ANOP", 1)]:
        I(l)
    for h in range(2):
        for i in (4 * h, 4 * h + 2):
            I(pk("mul", V_O + i, V_O + i, sm, " op_sel_hi:[1,0]"))
        for i in (2 * h, 2 * h + 1):
            I("v_cvt_pk_bf16_f32 v%d, v%d, v%d" % (V_O + i, V_O + 2 * i, V_O + 2 * i + 1))
    for i in range(4):
        I("v_min_u32 v%d, 0xfffffffe, v%d" % (V_O + i, V_O + i))
    I("buffer_store_dwordx4 v[%d:%d], v%d, %s, s%d offen" % (V_O, V_O + 3, V_OXST, W, S_CUR))
    I("s_mov_b64 exec, -1")
    stamp(7)
    a.L(lb4)
    I("s_barrier")
    stamp(3)
    a.C("==== O phase")
    work = ([] if SB else blk_addr(S_KV, 1)) + ["s_add_u32 s%d, s%d, 1" % (S_STEP, S_STEP)]
    fill(a, work, max(PRE_O, len(work)))
    loads = ["buffer_load_dwordx4 v[%d:%d], v%d, %s, s%d offen offset:%d sc1" % (V_M + 4 * b, V_M + 4 * b + 3, V_OLD, W, S_CUR, b * 1024) for b in range(4)]
    for b in range(4):
        I(loads[b])
        if b < 3:
            fill(a, work, PACE)
    ver, vbr = gather_fifo(a, "o", loads, [V_AO], lambda k, ty, b: a_wo(ty, b))
    stamp(4)
    qd_ = (kv_dma('q') if 'C' in KQW else []) or ["s_nop 0"]
    for l in ver + qd_[:1]:
        I(l)
    for e in range(3):
        I("ds_write_b32 v%d, v%d offset:%d" % (V_ROW + e, V_AO + e, L_RO))
    for l in qd_[1:]:
        I(l)
    I(vbr)
    I("s_waitcnt lgkmcnt(0)")
    I("s_barrier")
    for i in range(3):
        I("ds_read_b32 v%d, v%d offset:%d" % (V_R + i, V_ROR, L_RO + i * 256))
    I("s_cmp_lt_u32 s%d, 2" % S_W)
    I("s_waitcnt lgkmcnt(2)")
    I("v_add_f32 v%d, v%d, v%d" % (V_R, V_R, V_AO + 3))
    I("s_waitcnt lgkmcnt(0)")
    I("v_add_f32 v%d, v%d, v%d" % (V_R + 1, V_R + 1, V_R + 2))
    I("v_add_f32 v%d, v%d, v%d" % (V_R, V_R, V_R + 1))
    I("v_min_u32 v%d, 0xfffffffe, v%d" % (V_R, V_R))
    I("buffer_store_dword v%d, v%d, %s, s%d offen sc1" % (V_R, V_PXST, W, S_PX0))
    if NREP > 1:
        I("buffer_store_dword v%d, v%d, %s, s%d offen sc1" % (V_R, V_PXST, W, S_PX1))
    stamp(5)
    a.C("==== P phase")
    x2, x2fin = xatt2()
    if 'nox' in ABL:
        x2 = []
    n0, n1 = E("XN0", 22), E("XN1", 18)
    pl = [["buffer_load_dword v%d, v%d, %s, s%d offen sc1" % (V_L + 3 * k + i, V_PXLD + i, W, (S_PX0, S_PX1 if NREP > 1 else S_PX0)[k]) for i in range(3)] for k in range(2)]
    lp01, lpj = a.uid("L_p01"), a.uid("L_pj")
    if E("P01", 0):
        I("s_cbranch_scc1 %s" % lp01)
        ca = Asm()
        ca.L(lp01)
        fill(ca, [], E("PRE01", 52))
        for l in pl[0]:
            ca.I(l)
        fill(ca, [], E("GAP01", 28))
        for l in pl[1] + kv_dma('kq'):
            ca.I(l)
        ca.I("s_branch %s" % lpj)
        COLD.extend(ca.lines)
    for l in x2[:n0]:
        I(l)
    fill(a, [], PRE_P)
    for l in pl[0] + x2[n0:n0 + n1]:
        I(l)
    fill(a, [], GAP_P)
    rest = x2[n0 + n1:len(x2) - XN2]
    kq = {"D": kv_dma('kq'), "AC": [], "CD": kv_dma('k')[:1] + ["s_nop 0"] + kv_dma('k')[1:], "AD": kv_dma('q')[:1] + ["s_nop 0"] + kv_dma('q')[1:], "B": [], "C": [], "Q": kv_dma('q')[:1] + ["s_nop 0"] + kv_dma('q')[1:]}[KQW]
    kd = E("KQD", 6)
    for l in pl[1] + kq[:1]:
        I(l)
    for i, l in enumerate(kq[2:]):
        for x in rest[kd * i:kd * i + kd] or ["s_nop 0"]:
            I(x)
        I(l)
    for l in rest[kd * len(kq[2:]):]:
        I(l)
    nd = len(kq[2:])
    fill(a, PADW, E("PADP", 0))
    a.L(lpj)
    lpa, lpb, lpb1, lpd = a.uid("L_pa"), a.uid("L_pb"), a.uid("L_pb1"), a.uid("L_pd")

    def rsum(k, other, extra):
        L = V_L + 3 * k
        f = a.uid("L_pf")
        out = ["s_waitcnt vmcnt(%d)" % (5 + extra), "v_add_f32 v%d, v%d, v%d" % (V_T, V_R, L), "s_waitcnt vmcnt(%d)" % (3 + extra),
               "v_max3_u32 v%d, v%d, v%d, v%d" % (V_CHK, L, L + 1, L + 2),
               "v_add_f32 v%d, v%d, v%d" % (V_T + 1, L + 1, L + 2),
               "v_cmp_eq_u32 vcc, -1, v%d" % V_CHK,
               "v_add_f32 v%d, v%d, v%d" % (V_T, V_T, V_T + 1),
               "s_nop 1",
               "v_mov_b32_dpp v%d, v%d quad_perm:[1,0,3,2] row_mask:0xf bank_mask:0xf" % (V_T + 1, V_T),
               "s_mov_b64 exec, s[%d:%d]" % (S_EV, S_EV + 1),
               "v_cvt_pk_bf16_f32 v%d, v%d, v%d" % (V_T, V_T, V_T + 1),
               "v_min_u32 v%d, 0xfffffffe, v%d" % (V_T, V_T),
               "s_cbranch_vccnz %s" % f]
        stub = [f + ":"] + ["    " + l for l in ["s_mov_b64 exec, -1"] + pl[k] + spin_lines(3)] + ["    s_branch %s" % other]
        return out, stub
    out, stub = rsum(0, lpb1, nd)
    for l in out:
        I(l)
    COLD.extend(stub)
    for lab, k, other, extra in ((lpb1, 1, lpa, nd), (lpa, 0, lpb, 0), (lpb, 1, lpa, 0)):
        out, stub = rsum(k, other, extra)
        COLD.append(lab + ":")
        COLD.extend("    " + l for l in out)
        COLD.append("    s_branch %s" % lpd)
        COLD.extend(stub)
    a.L(lpd)
    I("buffer_store_dword v%d, v%d, %s, s%d offen" % (V_T, V_MEMST, W, S_NXT))
    I("s_mov_b64 exec, -1")
    stamp(6)
    I("s_branch %s" % loop)

    a.L(lhelp)
    I("s_waitcnt %slgkmcnt(0)" % ("vmcnt(%d) " % (1 + OSTA + (TCHA > 0)) if 'A' in KQW else ""))
    I("s_barrier")
    lw2, lw3, lhe = a.uid("L_w2"), a.uid("L_w3"), a.uid("L_he")
    if os.environ.get("STAMP") == "2":
        stamp(2)
        I("s_waitcnt lgkmcnt(0)")
    I("s_cmp_ge_u32 s%d, 2" % S_W)
    I("s_cbranch_scc1 %s" % lw2)
    a.C("---- wave 1: reduce v, gate, K prefetch, poison, progress word")
    GA = 2
    for i, src in enumerate((0, 2, 3)):
        I("ds_read_b128 v[%d:%d], v%d offset:%d" % (V_R + 4 * i, V_R + 4 * i + 3, V_LIN, L_RV + src * 1024))
    for i, src in enumerate((0, 2, 3)):
        I("s_waitcnt lgkmcnt(%d)" % (2 - i))
        for k in (0, 2):
            I(pk("add", V_AV + k, V_AV + k, V_R + 4 * i + (k if src & 1 else k ^ 2)))
    for tt in range(2):
        I("v_cvt_pk_bf16_f32 v%d, v%d, v%d" % (V_VM + tt, V_AV + 2 * tt, V_AV + 2 * tt + 1))
    I("s_nop 1")
    I("v_permlane32_swap_b32 v%d, v%d" % (V_VM, V_VM + 1))
    I("s_nop 1")
    I("ds_write_b64 v%d, v[%d:%d] offset:%d" % (V_L8, V_VM, V_VM + 1, L_VMF))
    if SB:
        for l in blk_addr(S_TCH, 2) + kv_dma('t2'):
            I(l)
    if TS:
        fill(a, blk_addr(S_TCH, 1), E("TSD", 24))
        I("buffer_load_dword v%d, v%d, %s, s%d offen sc1" % (V_SMP + 2, V_H3, W, S_TCH))
    I("s_add_u32 s%d, s%d, %d" % (S_T0, S_STEP, GA))
    I("s_min_u32 s%d, s%d, 63" % (S_T0, S_T0))
    kvs.group_word(a, S_T0, S_KM, S_T2)
    I("s_cmp_eq_u32 s%d, %d" % (S_ID, 999 if 'nowork' in ABL else 1))
    I("s_cselect_b32 s%d, s%d, s%d" % (S_KM, S_KM, S_GATE))
    for l in blk_addr(S_KV, 1):
        I(l)
    I("s_waitcnt lgkmcnt(0)")
    lng, lgr, lnf = a.uid("L_nog"), a.uid("L_gr"), a.uid("L_nof")
    I("s_cmp_eq_u32 s%d, s%d" % (S_KM, S_GATE))
    I("s_cbranch_scc1 %s" % lng)
    I("s_load_dword s%d, s[%d:%d], s%d glc" % (S_T2, S_DBG, S_DBG + 1, S_KM))
    a.L(lng)
    I("s_mov_b32 s%d, 1" % S_T3)
    stamp(8)
    I("s_barrier")

    def first_gate():
        if 'nowork' not in ABL:
            lns = a.uid("L_ns0")
            I("s_cmp_lg_u32 s%d, 0" % S_STEP)
            I("s_cbranch_scc1 %s" % lns)
            relay_wait(a, 1)
            a.L(lns)
    first_gate()
    for l in kv_dma('b1') if SB else (kv_dma('t') if TCHA < 2 and TS < 2 else []) + kv_dma('v') + (kv_dma('kb') if KB else []):
        I(l)
    I("s_cmp_lg_u32 s%d, 0" % S_ID)
    I("s_cbranch_scc1 %s" % lnf)
    I("s_atomic_add s%d, s[%d:%d], %d" % (S_T3, S_DBG, S_DBG + 1, D_PROG * 4))
    a.L(lnf)
    poison(a, S_POI)
    I("s_cmp_eq_u32 s%d, s%d" % (S_KM, S_GATE))
    I("s_cbranch_scc1 %s" % lhe)
    I("s_mov_b32 s%d, s%d" % (S_GATE, S_KM))
    a.L(lgr)
    I("s_waitcnt lgkmcnt(0)")
    I("s_cmp_ge_u32 s%d, %d" % (S_T2, NKV))
    I("s_cbranch_scc1 %s" % lhe)
    for l in spin_lines():
        I(l)
    I("s_load_dword s%d, s[%d:%d], s%d glc" % (S_T2, S_DBG, S_DBG + 1, S_KM))
    I("s_branch %s" % lgr)
    a.L(lw2)
    a.C("---- waves 2, 3: x-token attention (query tile w&1), o of the previous step, Q / V prefetch")
    x1, x1post = xatt1()
    ost = "buffer_store_dwordx4 v[%d:%d], v%d, %s, s%d offen sc1" % (V_O, V_O + 3, V_H1, W, S_KM)
    if SB or OSS:
        seq = x1[:14] + x2fin + blk_addr(S_KM, -1) + x1[14:] + blk_addr(S_KV, 1) + x1post
        if 'nopub' not in ABL:
            seq.insert(E("OSP", 30), ost)
    else:
        seq = x1[:14] + ([] if OSTA else x2fin) + x1[14:] + blk_addr(S_KM, -1) + ["s_nop 0"] + x1post
    for l in seq:
        I(l)
    I("s_cmp_eq_u32 s%d, 3" % S_W)
    I("s_waitcnt lgkmcnt(0)")
    stamp(8)
    I("s_barrier")
    if 'nopub' not in ABL and not OSTA and not SB and not OSS:
        I(ost)
    I("ds_read_b64 v[%d:%d], v%d offset:%d" % (V_VM, V_VM + 1, V_L8, L_VMF))
    if SB:
        I("s_cbranch_scc1 %s" % lw3)
        first_gate()
        for l in kv_dma('b2'):
            I(l)
        I("s_branch %s" % lhe)
        a.L(lw3)
        first_gate()
        for l in kv_dma('b3'):
            I(l)
    else:
        I("s_cbranch_scc0 %s" % lhe)
    for c in range(2):
        I("s_mov_b32 m0, %d" % (L_QXC - c * 1024))
        I("s_nop 0")
        I("buffer_load_dwordx4 v%d, %s, s%d offen offset:%d sc1 lds" % (V_H2, W, S_CUR, c * 2048))
    a.L(lhe)
    stamp(7)
    I("s_cmp_lg_u32 s%d, %d" % (S_STEP, LAST))
    I("s_cbranch_scc1 %s" % lb4)
    a.L(name + "_fin")
    I("s_waitcnt vmcnt(0) lgkmcnt(0)")
    I("s_barrier")
    lf = a.uid("L_f2")
    I("s_cmp_lt_u32 s%d, 2" % S_W)
    I("s_cbranch_scc1 %s" % lf)
    for l in xatt2()[0] + blk_addr(S_KM, 0) + ["s_nop 1"] + x2fin + [ost]:
        I(l)
    I("s_waitcnt vmcnt(0)")
    a.L(lf)
    I("s_barrier")
    I("s_cmp_lg_u32 s%d, 0" % S_W)
    I("s_cbranch_scc1 %s" % done)
    I("s_add_u32 s%d, s%d, 4096" % (S_T0, S_LF))
    I("s_mov_b32 s%d, 1" % S_T1)
    I("s_atomic_add s%d, s[%d:%d], s%d" % (S_T1, ptr(D_WS), ptr(D_WS) + 1, S_T0))
    I("s_branch %s" % done)


def poison(a, s_slot):
    I = a.I
    I("buffer_store_dwordx4 v[%d:%d], v%d, %s, s%d offen" % (V_ONES, V_ONES + 3, V_H0, W, s_slot))
    I("s_lshl_b32 s%d, s%d, 9" % (S_T1, S_JM))
    I("s_add_u32 s%d, s%d, s%d" % (S_T1, S_T1, s_slot))
    I("buffer_store_dwordx2 v[%d:%d], v%d, %s, s%d offen" % (V_ONES, V_ONES + 1, V_L8, W, S_T1))
    I("s_xor_b32 s%d, s%d, %d" % (S_T1, S_T1, 16384 + 4096))
    I("buffer_store_dwordx2 v[%d:%d], v%d, %s, s%d offen" % (V_ONES, V_ONES + 1, V_L8, W, S_T1))


def bias(a):
    I = a.I
    t0, t1 = V_T, V_T + 1
    I("v_and_b32 v%d, 15, v0" % t0)
    I("v_bfe_u32 v%d, v0, 6, 1" % t1)
    I("v_lshl_add_u32 v%d, v%d, 4, v%d" % (t0, t1, t0))
    I("v_bfe_u32 v%d, v0, 4, 2" % t1)
    I("v_lshlrev_b32 v%d, 2, v%d" % (t1, t1))
    I("v_sub_u32 v%d, v%d, v%d" % (t0, t0, t1))
    I("v_mov_b32 v%d, 0xff800000" % t1)
    for i in range(8):
        I("v_cmp_gt_i32 vcc, %d, v%d" % (16 * (i >> 2) + (i & 3), t0))
        I("s_nop 1")
        I("v_cndmask_b32 v%d, 0, v%d, vcc" % (V_XB + i, t1))


def chain_main(a, name, stamp=None):
    I = a.I
    a.srd(S_WS, ptr(D_WS), 0, WS_SIZE)
    ABORT[0] = name + "_abort"
    I("s_mov_b32 s%d, 0" % S_SPIN)
    I("s_xor_b32 s%d, s%d, 8" % (S_JM, S_J))
    I("s_and_b32 s%d, s%d, 1" % (S_JQ, S_J))
    I("s_bfe_u32 s%d, s%d, 0x10001" % (S_T0, S_J))
    I("s_xor_b32 s%d, s%d, 1" % (S_T0, S_T0))
    I("s_lshl1_add_u32 s%d, s%d, s%d" % (S_JQ, S_JQ, S_T0))

    pa = Asm()
    prologue_addrs(pa)
    pa.I("global_load_dwordx2 v[%d:%d], v%d, s[%d:%d]" % (V_Y, V_Y + 1, V_M0LD, ptr(B_MEM0), ptr(B_MEM0) + 1))
    bias(pa)

    def mid():
        if len(LOOPSTART) > 2:
            LOOPSTART[2]()
        kvs.ROLE[0](a, S_J, "chain_start", S_W, L_ROLE, S_T0, V_T)
        I("s_lshl_b32 s%d, s%d, 18" % (S_POI, S_W))
        I("s_add_u32 s%d, s%d, s%d" % (S_POI, S_POI, S_EXB))
        poison(a, S_POI)
        I("s_lshl_b32 s%d, s%d, 8" % (S_LF, S_X))
        I("s_add_u32 s%d, s%d, 0x%x" % (S_LF, S_LF, X_LF))
        I("s_cmp_eq_u32 s%d, 1" % S_J)
        I("s_cselect_b32 s%d, s%d, 0x%x" % (S_T1, S_LF, WS_SIZE))
        I("v_mov_b32 v%d, 0" % V_SMP)
        I("s_add_u32 s%d, s%d, 4096" % (S_T1, S_T1))
        I("buffer_store_dword v%d, v%d, %s, s%d offen sc1" % (V_SMP, V_SMP, W, S_T1))
        I("v_mov_b32 v%d, %d" % (V_SMP + 1, D_CAL * 4))
        I("global_load_dword v%d, v%d, s[%d:%d] sc1" % (V_SMP + 1, V_SMP + 1, S_DBG, S_DBG + 1))

    def early():
        l1 = a.uid("L_m0")
        I("s_barrier")
        warm = os.environ.get("WARM", "bcx")
        if warm:
            I("s_load_dwordx16 s[64:79], s[0:1], 0")
            I("v_lshlrev_b32 v%d, 3, v%d" % (V_T, V_LIN))
            I("s_lshl2_add_u32 s%d, s%d, s%d" % (S_T0, S_ID, S_W))
            I("s_lshl_b32 s%d, s%d, 13" % (S_T0, S_T0))
            I("s_and_b32 s%d, s%d, 0x1fffff" % (S_T1, S_T0))
            I("s_waitcnt lgkmcnt(0)")
            for c in warm:
                if c in "bc":
                    p = ptr(A_BRE if c == 'b' else A_CRE)
                    I("s_bitcmp1_b32 s%d, 21" % S_T0)
                    I("s_cselect_b64 s[%d:%d], s[%d:%d], s[%d:%d]" % (S_T2, S_T3, p + 2, p + 3, p, p + 1))
                    a.srd(S_TMPSRD, S_T2, 0, 2 * MB)
                    I("buffer_load_dword v%d, v%d, s[%d:%d], s%d offen" % (V_SMP + 2, V_T, S_TMPSRD, S_TMPSRD + 3, S_T1))
                else:
                    a.srd(S_TMPSRD, ptr({'a': A_X, 'x': B_X, 'o': B_WO, 'p': B_WO}[c]), 4 * MB if c == 'p' else 0, 4 * MB)
                    I("buffer_load_dword v%d, v%d, s[%d:%d], s%d offen" % (V_SMP + 2, V_T, S_TMPSRD, S_TMPSRD + 3, S_T0))
        I("v_and_b32 v%d, 15, v0" % V_T)
        I("v_lshlrev_b32 v%d, 7, v%d" % (V_T, V_T))
        I("s_lshl_b32 s%d, s%d, 11" % (S_T1, S_J))
        I("s_add_u32 s%d, s%d, s%d" % (S_T1, S_T1, S_POI))
        I("buffer_load_dword v%d, v%d, %s, s%d offen sc1" % (V_SMP + 2, V_T, W, S_T1))
        I("s_cmp_lg_u32 s%d, 0" % S_W)
        I("s_cbranch_scc1 %s" % l1)
        I("s_lshl2_add_u32 s%d, s%d, s%d" % (S_T1, S_J, S_LF))
        I("buffer_store_dword v%d, v%d, %s, s%d offen" % (V_ONES, V_SMP, W, S_T1))
        I("s_lshl_b32 s%d, s%d, 9" % (S_T1, S_JM))
        I("s_add_u32 s%d, s%d, s%d" % (S_T1, S_T1, S_EXB))
        I("v_min_u32 v%d, 0xfffffffe, v%d" % (V_Y, V_Y))
        I("v_min_u32 v%d, 0xfffffffe, v%d" % (V_Y + 1, V_Y + 1))
        I("buffer_store_dwordx2 v[%d:%d], v%d, %s, s%d offen" % (V_Y, V_Y + 1, V_L8, W, S_T1))
        a.L(l1)
    load_weights(a, pa.lines, mid, early)
    if LOOPSTART[1]:
        LOOPSTART[1]()
    I("s_mov_b32 s%d, 0" % S_STEP)
    I("s_mov_b32 s%d, 0" % S_GATE)
    I("s_mov_b32 s%d, 0xc0000" % S_REL)
    I("s_mov_b32 s%d, s%d" % (S_NXT, S_EXB))
    for r in (V_P + 5, V_P + 6):
        I("v_mov_b32 v%d, 0" % r)
    for i in range(4):
        I("v_mov_b32 v%d, 0x3f803f80" % (V_ONEB + i))
    for i in range(16):
        I("v_mov_b32 v%d, 0" % (V_AQ + i))
    px_setup(a)
    I("s_barrier")
    lab0 = a.uid("L_init0")
    for l in blk_addr(S_KV, 0):
        I(l)
    I("s_cmp_lg_u32 s%d, 1" % S_W)
    I("s_cbranch_scc1 %s" % lab0)
    if 'nowork' not in ABL:
        relay_wait(a, 0)
    for l in kv_dma('v'):
        I(l)
    a.L(lab0)
    lab2, lp = a.uid("L_init2"), a.uid("L_initp")
    I("s_cmp_lg_u32 s%d, 2" % S_W)
    I("s_cbranch_scc1 %s" % lab2)
    I("v_and_b32 v%d, 31, v0" % V_SMP)
    I("v_lshlrev_b32 v%d, 2, v%d" % (V_SMP, V_SMP))
    a.L(lp)
    I("buffer_load_dword v%d, v%d, %s, s%d offen sc1" % (V_SMP + 1, V_SMP, W, S_LF))
    for l in spin_lines():
        I(l)
    I("s_waitcnt vmcnt(0)")
    I("v_cmp_eq_u32 vcc, 0, v%d" % (V_SMP + 1))
    I("s_cbranch_vccz %s" % lab2)
    I("s_sleep 2")
    I("s_branch %s" % lp)
    a.L(lab2)
    I("s_barrier")
    for l in kv_dma('kq'):
        I(l)
    I("s_waitcnt vmcnt(0) lgkmcnt(0)")
    I("s_barrier")
    if LOOPSTART[0]:
        LOOPSTART[0]()
    step_body(a, name, stamp if stamp else (lambda i: None))
    for line in COLD:
        a.raw(line)
    del COLD[:]
    a.L(ABORT[0])
    a.srd(S_TMPSRD, ptr(D_DBG), 0, 256)
    I("s_mov_b64 exec, 1")
    I("v_mov_b32 v1, s%d" % S_STEP)
    I("v_or_b32 v1, 0xdead0000, v1")
    I("v_mov_b32 v2, 124")
    I("buffer_store_dword v1, v2, s[%d:%d], 0 offen" % (S_TMPSRD, S_TMPSRD + 3))
    a.L(name + "_done")
    if DUMP[0]:
        DUMP[0]()
    I("s_endpgm")
```

```python
from asmlib import *
import os

S_SP, S_SS, S_SO = 8, 12, 16
S_PO, S_SOF, S_SK = 20, 24, 28
NP = 30
NS = 36
S_IT, S_MP, S_MS, S_DP, S_DS, S_RP, S_RS = 43, 44, 45, 46, 47, 48, 49
S_STB, S_STD1, S_STD2, S_STO = 50, 51, 52, 53
S_RET = 54
S_XW, S_RK, S_WV, S_POL = 56, 57, 58, 59
T0, T1, T2, T3 = 60, 61, 62, 63
S_IDX = 29
S_STD0, S_SIG, S_WAIT = 5, 4, 3
NSI = int(os.environ.get("NSI", "8"))
S_NK = 0
S_TS, S_TB, S_NT, S_NTB = 88, 83, 86, 84
V_TP = 125
S_SIG0 = 1
V_LIN = 1
V_STA = 2
V_DP, V_DS, V_NDP, V_NDS = 4, 6, 8, 10
V_RP = 12
V_RS = 14
V_CT, V_CN = 22, 23
V_X = 24
V_STT = 32
V_FP = 40
V_FS = 72
V_E = 88
V_ST = 128
LDS_END = 163840
ORDER = int(os.environ.get("MORD", "0"))
XP = os.environ.get("XP", "")


def srd_s(d):
    return "s[%d:%d]" % (d, d + 3)


def acc_kq(ip, js):
    return (ip * 8 + js) * 4


def acc_v(ip, js):
    return (((ip >> 1) * 8 + js) * 2 + (ip & 1)) * 4


def setup(a):
    I = a.I
    a.C("---- gemm2 setup")
    t0, t1 = V_X, V_X + 1
    I("v_and_b32 v%d, 63, v0" % t0)
    I("v_lshlrev_b32 v%d, 4, v%d" % (V_LIN, t0))
    I("v_mov_b32 v%d, v%d" % (V_STA, V_LIN))
    I("v_add_u32 v%d, 1024, v%d" % (V_STA + 1, V_LIN))
    I("v_bfe_u32 v%d, v0, 1, 3" % t0)
    I("v_bfe_u32 v%d, v0, 4, 2" % t1)
    I("v_xor_b32 v%d, v%d, v%d" % (t0, t0, t1))
    I("v_lshlrev_b32 v%d, 4, v%d" % (t0, t0))
    I("v_and_b32 v%d, 15, v0" % t1)
    I("v_lshl_add_u32 v%d, v%d, 7, v%d" % (t0, t1, t0))
    I("s_lshr_b32 s%d, s%d, 1" % (T0, S_WV))
    I("s_lshl_b32 s%d, s%d, 14" % (T0, T0))
    I("v_add_u32 v%d, s%d, v%d" % (V_CN, T0, t0))
    I("s_and_b32 s%d, s%d, 1" % (T0, S_WV))
    I("s_lshl_b32 s%d, s%d, 14" % (T0, T0))
    I("s_add_u32 s%d, s%d, 32768" % (T0, T0))
    I("v_add_u32 v%d, s%d, v%d" % (V_RP, T0, t0))
    I("v_xor_b32 v%d, 64, v%d" % (V_RP + 1, V_RP))
    I("v_bfe_u32 v%d, v0, 2, 3" % t0)
    I("v_lshlrev_b32 v%d, 5, v%d" % (V_CT, t0))
    I("v_and_b32 v%d, 3, v0" % t0)
    I("v_lshl_add_u32 v%d, v%d, 3, v%d" % (V_CT, t0, V_CT))
    I("v_bfe_u32 v%d, v0, 2, 2" % t0)
    I("v_lshl_add_u32 v%d, v%d, 9, v%d" % (V_CT, t0, V_CT))
    I("v_bfe_u32 v%d, v0, 4, 2" % t0)
    I("v_lshl_add_u32 v%d, v%d, 12, v%d" % (V_CT, t0, V_CT))
    I("v_bfe_u32 v%d, v0, 7, 1" % t0)
    I("v_lshl_add_u32 v%d, v%d, 8, v%d" % (V_CT, t0, V_CT))
    I("s_mov_b32 s%d, 0" % S_RS)
    I("s_mov_b32 s%d, 32768" % S_RP)
    I("s_lshl_b32 s%d, s%d, 12" % (S_MS, S_WV))
    I("s_add_u32 s%d, s%d, 32768" % (S_MP, S_MS))
    for d in (S_SP, S_SS, S_SO, S_TS):
        I("s_mov_b32 s%d, 0x00020000" % (d + 3))
    I("s_mov_b32 s%d, 0x200000" % (S_TS + 2))
    I("v_bfe_u32 v%d, v0, 2, 3" % t0)
    I("v_lshlrev_b32 v%d, 11, v%d" % (V_TP, t0))
    I("v_and_b32 v%d, 3, v0" % t0)
    I("v_lshl_add_u32 v%d, v%d, 7, v%d" % (V_TP, t0, V_TP))


def pat_n(a, dst, mode):
    I = a.I
    t0, t1 = V_X, V_X + 1
    I("v_bfe_u32 v%d, v0, 4, 2" % t0)
    I("v_and_b32 v%d, 7, v0" % t1)
    I("v_xor_b32 v%d, v%d, v%d" % (t0, t0, t1))
    I("v_lshlrev_b32 v%d, 4, v%d" % (dst, t0))
    if mode == 'time':
        I("v_bfe_u32 v%d, v0, 3, 2" % t0)
        I("v_lshl_add_u32 v%d, v%d, 11, v%d" % (dst, t0, dst))
        I("v_bfe_u32 v%d, v0, 5, 1" % t0)
        I("v_lshl_add_u32 v%d, v%d, 16, v%d" % (dst, t0, dst))
        I("v_lshrrev_b32 v%d, 6, v0" % t0)
        I("v_lshl_add_u32 v%d, v%d, 14, v%d" % (dst, t0, dst))
        par = 64 * 2048
    else:
        I("v_bfe_u32 v%d, v0, 3, 3" % t0)
        I("v_lshl_add_u32 v%d, v%d, 11, v%d" % (dst, t0, dst))
        I("v_bfe_u32 v%d, v0, 6, %d" % (t0, 2 if mode == 'nat' else 1))
        I("v_lshl_add_u32 v%d, v%d, 16, v%d" % (dst, t0, dst))
        par = 8 * 2048
    I("v_xor_b32 v%d, 64, v%d" % (dst + 1, dst))
    I("v_add_u32 v%d, 0x%x, v%d" % (dst + 1, par, dst + 1))


PAT_D = {'nat': (16 * 2048, 128 * 2048), 'time': (4 * 2048, 128 * 2048), 'chan': (16 * 2048, 64 * 2048)}


def pat_t(a, dst, lg):
    I = a.I
    t0, t1 = V_X, V_X + 1
    I("v_bfe_u32 v%d, v0, 5, 1" % t0)
    I("v_bfe_u32 v%d, v0, 6, 1" % t1)
    I("v_lshl_add_u32 v%d, v%d, 2, v%d" % (t1, t1, t0))
    I("v_lshlrev_b32 v%d, 1, v%d" % (t1, t1))
    I("v_and_b32 v%d, 31, v0" % dst)
    I("v_xor_b32 v%d, v%d, v%d" % (dst, dst, t1))
    I("v_lshlrev_b32 v%d, 4, v%d" % (dst, dst))
    I("v_lshl_add_u32 v%d, v%d, %d, v%d" % (dst, t0, lg, dst))
    I("v_lshrrev_b32 v%d, 6, v0" % t0)
    I("v_lshl_add_u32 v%d, v%d, %d, v%d" % (dst, t0, lg + 3, dst))
    I("v_xor_b32 v%d, 64, v%d" % (dst + 1, dst))
    I("v_add_u32 v%d, 0x%x, v%d" % (dst + 1, 2 << lg, dst + 1))


def pat_b(a, dst):
    a.I("s_lshr_b32 s%d, s%d, 1" % (T1, S_WV))
    a.I("s_lshl_b32 s%d, s%d, 14" % (T1, T1))
    a.I("v_add_u32 v%d, s%d, v%d" % (dst, T1, V_LIN))
    a.I("s_and_b32 s%d, s%d, 1" % (T1, S_WV))
    a.I("s_lshl_b32 s%d, s%d, 12" % (T1, T1))
    a.I("v_add_u32 v%d, s%d, v%d" % (dst, T1, dst))
    a.I("v_add_u32 v%d, 1024, v%d" % (dst + 1, dst))


def next_op(a, n, p, off, size, d1, d2, kadv=None, cst=0):
    I = a.I
    if cst:
        I("s_add_u32 s%d, s%d, 0x%x" % (n, p, cst))
        I("s_addc_u32 s%d, s%d, 0" % (n + 1, p + 1))
        I("s_and_b32 s%d, s%d, 0xffff" % (n + 1, n + 1))
    else:
        I("s_mov_b32 s%d, s%d" % (n, p))
        I("s_and_b32 s%d, s%d, 0xffff" % (n + 1, p + 1))
    I("s_mov_b32 s%d, 0x%x" % (n + 2, size))
    I("s_mov_b32 s%d, %s" % (n + 3, off))
    I("s_mov_b32 s%d, 0x%x" % (n + 4, d1))
    I("s_mov_b32 s%d, 0x%x" % (n + 5, d2))
    if kadv is not None:
        I("s_mov_b32 s%d, 0x%x" % (n + 6, kadv))


def switch_lines(op):
    n, srd, off, vd, vn, key, m = (NP, S_SP, S_PO, V_DP, V_NDP, 0, S_MP) if op == 'P' else (NS, S_SS, S_SOF, V_DS, V_NDS, 2, S_MS)
    out = ["s_mov_b32 s%d, s%d" % (srd + i, n + i) for i in range(3)]
    out += ["s_and_b32 s%d, s%d, 0xffffb7ff" % (m, m),
            "s_bitcmp1_b32 s%d, %d" % (S_NK, key + 1), "s_cselect_b32 s%d, s%d, 0" % (off, n + 5), "s_cselect_b32 s%d, 0, s%d" % (off + 2, n + 5),
            "s_cselect_b32 s%d, 0x4000, 0" % T0, "s_or_b32 s%d, s%d, s%d" % (m, m, T0),
            "s_add_u32 s%d, s%d, s%d" % (off, off, n + 3), "s_add_u32 s%d, s%d, s%d" % (off + 2, off + 2, n + 3),
            "s_bitcmp1_b32 s%d, %d" % (S_NK, key), "s_cselect_b32 s%d, s%d, 0" % (T1, n + 4), "s_cselect_b32 s%d, 0, s%d" % (T2, n + 4),
            "s_cselect_b32 s%d, 0x800, 0" % T0, "s_or_b32 s%d, s%d, s%d" % (m, m, T0),
            "s_add_u32 s%d, s%d, s%d" % (off + 1, off, T2), "s_add_u32 s%d, s%d, s%d" % (off, off, T1),
            "s_add_u32 s%d, s%d, s%d" % (off + 3, off + 2, T2), "s_add_u32 s%d, s%d, s%d" % (off + 2, off + 2, T1)]
    if op == 'S':
        out.append("s_mov_b32 s%d, s%d" % (S_SK, n + 6))
    out += ["v_mov_b32 v%d, v%d" % (vd + i, vn + i) for i in range(2)]
    return out


def dma_groups(op, nt=False):
    srd, off, vd, m = (S_SP, S_PO, V_DP, S_MP) if op == 'P' else (S_SS, S_SOF, V_DS, S_MS)
    g = []
    for q in range(8):
        g.append(("s_xor_b32 m0, s%d, %d" % (m, (q >> 2) * 16384 + (q & 3) * 1024),
                  "buffer_load_dwordx4 v%d, %s, s%d offen%s lds" % (vd + (q & 1), srd_s(srd), off + (q >> 1), " nt" if nt and q < int(os.environ.get("NTQ", "8")) else "")))
    adv = "128" if op == 'P' else "s%d" % S_SK
    if "samek" in XP or ("same" + op) in XP:
        adv = "0"
    upd = ["s_add_u32 s%d, s%d, %s" % (off + i, off + i, adv) for i in range(4)]
    upd.append(["s_cmp_ge_u32 s%d, 98304" % m, "s_cselect_b32 s%d, s%d, s%d" % (T0, 6, 7), "s_add_u32 s%d, s%d, s%d" % (m, m, T0)])
    return g, upd


def prologue(a):
    I = a.I
    I("s_mov_b32 s6, 0x%x" % ((-98304) & 0xffffffff))
    I("s_mov_b32 s7, 65536")
    for l in switch_lines('S') + switch_lines('P'):
        I(l)
    for op in "SPS":
        g, upd = dma_groups(op)
        for m, l in g:
            I(m)
            I("s_nop 0")
            I(l)
        for u in upd:
            for l in (u if isinstance(u, list) else [u]):
                I(l)


def prologue_wait(a):
    a.I("s_waitcnt vmcnt(8)")
    a.I("s_barrier")


class Tile:
    def __init__(self, a, name, skind, a_is_s, acc, ns=16):
        self.ns = ns
        self.a, self.name, self.skind, self.a_is_s, self.acc = a, name, skind, a_is_s, acc

    def rd_p(self, ip, h):
        f = V_FP + 4 * ip
        return [("ds_read_b128 v[%d:%d], v%d offset:%d" % (f, f + 3, V_RP + h, ip * 2048), f)]

    def rd_s(self, js, h):
        f = V_FS + 4 * (js & 3)
        if self.skind == 't':
            return [("ds_read_b64_tr_b16 v[%d:%d], v%d offset:%d" % (f + 2 * u, f + 2 * u + 1, V_RS + js, h * 16384 + u * 2048), f) for u in range(2)]
        if self.skind == 'b':
            return [("ds_read_b64_tr_b16 v[%d:%d], v%d offset:%d" % (f + 2 * u, f + 2 * u + 1, V_RS + u, h * 16384 + js * 512), f) for u in range(2)]
        return [("ds_read_b128 v[%d:%d], v%d offset:%d" % (f, f + 3, V_RS + h, js * 2048), f)]

    def mfma(self, ip, js, zero):
        c = self.acc(ip, js)
        p, s = V_FP + 4 * ip, V_FS + 4 * (js & 3)
        x, y = (s, p) if self.a_is_s else (p, s)
        return "v_mfma_f32_16x16x32_bf16 a[%d:%d], v[%d:%d], v[%d:%d], %s" % (c, c + 3, x, x + 3, y, y + 3, "0" if zero else "a[%d:%d]" % (c, c + 3)), (p, s)

    def first_reads(self, h):
        out = []
        for k, r in enumerate(self.rd_s(0, h) + self.rd_s(1, h)):
            out.append(((0, 1, 4, 5)[k], r))
        for b in range(4):
            if ORDER == 0:
                out.append((4 * b + 2, self.rd_p(2 * b + 1, h)[0]))
                out.append((4 * b + 3, self.rd_p(2 * b, h)[0]))
            else:
                out.append((4 * b + 2, self.rd_p(2 * b, h)[0]))
                out.append((4 * b + 3, self.rd_p(2 * b + 1, h)[0]))
        return out

    def emit(self, h, rounds, zero, fill, queue, nxt_h=None):
        I = self.a.I
        for jp in rounds:
            reads = {}
            if jp < 3:
                for k, r in enumerate(self.rd_s(2 * jp + 2, h) + self.rd_s(2 * jp + 3, h)):
                    reads.setdefault(2 + 2 * k, []).append(r)
            elif nxt_h is not None:
                for k, r in self.first_reads(nxt_h):
                    reads.setdefault(k, []).append(r)
            k = 0
            for b in range(4):
                blk = ((0, 0), (1, 0), (1, 1), (0, 1)) if ORDER == 0 else (((0, 0), (0, 1), (1, 0), (1, 1)) if ORDER == 1 else ((0, 0), (1, 0), (0, 1), (1, 1)))
                for di, dj in blk:
                    line, need = self.mfma(2 * b + di, 2 * jp + dj, zero)
                    last = max([i for i, f in enumerate(queue) if f in need], default=-1)
                    if last >= 0:
                        I("s_waitcnt lgkmcnt(%d)" % min(15, len(queue) - 1 - last))
                        del queue[:last + 1]
                    I(line)
                    for r, f in reads.get(k, []):
                        I(r)
                        queue.append(f)
                    for l in fill.get(jp * 16 + k, []):
                        I(l)
                    k += 1

    def fills(self):
        sch = os.environ.get("SCH", "0,4,8,12,16,20,24,28;80,84,88,92,96,99,101,103;44")
        ps, ss, st0 = [[int(x) for x in g.split(",")] for g in sch.split(";")]
        st0 = st0[0]
        NST = 32 // NSI
        self.late_s = sum(x > max(ps) for x in ss)
        self.late_st = NST if st0 > max(ps) else 0
        base, sts = [], []
        add = lambda sl, ls, at=False: base.append((sl, ls, at))
        ads = lambda sl, ls, at=False: sts.append((sl, ls, at))
        if NST == 4:
            ads(8, ["s_bitcmp1_b32 s%d, 0" % S_IT, "s_cselect_b32 s%d, s%d, 0" % (T1, S_STD0), "s_lshl1_add_u32 s%d, s%d, s%d" % (S_STO, T1, S_STB)])
        else:
            ads(8, ["s_and_b32 s%d, s%d, 3" % (T1, S_IT), "s_mul_i32 s%d, s%d, s%d" % (T1, T1, S_STD0), "s_add_u32 s%d, s%d, s%d" % (S_STO, T1, S_STB)])
        b = 1 if NST == 4 else 2
        ads(9, ["s_bitcmp1_b32 s%d, %d" % (S_IT, b), "s_cselect_b32 s%d, s%d, 0" % (T1, S_STD1), "s_add_u32 s%d, s%d, s%d" % (S_STO, S_STO, T1),
                "s_bitcmp1_b32 s%d, %d" % (S_IT, b + 1), "s_cselect_b32 s%d, s%d, 0" % (T1, S_STD2), "s_add_u32 s%d, s%d, s%d" % (S_STO, S_STO, T1),
                "s_lshl_b32 s%d, s%d, %d" % (S_IDX, S_IT, 5 - b)])
        if self.late_st:
            ads(9, ["s_mov_b64 vcc, -1"])
            add(8, ["s_mov_b64 vcc, 0"])
        std = int(os.environ.get("STD", "2"))
        for u in range(NST):
            t = V_X + 4 * u
            ads(st0 - 8 + 2 * u, ["s_set_gpr_idx_on s%d, gpr_idx(SRC0)" % S_IDX] + ["v_mov_b32 v%d, v%d" % (t + i, V_ST + 4 * u + i) for i in range(4)] + ["s_set_gpr_idx_off"], True)
            ads(st0 + std * u, ["buffer_store_dwordx4 v[%d:%d], v%d, %s, s%d offen sc1%s" % (t, t + 3, V_STA + (u & 1), srd_s(S_SO), S_STO, " nt" * int(os.environ.get("HNT", "0")))] +
                (["s_add_u32 s%d, s%d, s%d" % (S_STO, S_STO, S_STD0)] if u == 1 and NST == 4 else []))
        for op, sl in (('P', ps), ('S', ss)):
            g, upd = dma_groups(op, (self.name + op) in os.environ.get('NT', 'none'))
            for q, (m, l) in enumerate(g):
                add(sl[q], [m, l] + ([upd[q >> 1]] if q & 1 else []) + (upd[4] if q == 7 else []))
        if int(os.environ.get("GT", "0")):
            t0_ = int(os.environ.get("GT0", "32"))
            add(t0_, ["s_cmp_eq_u32 s%d, %d" % (S_IT, self.ns - 4), "s_cselect_b64 s[%d:%d], s[%d:%d], s[%d:%d]" % (S_TS, S_TS + 1, S_NT, S_NT + 1, S_TS, S_TS + 1),
                      "s_cselect_b32 s%d, s%d, s%d" % (S_TB, S_NTB, S_TB),
                      "buffer_load_dword v124, v%d, %s, s%d offen%s" % (V_TP, srd_s(S_TS), S_TB, " nt" * int(os.environ.get("GTNT", "0"))),
                      "s_andn2_b32 s%d, 3, s%d" % (T2, S_IT), "s_cselect_b32 s%d, 0, 0x%x" % (T2, (512 - 65536) & 0xffffffff),
                      "s_add_u32 s%d, s%d, 16384" % (S_TB, S_TB), "s_add_u32 s%d, s%d, s%d" % (S_TB, S_TB, T2)])
            if t0_ > max(ps):
                self.late_s += 1
        add(67, ["s_cmp_ge_u32 s%d, 98304" % S_RP, "s_cselect_b32 s%d, s6, s7" % S_DP, "s_add_u32 s%d, s%d, s%d" % (S_RP, S_RP, S_DP)])
        add(71, ["s_cmp_ge_u32 s%d, 98304" % S_RS, "s_cselect_b32 s%d, s6, s7" % S_DS, "s_add_u32 s%d, s%d, s%d" % (S_RS, S_RS, S_DS)])
        add(81, ["v_add_u32 v%d, s%d, v%d" % (V_RP + i, S_DP, V_RP + i) for i in range(2)])
        if self.skind == 't':
            for js in range(8):
                add((82, 86, 87, 90, 94, 95, 106, 107)[js], ["v_add_u32 v%d, s%d, v%d" % (V_RS + js, S_DS, V_RS + js)])
        else:
            add(83 if self.skind == 'n' else 106, ["v_add_u32 v%d, s%d, v%d" % (V_RS, S_DS, V_RS)])
            add(107, ["v_add_u32 v%d, s%d, v%d" % (V_RS + 1, S_DS, V_RS + 1)])
        add(108, ["s_add_u32 s%d, s%d, 1" % (S_IT, S_IT), "s_cmp_eq_u32 s%d, %d" % (S_IT, self.ns)])
        if "gnost" in XP:
            sts = []
        if "gnodma" in XP:
            base = [(sl, [l for l in ls if not l.endswith(" lds")], at) for sl, ls, at in base]
        cap = [2] * 64
        nrd = len(self.rd_s(0, 0)) * 2
        for jp in range(3):
            for k in range(nrd):
                cap[jp * 16 + 2 + 2 * k] -= 1
            cap[jp * 16 + 15] -= 1
            cap[jp * 16 + 17] -= 1
        for k in (1, 3, 7, 11):
            cap[k] -= 1
        for k, r in self.first_reads(0):
            cap[48 + k] -= 1
        cap[63] = 0
        key = lambda it: it[0]
        fa = place(sorted([x for x in base if x[0] < 64], key=key), cap)
        fas = place(sorted([x for x in base if x[0] < 64] + sts, key=key), cap)
        fb = place(sorted([(sl - 64, ls, at) for sl, ls, at in base if sl >= 64], key=key), cap[:47] + [1])
        return fas, fa, fb

    def gen(self, cont=False):
        a, I, nm = self.a, self.a.I, self.name
        fas, fa, fb = self.fills()

        def entry():
            I("s_mov_b32 s%d, 0" % S_IT)
            if self.skind == 't':
                for js in range(8):
                    I("v_xor_b32 v%d, %d, v%d" % (V_RS + js, js * 32, V_CT))
                for js in range(8):
                    I("v_add_u32 v%d, s%d, v%d" % (V_RS + js, S_RS, V_RS + js))
            else:
                if self.skind == 'b':
                    t = V_RS + 2
                    I("v_bfe_u32 v%d, v0, 5, 1" % t)
                    I("v_lshlrev_b32 v%d, 13, v%d" % (V_CN, t))
                    for bit, n, sh in ((7, 1, 12), (1, 1, 8), (1, 1, 6), (4, 1, 7), (2, 2, 4), (0, 1, 3)):
                        I("v_bfe_u32 v%d, v0, %d, %d" % (t, bit, n))
                        I("v_lshl_add_u32 v%d, v%d, %d, v%d" % (V_CN, t, sh, V_CN))
                I("v_add_u32 v%d, s%d, v%d" % (V_RS, S_RS, V_CN))
                I("v_xor_b32 v%d, 64, v%d" % (V_RS + 1, V_RS))
            q = []
            for k, (r, f) in sorted(self.first_reads(0), key=lambda x: x[0]):
                I(r)
                q.append(f)
            return q
        if cont:
            a.L(nm + "_c")
            entry()
            I("s_branch %s_as" % nm)
        a.L(nm)
        q0 = entry()
        q = list(q0)
        self.emit(0, range(4), True, fas, q, 1)
        qb = list(q)
        I("s_branch %s_b" % nm)
        NS_ = self.ns
        two = NSI < NS_
        if two:
            a.L(nm + "_as")
            q = list(q0)
            self.emit(0, range(4), False, fas, q, 1)
            I("s_branch %s_b" % nm)
        a.L(nm + "_hook")
        I("s_cmp_eq_u32 s%d, 1" % S_IT)
        I("s_cbranch_scc1 %s_sig0" % nm)
        if two:
            I("s_cmp_lt_u32 s%d, %d" % (S_IT, NSI))
            I("s_cbranch_scc1 %s_as" % nm)
        I("s_cmp_eq_u32 s%d, %d" % (S_IT, NS_ - 2))
        I("s_cbranch_scc1 %s_sws" % nm)
        I("s_cmp_eq_u32 s%d, %d" % (S_IT, NS_ - 1))
        I("s_cbranch_scc1 %s_swp" % nm)
        I("s_cmp_lg_u32 s%d, 0" % S_WV)
        I("s_cbranch_scc1 %s_a" % nm)
        if two:
            I("s_cmp_eq_u32 s%d, %d" % (S_IT, NS_ - 3))
            I("s_cbranch_scc1 %s_wait" % nm)
            I("s_cmp_lg_u32 s%d, %d" % (S_IT, NSI + 1))
            I("s_cbranch_scc1 %s_a" % nm)
            I("s_cmp_eq_u32 s%d, 0" % S_SIG)
            I("s_cbranch_scc1 %s_a" % nm)
            signal_lines(a, S_SIG)
            I("s_branch %s_a" % nm)
        a.L(nm + "_wait")
        I("s_cmp_eq_u32 s%d, 0" % S_WAIT)
        I("s_cbranch_scc1 %s_a" % nm)
        scalar_wait(a, S_WAIT, 32)
        I("s_branch %s_a" % nm)
        a.L(nm + "_sig0")
        I("s_cmp_eq_u32 s%d, 0" % S_SIG0)
        I("s_cbranch_scc1 %s_as" % nm)
        signal_lines(a, S_SIG0)
        I("s_mov_b32 s%d, 0" % S_SIG0)
        I("s_branch %s_as" % nm)
        a.L(nm + "_sws")
        for l in switch_lines('S'):
            I(l)
        I("s_branch %s_a" % nm)
        a.L(nm + "_swp")
        for l in switch_lines('P'):
            I(l)
        a.L(nm + "_a")
        if not two:
            a.L(nm + "_as")
        q = list(q0)
        self.emit(0, range(4), False, fa if two else fas, q, 1)
        assert q == qb
        a.L(nm + "_b")
        self.emit(1, range(3), False, fb, q)
        I("s_waitcnt vmcnt(%d) lgkmcnt(0)" % (self.late_s + self.late_st))
        if self.late_st:
            I("s_cbranch_vccnz %s_bar" % nm)
            I("s_waitcnt vmcnt(%d)" % self.late_s)
            a.L(nm + "_bar")
        I("s_barrier")
        I("s_cbranch_scc1 %s_last" % nm)
        q = []
        lo = NSI + 2 if two else 2
        self.emit(1, [3], False, {48 + 12: ["s_sub_u32 s%d, s%d, %d" % (T1, S_IT, lo), "s_cmp_lt_u32 s%d, %d" % (T1, NS_ - 3 - lo)]}, q, 0)
        assert q == q0, (q, q0)
        I("s_cbranch_scc1 %s_a" % nm)
        I("s_branch %s_hook" % nm)
        a.L(nm + "_last")
        self.emit(1, [3], False, {}, [])
        I("s_setpc_b64 s[%d:%d]" % (S_RET, S_RET + 1))


DBGP = [98]
ABORT = [None]
SPIN_LIMIT = 1 << 21


def signal_lines(a, soff, val=1):
    I = a.I
    I("v_mov_b32 v%d, s%d" % (V_X, soff))
    I("v_mov_b32 v%d, %d" % (V_X + 1, val))
    I("s_mov_b64 exec, 1")
    I("global_atomic_add v%d, v%d, s[%d:%d] sc1" % (V_X, V_X + 1, DBGP[0], DBGP[0] + 1))
    I("s_mov_b64 exec, -1")


def scalar_wait(a, soff, target):
    I = a.I
    lp, ok = a.uid("L_sw"), a.uid("L_swok")
    I("s_mov_b32 s%d, 0" % T2)
    a.L(lp)
    I("s_load_dword s%d, s[%d:%d], s%d glc" % (T3, DBGP[0], DBGP[0] + 1, soff))
    I("s_add_u32 s%d, s%d, 1" % (T2, T2))
    I("s_cmp_gt_u32 s%d, 0x%x" % (T2, SPIN_LIMIT))
    I("s_cbranch_scc1 %s" % ABORT[0])
    I("s_waitcnt lgkmcnt(0)")
    I("s_cmp_ge_u32 s%d, %s" % (T3, target))
    I("s_cbranch_scc1 %s" % ok)
    I("s_sleep 16")
    I("s_branch %s" % lp)
    a.L(ok)


def call(a, label):
    a.I("s_call_b64 s[%d:%d], %s" % (S_RET, S_RET + 1, label))


def gen_convert(a, name):
    I = a.I
    a.L(name)
    I("s_nop 7")
    for n in range(32):
        t = V_E + (n & 1) * 8
        for i in range(8):
            I("v_accvgpr_read_b32 v%d, a%d" % (t + i, n * 8 + i))
        for i in range(4):
            I("v_cvt_pk_bf16_f32 v%d, v%d, v%d" % (V_ST + 4 * n + i, t + 2 * i, t + 2 * i + 1))
    I("s_setpc_b64 s[%d:%d]" % (S_RET, S_RET + 1))


def gen_flush(a, name):
    I = a.I
    a.L(name)
    for it in range(16):
        if it % 4 == 0:
            I("s_mov_b32 s%d, s%d" % (S_STO, S_STB))
            if it & 4:
                I("s_add_u32 s%d, s%d, s%d" % (S_STO, S_STO, S_STD1))
            if it & 8:
                I("s_add_u32 s%d, s%d, s%d" % (S_STO, S_STO, S_STD2))
        elif it % 2 == 0:
            I("s_add_u32 s%d, s%d, 4096" % (S_STO, S_STO))
        for u in range(2):
            r = V_ST + 8 * it + 4 * u
            I("buffer_store_dwordx4 v[%d:%d], v%d, %s, s%d offen offset:%d sc1" % (r, r + 3, V_STA, srd_s(S_SO), S_STO, (it & 1) * 2048 + u * 1024))
    I("s_setpc_b64 s[%d:%d]" % (S_RET, S_RET + 1))
```

```python
from asmlib import *
from L2 import *
import gemm2 as G
from gemm2 import S_XW, S_RK, S_WV, S_POL, T0, T1, T2, T3, srd_s, LDS_END, signal_lines, SPIN_LIMIT
import os

SX, SW, SO = 8, 12, 16
S_M, S_R, S_D, S_XO, S_SEG, S_KO, S_PO, S_TO, S_WO, S_C32 = 20, 21, 22, 23, 24, 25, 26, 27, 28, 29
S_KB, S_PB, S_TC, S_MK = 30, 31, 33, 34
V_LIN, V_DX, V_RX, V_DW, V_RW, V_TCH, V_POLV, V_L4 = 1, 2, 4, 6, 8, 10, 11, 12
V_ONE, V_ACC, V_OUT, V_PK, V_F = 28, 32, 48, 64, 72
GROUP_END = [int(x) for x in os.environ.get("GRP", "0,1,2,3,4,6,9,13,18,25,34,46,63").split(",")]


def ring(r):
    return ["s_add_u32 s%d, s%d, 32768" % (r, r), "s_cmp_ge_u32 s%d, %d" % (r, LDS_END), "s_cselect_b32 s%d, %d, 0" % (T0, LDS_END), "s_sub_u32 s%d, s%d, s%d" % (r, r, T0)]


def get_polarity(a, vpol, vt):
    I = a.I
    lp, lok = a.uid("L_pp"), a.uid("L_pok")
    I("s_mov_b32 s%d, 0" % T2)
    a.L(lp)
    I("v_readfirstlane_b32 s%d, v%d" % (S_POL, vpol))
    I("s_and_b32 s%d, s%d, 0xff" % (T0, S_POL))
    I("s_cmp_ge_u32 s%d, 15" % T0)
    I("s_cbranch_scc1 %s" % lok)
    I("v_mov_b32 v%d, %d" % (vt, D_CAL * 4))
    I("global_load_dword v%d, v%d, s[%d:%d] sc1" % (vpol, vt, ptr(D_DBG), ptr(D_DBG) + 1))
    I("s_add_u32 s%d, s%d, 1" % (T2, T2))
    I("s_cmp_gt_u32 s%d, 0x%x" % (T2, SPIN_LIMIT))
    I("s_cbranch_scc1 %s" % G.ABORT[0])
    I("s_waitcnt vmcnt(0)")
    I("s_branch %s" % lp)
    a.L(lok)
    I("s_cmp_ge_u32 s%d, 0x800" % S_POL)
    I("s_cselect_b32 s%d, 0x2000, 0" % S_POL)


def xdma():
    return [("s_add_u32 m0, s%d, %d" % (S_M, st * (4096 - 128)), "buffer_load_dwordx4 v%d, %s, s%d offen offset:%d lds" % (V_DX, srd_s(SX), S_XO, st * 128)) for st in range(8)]


XADV = ["s_add_u32 s%d, s%d, 1024" % (S_XO, S_XO), "s_bitcmp1_b32 s%d, 11" % S_XO, "s_cselect_b32 s%d, 0x%x, 0" % (T0, 65536 - 2048), "s_add_u32 s%d, s%d, s%d" % (S_XO, S_XO, T0)]


ROLE = [None]


def calibrate(a, s_id, s_far, T0, B):
    T1, T2, T3 = T0 + 1, T0 + 2, T0 + 3
    import re
    I = lambda l: a.I(re.sub(r'@(\d)', lambda m: str(B + int(m.group(1))), l))
    I("s_lshl_b32 s%d, s%d, 14" % (T0, s_id))
    I("s_add_u32 s%d, s%d, 0x%x" % (T0, T0, X_CAL))
    I("s_add_u32 s@0, s%d, s%d" % (ptr(D_WS), T0))
    I("s_addc_u32 s@1, s%d, 0" % (ptr(D_WS) + 1))
    I("s_mov_b32 s%d, 0" % T0)
    I("s_atomic_or s%d, s[@0:@1], 0" % T0)
    I("s_atomic_or s%d, s[@0:@1], 0x2000" % T0)
    I("s_waitcnt lgkmcnt(0)")
    I("s_mov_b32 s%d, -1" % T1)
    I("s_mov_b32 s%d, -1" % T2)
    for rep in range(4):
        I("s_memtime s[@2:@3]")
        I("s_atomic_or s%d, s[@0:@1], 0" % T0)
        I("s_waitcnt lgkmcnt(0)")
        I("s_memtime s[@4:@5]")
        I("s_atomic_or s%d, s[@0:@1], 0x2000" % T0)
        I("s_waitcnt lgkmcnt(0)")
        I("s_sub_u32 s%d, s@4, s@2" % T3)
        I("s_memtime s[@2:@3]")
        I("s_min_u32 s%d, s%d, s%d" % (T1, T1, T3))
        I("s_waitcnt lgkmcnt(0)")
        I("s_sub_u32 s%d, s@2, s@4" % T3)
        I("s_min_u32 s%d, s%d, s%d" % (T2, T2, T3))
    I("s_cmp_lt_u32 s%d, s%d" % (T2, T1))
    I("s_cselect_b32 s%d, %s" % (T0, "1, 0x101" if s_far else "0x101, 1"))
    I("s_atomic_add s%d, s[%d:%d], %d" % (T0, ptr(D_DBG), ptr(D_DBG) + 1, D_CAL * 4))
    I("s_waitcnt lgkmcnt(0)")


def wload_setup(a, lg, split, pol):
    I = a.I
    t0, t1 = 24, 25
    I("v_bfe_u32 v%d, v0, 4, 3" % t0)
    I("v_lshlrev_b32 v%d, 1, v%d" % (t0, t0))
    I("v_and_b32 v%d, 15, v0" % t1)
    I("v_xor_b32 v%d, v%d, v%d" % (t0, t0, t1))
    I("v_lshlrev_b32 v%d, 4, v%d" % (V_DW, t0))
    for bit, n, sh in ((4, 2, 0), (6, 1, 2 if split else 3), (7, 1, 4 if split else 2)):
        I("v_bfe_u32 v%d, v0, %d, %d" % (t0, bit, n))
        I("v_lshl_add_u32 v%d, v%d, %d, v%d" % (V_DW, t0, lg + sh, V_DW))
    I("s_and_b32 s%d, s%d, 1" % (T0, S_WV))
    I("s_lshl_b32 s%d, s%d, 11" % (T1, T0))
    I("s_lshr_b32 s%d, s%d, 1" % (T0, S_WV))
    I("s_lshl_b32 s%d, s%d, 10" % (T0, T0))
    I("s_add_u32 s32, s%d, s%d" % (T0, T1))

    def wunit(u):
        for m in range(8):
            row = 32 * (m >> 1) + 8 * (m & 1) if split else 16 * m
            I("s_add_u32 m0, s32, %d" % ((u % 5) * 32768 + m * 4096))
            I("s_add_u32 s%d, s%d, 0x%x" % (T1, S_WO, (u * 128 + row) << lg))
            I("buffer_load_dwordx4 v%d, %s, s%d offen%s lds" % (V_DW, srd_s(SW), T1, pol))
    return wunit


def wread_setup(a, s_tx=None):
    I = a.I
    t0, t1 = 24, 25
    I("v_bfe_u32 v%d, v0, 2, 3" % t0)
    I("v_lshrrev_b32 v%d, 6, v0" % t1)
    I("v_lshlrev_b32 v%d, 1, v%d" % (t1, t1))
    I("v_xor_b32 v%d, v%d, v%d" % (t0, t0, t1))
    I("v_lshlrev_b32 v%d, 5, v%d" % (V_RW, t0))
    for bit, n, sh in ((0, 2, 3), (2, 2, 8), (4, 2, 11)):
        I("v_bfe_u32 v%d, v0, %d, %d" % (t0, bit, n))
        I("v_lshl_add_u32 v%d, v%d, %d, v%d" % (V_RW, t0, sh, V_RW))
    if s_tx is not None:
        I("v_xor_b32 v%d, s%d, v%d" % (V_RW, s_tx, V_RW))
    I("v_xor_b32 v%d, 32, v%d" % (V_RW + 1, V_RW))


def wread(a, u):
    I = a.I
    d = {2: 65536, 4: 65536, 5: -131072, 7: 65536}.get(u)
    if d:
        for t in range(2):
            I("v_add_u32 v%d, 0x%x, v%d" % (V_RW + t, d & 0xffffffff, V_RW + t))
    for ks in range(4):
        for t in range(2):
            d = ((u * 4 + ks) * 2 + t) * 4
            for hf in range(2):
                I("ds_read_b64_tr_b16 a[%d:%d], v%d offset:%d" % (d + 2 * hf, d + 2 * hf + 1, V_RW + t, ((u % 5) & 1) * 32768 + ks * 8192 + hf * 1024))
        if ks == 1:
            I("s_waitcnt lgkmcnt(0)")
    I("s_waitcnt lgkmcnt(0)")


def program(a, st):
    I = a.I
    t0, t1 = 24, 25
    a.L("kvs_start")
    I("s_cmp_eq_u32 s%d, 3" % S_XW)
    I("s_cselect_b64 s[%d:%d], s[%d:%d], s[%d:%d]" % (SW, SW + 1, ptr(B_WV), ptr(B_WV) + 1, ptr(B_WK), ptr(B_WK) + 1))
    I("s_cmp_eq_u32 s%d, 1" % S_XW)
    I("s_cselect_b64 s[%d:%d], s[%d:%d], s[%d:%d]" % (SW, SW + 1, ptr(B_WQ), ptr(B_WQ) + 1, SW, SW + 1))
    I("s_and_b32 s%d, s%d, 0xffff" % (SW + 1, SW + 1))
    I("s_mov_b32 s%d, 0x%x" % (SW + 2, 8 * MB))
    I("s_mov_b32 s%d, 0x00020000" % (SW + 3))
    I("s_lshl_b32 s%d, s%d, 8" % (S_WO, S_RK))
    wunit = wload_setup(a, 13, False, " nt")
    wunit(0)
    a.srd(SX, ptr(B_X), 0, 4 * MB)
    a.srd(SO, ptr(D_WS), 0, X_PXF + 32 * MB)
    I("v_and_b32 v%d, 63, v0" % t0)
    I("v_lshlrev_b32 v%d, 4, v%d" % (V_LIN, t0))
    I("v_add_u32 v%d, 4096, v%d" % (V_L4, V_LIN))
    I("v_lshlrev_b32 v%d, 7, v%d" % (V_TCH, t0))
    I("s_lshl_b32 s%d, s%d, 13" % (S_TO, S_RK))
    I("s_and_b32 s%d, s%d, 1" % (T0, S_WV))
    I("s_lshl_b32 s%d, s%d, 18" % (T0, T0))
    I("s_add_u32 s%d, s%d, s%d" % (T0, T0, S_TO))
    I("buffer_load_dword v13, v%d, %s, s%d offen%s" % (V_TCH, srd_s(SX), T0, " nt" * int(os.environ.get("XNT0", "0"))))
    I("s_add_u32 s%d, s%d, 0x80000" % (S_TO, S_TO))
    wunit(1)
    I("v_bfe_u32 v%d, v0, 4, 3" % t0)
    I("v_and_b32 v%d, 7, v0" % t1)
    I("v_xor_b32 v%d, v%d, v%d" % (t0, t0, t1))
    I("v_lshlrev_b32 v%d, 4, v%d" % (V_DX, t0))
    I("v_lshrrev_b32 v%d, 3, v0" % t0)
    I("v_lshl_add_u32 v%d, v%d, 11, v%d" % (V_DX, t0, V_DX))
    I("v_bfe_u32 v%d, v0, 1, 3" % t0)
    I("v_bfe_u32 v%d, v0, 4, 2" % t1)
    I("v_xor_b32 v%d, v%d, v%d" % (t0, t0, t1))
    I("v_lshlrev_b32 v%d, 4, v%d" % (V_RX, t0))
    I("v_and_b32 v%d, 15, v0" % t1)
    I("v_lshl_add_u32 v%d, v%d, 7, v%d" % (V_RX, t1, V_RX))
    I("v_add_u32 v%d, %d, v%d" % (V_RX, 3 * 32768, V_RX))
    I("v_xor_b32 v%d, 64, v%d" % (V_RX + 1, V_RX))
    wunit(2)
    wread_setup(a)
    for i in range(4):
        I("v_mov_b32 v%d, -1" % (V_ONE + i))
    I("s_lshl_b32 s%d, s%d, 10" % (S_M, S_WV))
    I("s_add_u32 s%d, s%d, %d" % (S_M, S_M, 3 * 32768))
    I("s_mov_b32 s%d, %d" % (S_R, 3 * 32768))
    I("s_mov_b32 s%d, 0" % S_XO)
    I("s_mov_b32 s%d, 32768" % S_C32)
    wunit(3)
    I("s_lshl_b32 s%d, s%d, 16" % (S_KB, S_RK))
    I("s_cmp_eq_u32 s%d, 3" % S_XW)
    I("s_cselect_b32 s%d, 11, 10" % T0)
    I("s_cselect_b32 s%d, 0x4000, 0" % T1)
    I("s_lshl_b32 s%d, s%d, s%d" % (T0, S_WV, T0))
    I("s_add_u32 s%d, s%d, s%d" % (S_KB, S_KB, T0))
    I("s_add_u32 s%d, s%d, s%d" % (S_KB, S_KB, T1))
    I("s_lshl_b32 s%d, s%d, 14" % (S_PB, S_RK))
    I("s_lshr_b32 s%d, s%d, 2" % (T1, T1))
    I("s_add_u32 s%d, s%d, s%d" % (S_PB, S_PB, T1))
    I("s_lshl_b32 s%d, s%d, 10" % (T0, S_WV))
    I("s_add_u32 s%d, s%d, s%d" % (S_PB, S_PB, T0))
    I("s_add_u32 s%d, s%d, 0x%x" % (S_PB, S_PB, X_PXF))
    I("s_cmp_eq_u32 s%d, 1" % S_XW)
    I("s_cselect_b32 s%d, 0x%x, s%d" % (S_PB, X_PXF + 32 * MB, S_PB))
    I("s_cselect_b32 s%d, 0x8000, 0" % T0)
    I("s_add_u32 s%d, s%d, s%d" % (S_KB, S_KB, T0))
    wunit(4)
    for u in range(8):
        I("s_waitcnt vmcnt(%d)" % (33 if u == 0 else 24))
        I("s_barrier")
        if u == 0:
            st(1)
        if u >= 1:
            if u + 4 < 8:
                wunit(u + 4)
            elif u < 7:
                for m, l in xdma():
                    I(m)
                    I("s_nop 0")
                    I(l)
                for l in XADV + ring(S_M):
                    I(l)
        if u == 3:
            I("v_mov_b32 v%d, %d" % (t0, D_CAL * 4))
            I("global_load_dword v%d, v%d, s[%d:%d] sc1" % (V_POLV, t0, ptr(D_DBG), ptr(D_DBG) + 1))
        if u == 3:
            ROLE[1](a, (S_XW, 4), S_WV, T0, G.ABORT[0])
        if u == 7:
            ROLE[0](a, S_RK, "kvs_start", S_WV, 32768, T0, t0)
        wread(a, u)
    I("s_waitcnt vmcnt(16)")
    I("s_barrier")
    get_polarity(a, V_POLV, t0)
    I("s_xor_b32 s%d, s%d, s%d" % (S_PB, S_PB, S_POL))
    I("s_xor_b32 s%d, s%d, s%d" % (S_KB, S_KB, S_POL))
    I("s_mov_b32 s%d, 0" % S_SEG)
    I("s_mov_b32 s%d, 0" % (SO + 2))
    st(2)
    lv, le = a.uid("L_kvv"), a.uid("L_kve")
    I("s_cmp_eq_u32 s%d, 3" % S_XW)
    I("s_cbranch_scc1 %s" % lv)
    stream(a, 'k', le)
    a.L(lv)
    stream(a, 'v', le)
    a.L(le)
    st(3)


def stream(a, kind, end):
    I = a.I
    nm = "kvs" + kind
    D = 3
    rd = lambda ks, tau: "ds_read_b128 v[%d:%d], v%d offset:%d" % (V_F + (ks & 3) * 8 + tau * 4, V_F + (ks & 3) * 8 + tau * 4 + 3, V_RX + (ks & 1), ((ks & 15) >> 1) * 4096 + tau * 2048)
    idx = (lambda tau, t: tau * 2 + t) if kind == 'k' else (lambda tau, t: t * 2 + tau)
    cvt = ["v_cvt_pk_bf16_f32 v%d, v%d, v%d" % (V_PK + i, V_OUT + 2 * i, V_OUT + 2 * i + 1) for i in range(8)]
    addr = ["s_lshl_b32 s%d, s%d, 21" % (S_KO, S_SEG), "s_lshl_b32 s%d, s%d, 13" % (T2, S_SEG), "s_and_b32 s%d, s%d, 0x2000" % (T2, T2),
            "s_xor_b32 s%d, s%d, s%d" % (T2, T2, S_KB), "s_add_u32 s%d, s%d, s%d" % (S_KO, S_KO, T2),
            "s_lshl_b32 s%d, s%d, 19" % (S_PO, S_SEG), "s_lshl_b32 s%d, s%d, 11" % (T2, S_SEG), "s_and_b32 s%d, s%d, 0x2000" % (T2, T2),
            "s_xor_b32 s%d, s%d, s%d" % (T2, T2, S_PB), "s_add_u32 s%d, s%d, s%d" % (S_PO, S_PO, T2)]
    stores = ["buffer_store_dwordx4 v[%d:%d], v%d, %s, s%d offen sc1" % (V_PK, V_PK + 3, V_LIN, srd_s(SO), S_KO),
              "buffer_store_dwordx4 v[%d:%d], v%d, %s, s%d offen%s sc1" % (V_PK + 4, V_PK + 7, V_L4 if kind == 'k' else V_LIN, srd_s(SO), S_KO, "" if kind == 'k' else " offset:1024"),
              "buffer_store_dwordx4 v[%d:%d], v%d, %s, s%d offen sc1" % (V_ONE, V_ONE + 3, V_LIN, srd_s(SO), S_PO)]
    radv = [["s_cmp_ge_u32 s%d, %d" % (S_R, LDS_END - 32768), "s_cselect_b32 s%d, 0x%x, s%d" % (S_D, (-131072) & 0xffffffff, S_C32), "s_add_u32 s%d, s%d, s%d" % (S_R, S_R, S_D)],
            ["v_add_u32 v%d, s%d, v%d" % (V_RX, S_D, V_RX)], ["v_add_u32 v%d, s%d, v%d" % (V_RX + 1, S_D, V_RX + 1)]]
    for ks in range(D):
        for tau in range(2):
            I(rd(ks, tau))
    items = []
    add = lambda s, ls, at=False: items.append((s, ls, at))
    E = lambda k, d: int(os.environ.get(k, str(d)))
    add(3, cvt)
    for i, l in enumerate(stores):
        add(E("KST0", 8) + E("KSTD", 2) * i, [l + " #st"])
    add(15, ["buffer_load_dword v13, v%d, %s, s%d offen%s" % (V_TCH, srd_s(SX), S_TC, " nt" * E("XNT", 0))])
    mk = sum(1 << g for g in GROUP_END if g >= 3) | (1 << 62)
    add(18, ["s_mov_b32 s%d, 0x%x" % (SO + 2, X_PXF + 32 * MB)] + addr + radv[0] +
        ["s_add_u32 s%d, s%d, 0x10000" % (S_TO, S_TO), "s_andn2_b32 s%d, 3, s%d" % (T1, S_SEG), "s_or_b32 s%d, s%d, s%d" % (T1, T1, S_WV),
         "s_cselect_b32 s%d, 0x400000, s%d" % (S_TC, S_TO), "s_cmp_lt_u32 s%d, 4" % S_SEG, "s_cselect_b64 vcc, -1, 0"])
    d0, dd = E("KD0", 40), E("KDD", 5)
    for un in range(2):
        for q, (m, l) in enumerate(xdma()):
            add(d0 + dd * (8 * un + q), [m, l + (" #" + "ab"[un] if q == 7 else "")] + (XADV + ring(S_M) if q == 7 else []))
        add(un * 64 + 4 * (14 - D) + 1.5, radv[1], True)
        add(un * 64 + 4 * (15 - D) + 1.5, radv[2], True)
    add(62, radv[0])
    add(124, ["s_add_u32 s%d, s%d, 1" % (S_SEG, S_SEG), "s_sub_u32 s%d, s%d, 2" % (T1, S_SEG), "s_bitcmp1_b64 s[%d:%d], s%d" % (S_MK, S_MK + 1, T1)])
    items = [(int(s + 0.5), ls, at) for s, ls, at in sorted(items, key=lambda it: it[0])]
    fill = place(items, [(1, 1, 2, 1)[i & 3] for i in range(120)] + [2] * 8)
    for kk in fill:
        assert radv[1][0] not in fill[kk] or 46 <= kk % 64 < 52
        assert radv[2][0] not in fill[kk] or 50 <= kk % 64 < 56
    late_a = min(kk for kk in fill if any(l.endswith("#a") for l in fill[kk])) >= 52
    late_b = min(kk for kk in fill if any(l.endswith("#b") for l in fill[kk])) >= 116
    I("s_mov_b32 s%d, 0x%x" % (S_MK, mk & 0xffffffff))
    I("s_mov_b32 s%d, 0x%x" % (S_MK + 1, (mk >> 32) & 0x7fffffff))
    I("s_cmp_eq_u32 s%d, 0" % S_WV)
    I("s_cselect_b32 s%d, s%d, 0x400000" % (S_TC, S_TO))
    I("s_mov_b32 s%d, 0" % S_KO)
    I("s_mov_b32 s%d, 0" % S_PO)
    early = []

    def body(v):
        for ks in range(32):
            if ks == 16 - D:
                v.I("@wait %s" % ("a" if late_a else "a<"))
                v.I("s_cbranch_vccnz %s_early" % nm)
                early.append(len(v.seq) - 1 - max(i for i, t in enumerate(v.seq) if t == "st"))
                v.I("s_barrier")
                v.I(nm + "_mid:")
            if ks == 32 - D:
                v.I("@wait %s st" % ("b" if late_b else "b<"))
                v.I("s_barrier")
            v.I("s_waitcnt lgkmcnt(%d)" % (2 * D - 2))
            k = 0
            for tau, t in ((0, 0), (0, 1), (1, 1), (1, 0)):
                c = V_ACC + idx(tau, t) * 4
                d = V_OUT + idx(tau, t) * 4 if ks == 31 else c
                w, x = "a[%d:%d]" % ((ks * 2 + t) * 4, (ks * 2 + t) * 4 + 3), "v[%d:%d]" % (V_F + (ks & 3) * 8 + tau * 4, V_F + (ks & 3) * 8 + tau * 4 + 3)
                v.I("v_mfma_f32_16x16x32_bf16 v[%d:%d], %s, %s, %s" % (d, d + 3, w if kind == 'k' else x, x if kind == 'k' else w, "0" if ks == 0 else "v[%d:%d]" % (c, c + 3)))
                if k < 2:
                    v.I(rd(ks + D, k))
                for l in fill.get(ks * 4 + k, []):
                    v.I(l)
                k += 1
    v0 = VM(Asm())
    body(v0)
    a.L(nm)
    body(VM(a, v0.seq))
    I("s_cbranch_scc0 %s" % nm)
    I("s_cmp_eq_u32 s%d, 64" % S_SEG)
    I("s_cbranch_scc1 %s_fin" % nm)
    I("s_cmp_lg_u32 s%d, 0" % S_WV)
    I("s_cbranch_scc1 %s" % nm)
    group_word(a, T1, T0)
    signal_lines(a, T0)
    I("s_branch %s" % nm)
    a.L(nm + "_early")
    I("s_waitcnt vmcnt(%d)" % early[0])
    I("s_barrier")
    I("s_cmp_eq_u32 s%d, 0" % S_SEG)
    I("s_cbranch_scc1 %s_mid" % nm)
    I("s_cmp_lg_u32 s%d, 0" % S_WV)
    I("s_cbranch_scc1 %s_mid" % nm)
    I("s_lshl_b32 s%d, s%d, 2" % (T0, S_SEG))
    I("s_add_u32 s%d, s%d, %d" % (T0, T0, D_EV * 4 - 4))
    signal_lines(a, T0)
    I("s_branch %s_mid" % nm)
    a.L(nm + "_fin")
    for l in ["s_nop 7"] + cvt + stores:
        I(l)
    I("s_waitcnt vmcnt(0) lgkmcnt(0)")
    I("s_barrier")
    I("s_cmp_lg_u32 s%d, 0" % S_WV)
    I("s_cbranch_scc1 %s" % end)
    I("s_mov_b32 s%d, %d" % (T0, (D_EV + len(GROUP_END) - 1) * 4))
    signal_lines(a, T0)
    I("s_branch %s" % end)


def group_word(a, s_seg, d, p0=T2):
    I = a.I
    m = sum(1 << g for g in GROUP_END)
    I("s_bfm_b64 s[%d:%d], s%d, 0" % (p0, p0 + 1, s_seg))
    I("s_and_b32 s%d, s%d, 0x%x" % (p0, p0, m & 0xffffffff))
    I("s_and_b32 s%d, s%d, 0x%x" % (p0 + 1, p0 + 1, m >> 32))
    I("s_bcnt1_i32_b64 s%d, s[%d:%d]" % (d, p0, p0 + 1))
    I("s_lshl_b32 s%d, s%d, 2" % (d, d))
    I("s_add_u32 s%d, s%d, %d" % (d, d, D_EV * 4))
```

```python
from asmlib import *
from L2 import *
import gemm2 as G
from gemm2 import S_XW, S_RK, S_WV, S_POL, T0, T1, T2, T3, srd_s, SPIN_LIMIT, LDS_END
import kvs
import os

E = lambda k, d: int(os.environ.get(k, str(d)))
PTH = E("PTH", 9)
PFIRST = [int(x) for x in os.environ.get("PFIRST", "%d,0,1,2" % (PTH + 3)).split(",")]
PCNT = [int(x) for x in os.environ.get("PCNT", "12,15,15,15").split(",")]
TLIST = [[int(y) for y in x.split(",") if y] for x in os.environ.get("TLIST", "60;57,61;58,62;59,63").split(";")]


def plist(x):
    out, s = [], PFIRST[x]
    for i in range(PCNT[x]):
        out.append(s)
        s += 3 if s < PTH else 4
    return out


assert sorted(sum([plist(x) for x in range(4)] + TLIST, [])) == list(range(64))
SWS, SOUT = 8, 16
W = srd_s(SWS)
S_M, S_R, S_D, S_OA, S_PS, S_OUTO, S_TICK, S_FL = 20, 21, 22, 23, 24, 25, 26, 27
S_C32, S_SPIN, S_HB, S_SEG, S_NEED, S_LASTS, S_TL, S_TA, S_TD, S_CNT, S_FIN = 29, 30, 31, 33, 34, 35, 36, 37, 38, 39, 40
S_NX, S_HIST = 41, 42
V_LIN, V_L4, V_RO, V_TCH, V_OA, V_PA, V_PT, V_PV, V_PS, V_PL, V_Z, V_TK = 1, 2, 4, 10, 15, 16, 18, 19, 20, 23, 11, 12
V_ACC, V_OUT, V_H, V_F, V_RL = 32, 48, 64, 72, 104


def o_dma(tag):
    out = []
    for hf in range(2):
        out += ["s_add_u32 m0, s%d, %d" % (S_M, hf * 4096), "s_nop 0"]
        out += ["buffer_load_dwordx4 v%d, %s, s%d offen offset:%d lds #%s" % ((V_LIN, V_L4)[hf], W, S_OA, i * 1024, tag if hf and i == 3 else "d") for i in range(4)]
    return out


def seg_addr(s, d=S_OA):
    return ["s_lshl_b32 s%d, s%d, 13" % (T1, s), "s_and_b32 s%d, s%d, 0x2000" % (T1, T1), "s_xor_b32 s%d, s%d, s%d" % (T1, T1, S_HB),
            "s_lshl_b32 s%d, s%d, 21" % (d, s), "s_add_u32 s%d, s%d, s%d" % (d, d, T1),
            "s_cmp_gt_u32 s%d, s%d" % (s, S_LASTS), "s_cselect_b32 s%d, 0x%x, s%d" % (d, WS_END, d)]


HALF2 = ["s_add_u32 s%d, s%d, 0x40000" % (S_OA, S_OA)]
PST = ["buffer_store_dwordx4 v[%d:%d], v%d, %s, s%d offen #pst" % (V_OUT + 4 * e, V_OUT + 4 * e + 3, V_PS + e, W, S_PS) for e in range(3)]
RED = ["buffer_load_dwordx4 v[%d:%d], v%d, %s, s%d offen offset:%d sc1 #red" % (V_RL + 4 * e, V_RL + 4 * e + 3, V_PL, W, S_PS, e * 1024) for e in range(3)]


def red_fin(hold):
    r = V_RL
    pa = lambda d, x, y: "v_pk_add_f32 v[%d:%d], v[%d:%d], v[%d:%d]" % (d, d + 1, x, x + 1, y, y + 1)
    o = [pa(r, r, hold), pa(r + 2, r + 2, hold + 2), pa(r + 4, r + 4, r + 8), pa(r + 6, r + 6, r + 10), pa(r, r, r + 4), pa(r + 2, r + 2, r + 6)]
    o += ["v_cvt_pk_bf16_f32 v%d, 0, v%d" % (r + i, r + i) for i in range(4)]
    o += ["buffer_store_dwordx4 v[%d:%d], v%d, %s, s%d offen%s #out" % (r, r + 3, V_OA, srd_s(SOUT), S_OUTO, " nt" * E("ONT", 0))]
    return o


PUBLISH = ["s_add_u32 s%d, s%d, 1" % (S_TICK, S_TICK), "v_mov_b32 v%d, s%d" % (V_TK, S_TICK),
           "buffer_store_dword v%d, v%d, %s, s%d offen #fl" % (V_TK, V_Z, W, S_FL)]
POLL = "global_load_dword v%d, v[%d:%d], off sc1 #poll" % (V_PV, V_PA, V_PA + 1)
TARGETS = ["v_mov_b32 v%d, s%d" % (V_PT, S_TICK), "v_writelane_b32 v%d, s%d, 32" % (V_PT, S_NEED), "v_writelane_b32 v%d, s%d, 33" % (V_PT, S_FIN)]


def poll_loop(a, sleep=1):
    I = a.I
    lp, ok = a.uid("L_sp"), a.uid("L_spok")
    a.L(lp)
    I(POLL.split(" #")[0])
    I("s_add_u32 s%d, s%d, 1" % (S_SPIN, S_SPIN))
    I("s_cmp_gt_u32 s%d, 0x%x" % (S_SPIN, SPIN_LIMIT))
    I("s_cbranch_scc1 %s" % G.ABORT[0])
    I("s_waitcnt vmcnt(0)")
    I("v_cmp_lt_u32 vcc, v%d, v%d" % (V_PV, V_PT))
    I("s_cbranch_vccz %s" % ok)
    if sleep:
        I("s_sleep %d" % sleep)
    I("s_branch %s" % lp)
    a.L(ok)


D = 3


def rd(ks, tl, lin=False):
    o = (ks >> 2) * 8192 if lin else ((ks & 15) >> 2) * 8192
    return "ds_read_b128 v[%d:%d], v%d offset:%d" % (V_F + (ks & 3) * 8 + tl * 4, V_F + (ks & 3) * 8 + tl * 4 + 3, V_RO + tl, o + (ks & 3) * 1024)


def op_body(v, fill, bars, cyc):
    for ks in range(32):
        for l in bars.get(ks, []):
            v.I(l)
        v.I("s_waitcnt lgkmcnt(%d)" % (2 * D - 2 if cyc else min(2 * D - 2, 2 * (31 - ks))))
        k = 0
        for tl, t in ((0, 0), (0, 1), (1, 1), (1, 0)):
            c = V_ACC + (tl * 2 + t) * 4
            d = V_OUT + (tl * 2 + t) * 4 if ks == 31 else c
            w = (ks * 2 + t) * 4
            x = V_F + (ks & 3) * 8 + tl * 4
            v.I("v_mfma_f32_16x16x32_bf16 v[%d:%d], a[%d:%d], v[%d:%d], %s" % (d, d + 3, w, w + 3, x, x + 3, "0" if ks == 0 else "v[%d:%d]" % (c, c + 3)))
            if k < 2 and (cyc or ks + D < 32):
                v.I(rd(ks + D, k, not cyc))
            for l in fill.get(ks * 4 + k, []):
                v.I(l)
            k += 1


def table(a, d, vals, bits=8):
    a.I("s_mul_i32 s%d, s%d, %d" % (d, S_XW, bits))
    a.I("s_lshr_b32 s%d, 0x%x, s%d" % (d, sum(x << (bits * i) for i, x in enumerate(vals)), d))
    a.I("s_and_b32 s%d, s%d, %d" % (d, d, (1 << bits) - 1))


def ring_reset(a):
    I = a.I
    I("s_lshl_b32 s%d, s%d, 13" % (S_M, S_WV))
    I("s_mov_b32 s%d, 0" % S_R)
    I("s_lshr_b32 s%d, s%d, 4" % (T0, S_RK))
    I("s_lshl_b32 s%d, s%d, 12" % (T0, T0))
    I("v_add_u32 v%d, s%d, v%d" % (V_RO + 1, T0, V_LIN))
    I("v_xor_b32 v%d, 4096, v%d" % (V_RO, V_RO + 1))


def setup(a):
    I = a.I
    t0, t1 = 24, 25
    a.srd(SWS, ptr(D_WS), 0, WS_END)
    a.srd(SOUT, ptr(D_OUT), 0, 16 * MB)
    I("v_and_b32 v%d, 63, v0" % t0)
    I("v_lshlrev_b32 v%d, 4, v%d" % (V_LIN, t0))
    I("v_add_u32 v%d, 4096, v%d" % (V_L4, V_LIN))
    I("v_lshlrev_b32 v%d, 7, v%d" % (V_TCH, t0))
    I("v_mov_b32 v%d, 0" % V_Z)
    I("s_lshl_b32 s%d, s%d, 8" % (T0, S_XW))
    I("s_add_u32 s%d, s%d, 0x%x" % (T0, T0, X_SF))
    I("s_lshl2_add_u32 s%d, s%d, s%d" % (S_FL, S_RK, T0))
    I("s_and_b32 s%d, s%d, 7" % (S_TD, S_RK))
    I("s_lshl_b32 s%d, s%d, 16" % (S_TD, S_TD))
    I("s_cmp_eq_u32 s%d, 0" % S_WV)
    I("s_cselect_b32 s%d, s%d, 0x%x" % (S_FL, S_FL, WS_END))
    I("s_cselect_b32 s%d, s%d, 0x%x" % (S_TD, S_TD, WS_END))
    I("s_add_u32 s%d, s%d, s%d" % (T0, T0, ptr(D_WS)))
    I("s_addc_u32 s%d, s%d, 0" % (T1, ptr(D_WS) + 1))
    I("v_and_b32 v%d, 31, v0" % t1)
    I("v_lshlrev_b32 v%d, 2, v%d" % (t1, t1))
    I("v_add_u32 v%d, s%d, v%d" % (V_PA, T0, t1))
    I("v_mov_b32 v%d, s%d" % (V_PA + 1, T1))
    I("s_add_u32 s%d, s%d, %d" % (T0, ptr(D_DBG), D_PROG * 4))
    I("s_addc_u32 s%d, s%d, 0" % (T1, ptr(D_DBG) + 1))
    I("v_writelane_b32 v%d, s%d, 32" % (V_PA, T0))
    I("v_writelane_b32 v%d, s%d, 32" % (V_PA + 1, T1))
    for r in (S_TICK, S_SPIN, S_FIN):
        I("s_mov_b32 s%d, 0" % r)
    I("s_mov_b32 s%d, 32768" % S_C32)
    I("v_and_b32 v%d, 15, v0" % t0)
    I("v_lshlrev_b32 v%d, 13, v%d" % (V_OA, t0))
    I("v_bfe_u32 v%d, v0, 4, 2" % t0)
    I("v_lshl_add_u32 v%d, v%d, 4, v%d" % (V_OA, t0, V_OA))
    I("s_lshr_b32 s%d, s%d, 4" % (T0, S_RK))
    I("s_lshl_b32 s%d, s%d, 17" % (T0, T0))
    I("s_and_b32 s%d, s%d, 7" % (T1, S_RK))
    I("s_lshl_b32 s%d, s%d, 9" % (T1, T1))
    I("s_add_u32 s%d, s%d, s%d" % (T0, T0, T1))
    I("s_lshl_b32 s%d, s%d, 7" % (T1, S_WV))
    I("s_add_u32 s%d, s%d, s%d" % (T0, T0, T1))
    I("s_and_b32 s%d, s%d, 8" % (T1, S_RK))
    I("s_lshl_b32 s%d, s%d, 3" % (T1, T1))
    I("s_add_u32 s%d, s%d, s%d" % (T0, T0, T1))
    I("s_add_u32 s%d, s%d, 4096" % (T0, T0))
    I("v_add_u32 v%d, s%d, v%d" % (V_OA, T0, V_OA))
    I("s_lshl_b32 s%d, s%d, 12" % (T1, S_WV))
    for e in range(4):
        I("s_xor_b32 s%d, s%d, %d" % (T0, S_RK, (e ^ 3) << 3))
        I("s_lshl_b32 s%d, s%d, 14" % (T0, T0))
        I("s_add_u32 s%d, s%d, s%d" % (T0, T0, T1))
        I("s_add_u32 s%d, s%d, %d" % (T0, T0, (e % 3) * 1024))
        I("v_add_u32 v%d, s%d, v%d" % (V_PS + e, T0, V_LIN))
    I("s_lshl_b32 s%d, s%d, 20" % (S_PS, S_XW))
    I("s_add_u32 s%d, s%d, 0x%x" % (S_PS, S_PS, X_SP))
    I("s_and_b32 s%d, s%d, 24" % (T0, S_RK))
    I("s_add_u32 s%d, s%d, s%d" % (T0, T0, S_WV))
    I("s_lshl_b32 s%d, s%d, 16" % (S_HB, T0))
    I("s_add_u32 s%d, s%d, 0xc000" % (S_HB, S_HB))
    I("s_add_u32 s%d, s%d, s%d" % (S_HB, S_HB, S_POL))
    table(a, S_SEG, PFIRST)
    table(a, S_CNT, PCNT)
    for x in range(4):
        I("s_cmp_eq_u32 s%d, %d" % (S_XW, x))
        I("s_cmov_b32 s%d, 0x%x" % (S_TL, sum(s << (8 * i) for i, s in enumerate(TLIST[x]))))


def plain(a, lines):
    for l in lines:
        a.I(l.split(" #")[0])


def sync(a):
    a.I("s_waitcnt vmcnt(0)")
    a.I("s_barrier")
    plain(a, PUBLISH + TARGETS)
    poll_loop(a, 0)


def program(a, wstamp):
    I = a.I
    st = lambda i: wstamp(a, i, 250)
    a.C("======== output projection")
    I("s_xor_b32 s%d, s%d, 2" % (S_RK, S_RK))
    for x in range(4):
        if not PCNT[x] and not TLIST[x]:
            I("s_cmp_eq_u32 s%d, %d" % (S_XW, x))
            I("s_cbranch_scc1 seg_end")
    I("s_waitcnt vmcnt(0) lgkmcnt(0)")
    I("s_barrier")
    a.srd(kvs.SW, ptr(B_WO), 0, 8 * MB)
    I("s_lshr_b32 s%d, s%d, 3" % (T0, S_RK))
    I("s_lshl_b32 s%d, s%d, 21" % (kvs.S_WO, T0))
    I("s_and_b32 s%d, s%d, 7" % (T0, S_RK))
    I("s_lshl_b32 s%d, s%d, 8" % (T0, T0))
    I("s_add_u32 s%d, s%d, s%d" % (kvs.S_WO, kvs.S_WO, T0))
    wunit = kvs.wload_setup(a, 11, True, " nt" if E("SEGNT", 1) else "")
    wunit(0)
    setup(a)
    for u in range(1, 5):
        wunit(u)
    I("s_andn2_b32 s%d, 8, s%d" % (T0, S_RK))
    I("s_lshl_b32 s%d, s%d, 2" % (T0, T0))
    kvs.wread_setup(a, T0)
    for u in range(8):
        I("s_waitcnt vmcnt(%d)" % (32 if u == 0 else 8 * min(3, 7 - u)))
        I("s_barrier")
        if 1 <= u < 4:
            wunit(u + 4)
        kvs.wread(a, u)
    st(13)
    I("s_barrier")
    I("s_cmp_eq_u32 s%d, 0" % S_CNT)
    I("s_cbranch_scc1 seg_t0")
    ring_reset(a)
    table(a, S_LASTS, [(plist(x) or [0])[-1] for x in range(4)])
    I("s_add_u32 s%d, s%d, 11" % (S_NEED, S_SEG))
    I("s_mov_b32 s%d, 0" % S_OUTO)
    I("s_mov_b32 s%d, 0" % S_HIST)
    I("s_mov_b32 s%d, 0" % (SOUT + 2))
    plain(a, TARGETS)
    poll_loop(a, 4)
    step = ["s_cmp_lt_u32 s%d, %d" % (S_SEG, PTH), "s_cselect_b32 s%d, 3, 4" % S_NX, "s_add_u32 s%d, s%d, s%d" % (S_NX, S_NX, S_SEG)]
    adv = ["s_lshl_b32 s%d, s%d, 8" % (S_HIST, S_HIST), "s_or_b32 s%d, s%d, s%d" % (S_HIST, S_HIST, S_SEG), "s_mov_b32 s%d, s%d" % (S_SEG, S_NX)] + step
    nxt = seg_addr(S_SEG)
    plain(a, step + seg_addr(S_SEG) + o_dma("") + kvs.ring(S_M) + HALF2 + o_dma("") + kvs.ring(S_M) + adv + nxt + o_dma("") + kvs.ring(S_M) + HALF2)
    I("s_mov_b32 s%d, 0x%x" % (S_TA, WS_END))
    I("s_waitcnt vmcnt(8)")
    I("s_barrier")
    st(14)
    for ks in range(D):
        I(rd(ks, 0))
        I(rd(ks, 1))
    radv = [["s_cmp_ge_u32 s%d, %d" % (S_R, LDS_END - 32768), "s_cselect_b32 s%d, 0x%x, s%d" % (S_D, (-131072) & 0xffffffff, S_C32), "s_add_u32 s%d, s%d, s%d" % (S_R, S_R, S_D)],
            ["v_add_u32 v%d, s%d, v%d" % (V_RO + i, S_D, V_RO + i) for i in range(2)]]

    def pbody(v):
        items = []
        add = lambda s, ls, at=False: items.append((s, ls, at))
        sp = lambda ls, s0, d: [add(s0 + d * i, [l]) for i, l in enumerate(ls)]
        nn = lambda ls: [l for l in ls if l != "s_nop 0"]
        add(0, ["@wait red"] + red_fin(V_H)[:2] + ["s_xor_b32 s%d, s%d, 0x80000" % (S_PS, S_PS)])
        sp(PST, 3, 2)
        add(0, ["buffer_load_dword v13, v%d, %s, s%d offen #tch" % (V_TCH, W, S_TA)])
        add(0, red_fin(V_H)[2:] + ["v_mov_b32 v%d, v%d" % (V_H + i, V_OUT + 12 + i) for i in range(4)])
        ntop = len(items)
        d0, dd = E("OD0", 40), E("ODD", 5)
        da, db = nn(o_dma("a")), nn(o_dma("b"))
        k = 0
        for grp in (da[0:2], da[2:3], da[3:4], da[4:5], da[5:7], da[7:8], da[8:9], da[9:10] + kvs.ring(S_M) + nxt,
                    db[0:2], db[2:3], db[3:4], db[4:5], db[5:7], db[7:8], db[8:9], db[9:10]):
            add(d0 + dd * k, grp)
            k += 1
        add(24, adv + radv[0] + ["s_min_u32 s%d, s%d, s%d" % (S_NEED, S_NX, S_LASTS), "s_add_u32 s%d, s%d, 3" % (S_NEED, S_NEED),
                                 "s_bfe_u32 s%d, s%d, 0x80010" % (S_OUTO, S_HIST), "s_lshl_b32 s%d, s%d, 18" % (S_OUTO, S_OUTO),
                                 "s_cmp_ge_u32 s%d, 1" % S_TICK, "s_cselect_b32 s%d, 0x%x, 0" % (SOUT + 2, 16 * MB)])
        add(63, seg_addr(S_NX, S_TA) + ["s_add_u32 s%d, s%d, s%d" % (S_TA, S_TA, S_TD)])
        add(49.5, radv[1], True)
        add(52, PUBLISH)
        add(57, TARGETS)
        add(62, radv[0])
        add(E("SP0", 72), [POLL])
        add(E("SP1", 96), ["@wait poll", "v_cmp_lt_u32 vcc, v%d, v%d" % (V_PV, V_PT)], True)
        add(E("SP1", 96) + 3, ["s_cbranch_vccnz seg_pslow", "seg_pok:"], True)
        add(E("SP1", 96) + 3.5, RED)
        add(113.5, radv[1], True)
        add(d0 + dd * 15 + 0.5, kvs.ring(S_M) + HALF2)
        add(126, ["s_cmp_lt_u32 s%d, s%d" % (S_TICK, S_CNT)])
        items = items[:ntop] + sorted(items[ntop:], key=lambda it: it[0])
        items = [(int(s + 0.5), ls, at) for s, ls, at in items]
        fill = place(items, [(1, 1, 2, 1)[i & 3] for i in range(116)] + [2] * 12)
        for k in fill:
            if radv[1][1] in fill[k]:
                assert k % 64 in (50, 51), k
        late_a = min(k for k in fill if any(l.endswith("#a") for l in fill[k])) >= 52
        late_b = min(k for k in fill if any(l.endswith("#b") for l in fill[k])) >= 116
        op_body(v, fill, {13: ["@wait %s pst" % ("a" if late_a else "a<"), "s_barrier"], 29: ["@wait %s" % ("b" if late_b else "b<"), "s_barrier"]}, True)
    v0 = VM(Asm())
    pbody(v0)
    a.L("seg_p")
    pbody(VM(a, v0.seq))
    I("s_cbranch_scc1 seg_p")
    st(16)
    I("s_xor_b32 s%d, s%d, 0x80000" % (S_PS, S_PS))
    I("s_waitcnt vmcnt(0)")
    plain(a, red_fin(V_H) + PST)
    I("s_lshl_b32 s%d, s%d, 18" % (S_OUTO, S_LASTS))
    sync(a)
    plain(a, RED)
    I("s_waitcnt vmcnt(0) lgkmcnt(0)")
    plain(a, red_fin(V_OUT + 12))
    a.L("seg_t0")
    I("s_mov_b32 s%d, 63" % S_LASTS)
    I("s_lshr_b32 s%d, s%d, 3" % (T0, S_RK))
    I("s_lshl_b32 s%d, s%d, 8" % (T0, T0))
    I("s_add_u32 s%d, s%d, 0x%x" % (T0, T0, X_LF + 4096))
    I("s_add_u32 s%d, s%d, s%d" % (S_TA, T0, ptr(D_WS)))
    I("s_addc_u32 s%d, s%d, 0" % (S_TD, ptr(D_WS) + 1))
    a.L("seg_t")
    I("s_and_b32 s%d, s%d, 0xff" % (S_SEG, S_TL))
    I("s_cbranch_scc0 seg_end")
    I("s_lshr_b32 s%d, s%d, 8" % (S_TL, S_TL))
    ring_reset(a)
    plain(a, seg_addr(S_SEG))
    I("s_xor_b32 s%d, s%d, 0x80000" % (S_PS, S_PS))
    I("s_lshl_b32 s%d, s%d, 18" % (S_OUTO, S_SEG))
    I("s_add_u32 s%d, s%d, 3" % (S_NEED, S_SEG))
    I("s_min_u32 s%d, s%d, 64" % (S_NEED, S_NEED))
    plain(a, TARGETS)
    poll_loop(a, 2)
    lab = a.uid("L_tf")
    I("s_cmp_lt_u32 s%d, 62" % S_SEG)
    I("s_cbranch_scc1 %s" % lab)
    I("v_writelane_b32 v%d, s%d, 33" % (V_PA, S_TA))
    I("v_writelane_b32 v%d, s%d, 33" % (V_PA + 1, S_TD))
    I("s_mov_b32 s%d, 32" % S_FIN)
    plain(a, TARGETS)
    poll_loop(a, 0)
    a.L(lab)
    if E("TTCH", 0):
        I("s_and_b32 s%d, s%d, 7" % (T0, S_RK))
        I("s_sub_u32 s%d, s%d, s%d" % (T0, T0, S_WV))
        I("s_lshl_b32 s%d, s%d, 16" % (T0, T0))
        I("s_lshl_b32 s%d, s%d, 11" % (T1, S_WV))
        I("s_add_u32 s%d, s%d, s%d" % (T0, T0, T1))
        I("s_add_u32 s%d, s%d, s%d" % (T0, T0, S_OA))
        I("s_mov_b64 exec, 0xffff")
        I("buffer_load_dword v13, v%d, %s, s%d offen" % (V_TCH, W, T0))
        I("s_mov_b64 exec, -1")
    v = VM(a)
    for l in o_dma("a") + kvs.ring(S_M) + HALF2 + o_dma("b") + ["@wait a", "s_barrier"] + [rd(ks, tl) for ks in range(D) for tl in range(2)]:
        v.I(l)
    op_body(v, {}, {13: ["@wait b", "s_barrier"]}, False)
    I("s_nop 7")
    plain(a, PST)
    sync(a)
    plain(a, RED)
    I("s_waitcnt vmcnt(0)")
    plain(a, red_fin(V_OUT + 12))
    I("s_branch seg_t")
    a.L("seg_end")
    st(15)
    I("s_endpgm")
    a.L("seg_pslow")
    poll_loop(a, 2)
    I("s_branch seg_pok")
```

```python
from asmlib import *
from L2 import *
import gemm2 as G
from gemm2 import *
import os

WSTAMP = [lambda a, i: None]


def ws_srd(a, d, off, size):
    a.srd(d, ptr(D_WS), off, size)


def next_proj(a, wsel, s_ct, s_tt, two=False):
    I = a.I
    I("s_lshl_b32 s%d, s%d, 19" % (T0, s_tt))
    next_op(a, NP, ptr(B_X), "s%d" % T0, 4 * MB, *PAT_D['nat'])
    I("s_lshl_b32 s%d, s%d, 9" % (T0, s_ct))
    next_op(a, NS, ptr(B_WK if wsel == 'kv' else wsel), "s%d" % T0, 8 * MB, 4 * 8192, 32 * 8192, 64 * 8192)
    if wsel == 'kv':
        I("s_cmp_ge_u32 s%d, 2" % S_XW)
        I("s_cselect_b32 s%d, s%d, s%d" % (NS, ptr(B_WV), ptr(B_WK)))
        I("s_cselect_b32 s%d, s%d, s%d" % (NS + 1, ptr(B_WV) + 1, ptr(B_WK) + 1))
        I("s_and_b32 s%d, s%d, 0xffff" % (NS + 1, NS + 1))
    pat_n(a, V_NDP, 'nat')
    pat_t(a, V_NDS, 13)
    keys(a, s_ct, s_tt, two)


def keys(a, kp, ks, two=False):
    if "nokey" in os.environ.get("XP", ""):
        a.I("s_mov_b32 s%d, 0" % S_NK)
        return
    a.I("s_and_b32 s%d, s%d, 3" % (S_NK, kp))
    a.I("s_lshl2_add_u32 s%d, s%d, s%d" % (S_NK, ks, S_NK))


def coords44(a, c, t, cadd, tadd):
    I = a.I
    I("s_lshr_b32 s%d, s%d, 4" % (c, S_RK))
    I("s_and_b32 s%d, s%d, 3" % (t, S_RK))
    I("s_lshl2_add_u32 s%d, s%d, s%d" % (c, c, t))
    I("s_bfe_u32 s%d, s%d, 0x20002" % (t, S_RK))
    I("s_add_u32 s%d, s%d, %s" % (c, c, cadd))
    I("s_add_u32 s%d, s%d, %s" % (t, t, tadd))


def next_none(a):
    a.I("s_mov_b32 s%d, 0" % (NP + 2))
    a.I("s_mov_b32 s%d, 0" % (NS + 2))
    a.I("s_mov_b32 s%d, 0x40000000" % S_NTB)


def store_proj(a, kind, s_ct, s_tt):
    I = a.I
    I("s_and_b32 s%d, s%d, 1" % (T0, S_WV))
    I("s_lshl1_add_u32 s%d, s%d, s%d" % (T0, s_tt, T0))
    I("s_lshl_b32 s%d, s%d, 22" % (S_STB, T0))
    I("s_lshr_b32 s%d, s%d, 1" % (T0, S_WV))
    I("s_lshl1_add_u32 s%d, s%d, s%d" % (T0, s_ct, T0))
    I("s_lshl_b32 s%d, s%d, 15" % (T0, T0))
    I("s_add_u32 s%d, s%d, s%d" % (S_STB, S_STB, T0))
    I("s_add_u32 s%d, s%d, s%d" % (S_STB, S_STB, S_POL))
    if kind == 'q':
        I("s_xor_b32 s%d, s%d, 0x%x" % (S_STB, S_STB, 0x2000 ^ KVF))
    else:
        I("s_cmp_ge_u32 s%d, 2" % S_XW)
        I("s_cselect_b32 s%d, 0x4000, 0" % T0)
        I("s_add_u32 s%d, s%d, s%d" % (S_STB, S_STB, T0))
    I("s_mov_b32 s%d, 2048" % S_STD0)
    I("s_mov_b32 s%d, 0x100000" % S_STD1)
    I("s_mov_b32 s%d, 0x202000" % T0)
    I("s_bitcmp1_b32 s%d, 13" % S_STB)
    I("s_cselect_b32 s%d, 0x1fe000, s%d" % (S_STD2, T0))
    I("v_mov_b32 v%d, v%d" % (V_STA, V_LIN))
    I("v_add_u32 v%d, 1024, v%d" % (V_STA + 1, V_LIN))
    I("s_mov_b32 s%d, 0x%x" % (S_SO + 2, 128 * MB))


def call_kv(a):
    lv, le = a.uid("L_cv"), a.uid("L_ce")
    a.I("s_cmp_ge_u32 s%d, 2" % S_XW)
    a.I("s_cbranch_scc1 %s" % lv)
    call(a, "t_kq")
    a.I("s_branch %s" % le)
    a.L(lv)
    call(a, "t_v")
    a.L(le)


def signal_now(a, word):
    I = a.I
    lab = a.uid("L_ns")
    I("s_waitcnt vmcnt(0)")
    I("s_barrier")
    I("s_cmp_lg_u32 s%d, 0" % S_WV)
    I("s_cbranch_scc1 %s" % lab)
    I("s_mov_b32 s%d, %s" % (T0, word))
    signal_lines(a, T0)
    a.L(lab)


def cmul(d, x, y, t):
    return ["v_pk_mul_f32 v[%d:%d], v[%d:%d], v[%d:%d] op_sel:[0,0] op_sel_hi:[0,1]" % (t, t + 1, x, x + 1, y, y + 1),
            "v_pk_fma_f32 v[%d:%d], v[%d:%d], v[%d:%d], v[%d:%d] op_sel:[1,1,0] op_sel_hi:[1,0,1] neg_lo:[1,0,0]" % (d, d + 1, x, x + 1, y, y + 1, t, t + 1)]


def cfma(d, x, y, c, t):
    return ["v_pk_fma_f32 v[%d:%d], v[%d:%d], v[%d:%d], v[%d:%d] op_sel:[0,0,0] op_sel_hi:[0,1,1]" % (t, t + 1, x, x + 1, y, y + 1, c, c + 1),
            "v_pk_fma_f32 v[%d:%d], v[%d:%d], v[%d:%d], v[%d:%d] op_sel:[1,1,0] op_sel_hi:[1,0,1] neg_lo:[1,0,0]" % (d, d + 1, x, x + 1, y, y + 1, t, t + 1)]


def zipl(lists):
    out = []
    for i in range(max(map(len, lists))):
        for l in lists:
            if i < len(l):
                out.append(l[i])
    return out


LAM, C2, L32, L64 = 88, 96, 104, 112
L128 = 120


def g1_params(a, s_cg, loads=False, R=192):
    I = a.I
    va = V_X
    if loads:
        I("v_and_b32 v%d, 15, v0" % va)
        I("v_bfe_u32 v%d, v0, 7, 1" % (va + 1))
        I("v_lshl_add_u32 v%d, v%d, 6, v%d" % (va, va + 1, va))
        I("v_lshlrev_b32 v%d, 1, v%d" % (va, va))
        I("s_lshl_b32 s%d, s%d, 8" % (S_STO, s_cg))
        for i, src in enumerate((A_LRE, A_LIM, A_LOGDT)):
            a.srd(60, ptr(src), 0, 2048)
            for ct in range(4):
                I("buffer_load_ushort v%d, v%d, s[60:63], s%d offen offset:%d" % (R + 8 * ct + i, va, S_STO, ct * 32))
        return
    seqs = []
    for ct in range(4):
        lr, li, ld, x, y, z, u, w = [R + 8 * ct + i for i in range(8)]
        lam, c2 = LAM + 2 * ct, C2 + 2 * ct
        s = ["v_lshlrev_b32 v%d, 16, v%d" % (r, r) for r in (lr, li, ld)]
        s += ["v_mul_f32 v%d, 0x3fb8aa3b, v%d" % (ld, ld), "v_exp_f32 v%d, v%d" % (ld, ld),
              "v_cvt_pk_bf16_f32 v%d, 0, v%d" % (ld, ld),
              "v_mul_f32 v%d, v%d, v%d" % (x, ld, lr), "v_mul_f32 v%d, v%d, v%d" % (y, ld, li),
              "v_mul_f32 v%d, 0x3fb8aa3b, v%d" % (x, x), "v_exp_f32 v%d, v%d" % (x, x),
              "v_mul_f32 v%d, 0x3e22f983, v%d" % (y, y), "v_fract_f32 v%d, v%d" % (y, y),
              "v_cos_f32 v%d, v%d" % (z, y), "v_sin_f32 v%d, v%d" % (u, y),
              "v_mul_f32 v%d, v%d, v%d" % (lam, x, z), "v_mul_f32 v%d, v%d, v%d" % (lam + 1, x, u),
              "v_add_f32 v%d, -1.0, v%d" % (z, lam),
              "v_mul_f32 v%d, v%d, v%d" % (u, z, lr), "v_fma_f32 v%d, v%d, v%d, v%d" % (u, lam + 1, li, u),
              "v_mul_f32 v%d, v%d, v%d" % (w, lam + 1, lr), "v_fma_f32 v%d, -v%d, v%d, v%d" % (w, z, li, w),
              "v_mul_f32 v%d, v%d, v%d" % (x, lr, lr), "v_fma_f32 v%d, v%d, v%d, v%d" % (x, li, li, x),
              "v_rcp_f32 v%d, v%d" % (x, x), "v_add_f32 v%d, v%d, v%d" % (x, x, x),
              "v_mul_f32 v%d, v%d, v%d" % (c2, u, x), "v_mul_f32 v%d, v%d, v%d" % (c2 + 1, w, x)]
        p, t = L32 + 2 * ct, lr
        s += cmul(p, lam, lam, t)
        for _ in range(4):
            s += cmul(p, p, p, t)
        s += cmul(L64 + 2 * ct, p, p, t)
        s += cmul(y, L64 + 2 * ct, L64 + 2 * ct, t)
        seqs.append(s)
    for l in zipl(seqs):
        I(l)
    pick(a, L128, [R + 8 * ct + 4 for ct in range(4)])


def pick(a, d, srcs):
    I = a.I
    for g in range(4):
        m = (0xffffffffffffffff << (16 * g)) & 0xffffffffffffffff
        I("s_mov_b32 exec_lo, 0x%x" % (m & 0xffffffff))
        I("s_mov_b32 exec_hi, 0x%x" % (m >> 32))
        I("v_mov_b32 v%d, v%d" % (d, srcs[g]))
        I("v_mov_b32 v%d, v%d" % (d + 1, srcs[g] + 1))
    I("s_mov_b64 exec, -1")


def acc_g1(ip, js):
    return (ip * 8 + js) * 4


def ht_base(a, d, s_tt):
    I = a.I
    I("s_lshl_b32 s%d, s%d, 13" % (T1, s_tt))
    I("s_andn2_b32 s%d, 0x2000, s%d" % (T1, T1))
    I("s_xor_b32 s%d, s%d, s%d" % (T1, T1, S_POL))
    I("s_lshl_b32 s%d, s%d, 21" % (d, s_tt))
    I("s_add_u32 s%d, s%d, s%d" % (d, d, T1))


def g1_scan(a, s_cg, s_tt):
    I = a.I
    a.C("---- scan epilogue")
    E, U, T, X, Y, P0, P1, H = 40, 48, 56, 64, 72, 80, 24, 32
    A = 122
    rd = lambda ct, k, d: ["v_accvgpr_read_b32 v%d, a%d" % (d + i, acc_g1(k >> 2, 4 * i + ct) + (k & 3)) for i in range(2)]
    I("s_nop 7")
    for l in zipl([rd(ct, 0, E + 2 * ct) for ct in range(4)]):
        I(l)
    for k in range(1, 32):
        u = U if k & 1 else X
        for l in zipl([rd(ct, k, u + 2 * ct) + cfma(E + 2 * ct, LAM + 2 * ct, E + 2 * ct, u + 2 * ct, T + 2 * ct) for ct in range(4)]):
            I(l)
    for i in range(8):
        I("v_mov_b32 v%d, v%d" % (X + i, E + i))
        I("v_mov_b32 v%d, v%d" % (Y + i, E + i))
    I("s_nop 1")
    for i in range(8):
        I("v_permlane16_swap_b32 v%d, v%d" % (X + i, Y + i))
    for l in zipl([cfma(P0 + 2 * ct, L32 + 2 * ct, X + 2 * ct, Y + 2 * ct, T + 2 * ct) for ct in range(4)]):
        I(l)
    for i in range(8):
        I("v_mov_b32 v%d, v%d" % (P1 + i, P0 + i))
    I("s_nop 1")
    for i in range(8):
        I("v_permlane32_swap_b32 v%d, v%d" % (P0 + i, P1 + i))
    for l in zipl([cfma(E + 2 * ct, L64 + 2 * ct, P0 + 2 * ct, P1 + 2 * ct, T + 2 * ct) for ct in range(4)]):
        I(l)
    pick(a, A, [E + 2 * ct for ct in range(4)])
    va = 126
    I("s_and_b32 s%d, s%d, 1" % (S_STO, S_WV))
    I("s_lshl1_add_u32 s%d, s%d, s%d" % (S_STO, s_tt, S_STO))
    I("s_lshl_b32 s%d, s%d, 13" % (S_STO, S_STO))
    I("s_lshr_b32 s%d, s%d, 1" % (S_IDX, S_WV))
    I("s_lshl1_add_u32 s%d, s%d, s%d" % (S_IDX, s_cg, S_IDX))
    I("s_lshl_b32 s%d, s%d, 9" % (S_IDX, S_IDX))
    I("s_add_u32 s%d, s%d, s%d" % (S_STO, S_STO, S_IDX))
    I("v_lshrrev_b32 v%d, 1, v%d" % (va, V_LIN))
    I("v_add_u32 v%d, s%d, v%d" % (va, S_STO, va))
    ws_srd(a, 60, X_AGG, 131072)
    I("buffer_store_dwordx2 v[%d:%d], v%d, s[60:63], 0 offen" % (A, A + 1, va))
    LB = V_ST
    for j in range(15):
        I("v_subrev_u32 v%d, %d, v%d" % (LB + 32 + j, 8192 * (j + 1), va))
    fa, fv, ft = LB + 48, LB + 49, LB + 50
    I("s_lshr_b32 s%d, s%d, 2" % (S_STO, s_cg))
    I("s_add_u32 s%d, s%d, 1" % (S_STO, S_STO))
    I("v_mov_b32 v%d, s%d" % (fv, S_STO))
    I("s_lshl_b32 s%d, s%d, 2" % (S_STB, S_RK))
    I("s_add_u32 s%d, s%d, 0x%x" % (S_STB, S_STB, X_SF + 128))
    I("v_mov_b32 v%d, s%d" % (fa, S_STB))
    I("s_waitcnt vmcnt(0)")
    I("s_barrier")
    I("global_store_dword v%d, v%d, s[%d:%d]" % (fa, fv, ptr(D_WS), ptr(D_WS) + 1))
    I("v_and_b32 v%d, 7, v0" % ft)
    I("v_min_u32 v%d, s%d, v%d" % (ft, s_tt, ft))
    I("v_lshlrev_b32 v%d, 4, v%d" % (ft, ft))
    I("v_sub_u32 v%d, v%d, v%d" % (fa, fa, ft))
    I("s_mov_b32 s%d, 0" % S_STB)
    rt = a.uid("L_lb")
    a.L(rt)
    I("global_load_dword v%d, v%d, s[%d:%d] sc1" % (ft, fa, ptr(D_WS), ptr(D_WS) + 1))
    I("s_add_u32 s%d, s%d, 1" % (S_STB, S_STB))
    I("s_cmp_gt_u32 s%d, 0x%x" % (S_STB, SPIN_LIMIT))
    I("s_cbranch_scc1 %s" % G.ABORT[0])
    I("s_waitcnt vmcnt(0)")
    I("v_cmp_lt_u32 vcc, v%d, v%d" % (ft, fv))
    I("s_cbranch_vccnz %s" % rt)
    for j in range(15):
        I("buffer_load_dwordx2 v[%d:%d], v%d, s[60:63], 0 offen sc1" % (LB + 2 * j, LB + 2 * j + 1, LB + 32 + j))
    I("s_waitcnt vmcnt(0)")
    for j in range(13, -1, -1):
        for l in cfma(LB + 2 * j, L128, LB + 2 * j + 2, LB + 2 * j, T):
            I(l)
    for i in range(2):
        I("v_mov_b32 v%d, v%d" % (H + i, LB + i))
        I("v_mov_b32 v%d, v%d" % (H + 2 + i, LB + i))
    I("s_nop 1")
    for i in range(2):
        I("v_permlane16_swap_b32 v%d, v%d" % (H + i, H + 2 + i))
    for i in range(4):
        I("v_mov_b32 v%d, v%d" % (H + 4 + i, H + i))
    I("s_nop 1")
    for i in range(4):
        I("v_permlane32_swap_b32 v%d, v%d" % (H + i, H + 4 + i))
    I("s_mov_b32 exec_lo, 0")
    for l in zipl([cfma(H + 2 * ct, L64 + 2 * ct, H + 2 * ct, P0 + 2 * ct, T + 2 * ct) for ct in range(4)]):
        I(l)
    I("s_mov_b32 exec_lo, 0xffff0000")
    I("s_mov_b32 exec_hi, 0xffff0000")
    for l in zipl([cfma(H + 2 * ct, L32 + 2 * ct, H + 2 * ct, X + 2 * ct, T + 2 * ct) for ct in range(4)]):
        I(l)
    I("s_mov_b64 exec, -1")
    O = (Y, P0)
    for k in range(32):
        u = U if k & 1 else X
        o = O[k & 1]
        e = k >> 3
        sq = []
        for ct in range(4):
            c2, h = C2 + 2 * ct, H + 2 * ct
            s = rd(ct, k, u + 2 * ct) + cfma(h, LAM + 2 * ct, h, u + 2 * ct, T + 2 * ct)
            s += ["v_pk_mul_f32 v[%d:%d], v[%d:%d], v[%d:%d] op_sel:[0,0] op_sel_hi:[0,1]" % (E + 2 * ct, E + 2 * ct + 1, c2, c2 + 1, h, h + 1),
                  "v_pk_fma_f32 v[%d:%d], v[%d:%d], v[%d:%d], v[%d:%d] op_sel:[1,1,0] op_sel_hi:[1,0,1] neg_lo:[1,0,0] neg_hi:[1,0,1]" % (
                      o + 2 * ct, o + 2 * ct + 1, c2, c2 + 1, h, h + 1, E + 2 * ct, E + 2 * ct + 1)]
            if k & 1:
                for ri in range(2):
                    n = (ri * 2 + (e >> 1)) * 8 + ct * 2 + (e & 1)
                    s.append("v_cvt_pk_bf16_f32 v%d, v%d, v%d" % (V_ST + 4 * n + ((k & 7) >> 1), O[0] + 2 * ct + ri, O[1] + 2 * ct + ri))
            sq.append(s)
        for l in zipl(sq):
            I(l)
    ht_base(a, S_STB, s_tt)
    I("s_lshr_b32 s%d, s%d, 2" % (T0, s_cg))
    I("s_lshl_b32 s%d, s%d, 20" % (T0, T0))
    I("s_add_u32 s%d, s%d, s%d" % (S_STB, S_STB, T0))
    I("s_lshl_b32 s%d, s%d, 7" % (S_IDX, S_IDX))
    I("s_and_b32 s%d, s%d, 0x7ffff" % (S_IDX, S_IDX))
    I("s_add_u32 s%d, s%d, s%d" % (S_STB, S_STB, S_IDX))
    I("s_and_b32 s%d, s%d, 1" % (T0, S_WV))
    I("s_lshl_b32 s%d, s%d, 12" % (T0, T0))
    I("s_add_u32 s%d, s%d, s%d" % (S_STB, S_STB, T0))
    I("s_add_u32 s%d, s%d, 0x%x" % (S_STB, S_STB, WS_HT))
    I("s_mov_b32 s%d, 16384" % S_STD0)
    I("s_mov_b32 s%d, 2048" % S_STD1)
    I("s_mov_b32 s%d, 0x80000" % S_STD2)
    I("v_bfe_u32 v%d, v0, 4, 1" % V_STA)
    I("v_lshlrev_b32 v%d, 6, v%d" % (V_STA, V_STA))
    I("v_xor_b32 v%d, v%d, v%d" % (V_STA, V_STA, V_LIN))
    I("v_add_u32 v%d, 1024, v%d" % (V_STA + 1, V_STA))


def g2_epilogue(a, s_dt, s_tt):
    I = a.I
    a.C("---- G2 epilogue")
    vx, vo, vd, vw, vr_ = 24, 25, 26, 27, 28
    DD = 40
    RB = 528
    BUF = 16 * RB
    I("s_waitcnt vmcnt(0)")
    I("s_barrier")
    I("v_and_b32 v%d, 31, v0" % vd)
    I("v_bfe_u32 v%d, v0, 6, 1" % vo)
    I("v_lshl_add_u32 v%d, v%d, 5, v%d" % (vw, vo, vd))
    I("v_bfe_u32 v%d, v0, 5, 1" % vr_)
    I("v_bfe_u32 v%d, v0, 7, 1" % vx)
    I("v_lshl_add_u32 v%d, v%d, 7, v%d" % (vx, vx, vr_))
    I("v_lshlrev_b32 v%d, 13, v%d" % (vo, vx))
    I("v_lshl_add_u32 v%d, v%d, 4, v%d" % (vo, vw, vo))
    I("v_lshlrev_b32 v%d, 11, v%d" % (vx, vx))
    I("v_lshl_add_u32 v%d, v%d, 3, v%d" % (vx, vw, vx))
    I("v_lshlrev_b32 v%d, 3, v%d" % (vw, vw))
    a.srd(60, ptr(A_DSKIP), 0, 2048)
    I("s_lshl_b32 s%d, s%d, 9" % (S_STO, s_dt))
    I("buffer_load_dwordx2 v[44:45], v%d, s[60:63], s%d offen" % (vw, S_STO))
    a.srd(S_SP, ptr(A_X), 0, 4 * MB)
    a.srd(S_SS, ptr(D_OUT), 0, 16 * MB)
    I("s_lshl_b32 s%d, s%d, 19" % (S_STB, s_tt))
    I("s_add_u32 s%d, s%d, s%d" % (S_STB, S_STB, S_STO))
    trow = lambda js, i: 64 * (js & 1) + 8 * (js >> 1) + 32 * (i >> 2) + 2 * (i & 3)

    def xload(js):
        for i in range(8):
            r = V_ST + (js * 8 + i) * 2
            I("s_add_u32 s%d, s%d, 0x%x" % (S_STO, S_STB, trow(js, i) * 2048))
            I("buffer_load_dwordx2 v[%d:%d], v%d, %s, s%d offen%s" % (r, r + 1, vx, srd_s(S_SP), S_STO, " nt" * int(os.environ.get("G2XNT", "0"))))
    for js in range(4):
        xload(js)
    I("s_mul_i32 s%d, s%d, %d" % (T0, S_WV, 4 * BUF))
    I("v_mul_u32_u24 v%d, %d, v%d" % (vr_, RB, vr_))
    I("v_lshl_add_u32 v%d, v%d, 4, v%d" % (vr_, vd, vr_))
    I("v_add_u32 v%d, s%d, v%d" % (vr_, T0, vr_))
    I("v_and_b32 v%d, 15, v0" % vw)
    I("v_mul_u32_u24 v%d, %d, v%d" % (vw, RB, vw))
    I("v_bfe_u32 v%d, v0, 4, 2" % vd)
    I("v_lshl_add_u32 v%d, v%d, 4, v%d" % (vw, vd, vw))
    I("v_add_u32 v%d, s%d, v%d" % (vw, T0, vw))
    I("s_lshl_b32 s%d, s%d, 21" % (S_STD1, s_tt))
    I("s_lshl_b32 s%d, s%d, 10" % (S_STD2, s_dt))
    I("s_add_u32 s%d, s%d, s%d" % (S_STD1, S_STD1, S_STD2))

    def wr(js):
        for ip in range(8):
            c = acc_g1(ip, js)
            I("ds_write_b128 v%d, a[%d:%d] offset:%d" % (vw, c, c + 3, (js & 3) * BUF + ip * 64))

    def rdb(js):
        for i in range(8):
            r = 48 + (js & 1) * 32 + 4 * i
            I("ds_read_b128 v[%d:%d], v%d offset:%d" % (r, r + 3, vr_, (js & 3) * BUF + 2 * i * RB))
    wr(0)
    rdb(0)
    wr(1)
    I("s_waitcnt vmcnt(32)")
    for i in range(2):
        I("v_lshlrev_b32 v%d, 16, v%d" % (DD + 2 * i, 44 + i))
        I("v_and_b32 v%d, 0xffff0000, v%d" % (DD + 2 * i + 1, 44 + i))
    for js in range(8):
        I("s_waitcnt vmcnt(%d) lgkmcnt(%d)" % (8 * min(3, 7 - js) + 8 * min(js, 3), 8 if js < 7 else 0))
        if js < 7:
            rdb(js + 1)
        if js < 6:
            wr(js + 2)
        for i in range(8):
            r = V_ST + (js * 8 + i) * 2
            t = 112 + (i & 1) * 4
            y = 48 + (js & 1) * 32 + 4 * i
            I("v_lshlrev_b32 v%d, 16, v%d" % (t, r))
            I("v_and_b32 v%d, 0xffff0000, v%d" % (t + 1, r))
            I("v_lshlrev_b32 v%d, 16, v%d" % (t + 2, r + 1))
            I("v_and_b32 v%d, 0xffff0000, v%d" % (t + 3, r + 1))
            I("v_pk_mul_f32 v[%d:%d], v[%d:%d], v[%d:%d]" % (t, t + 1, t, t + 1, DD, DD + 1))
            I("v_pk_mul_f32 v[%d:%d], v[%d:%d], v[%d:%d]" % (t + 2, t + 3, t + 2, t + 3, DD + 2, DD + 3))
            I("s_add_u32 s%d, s%d, 0x%x" % (S_STD2, S_STD1, trow(js, i) * 8192))
            for k in range(4):
                I("v_cvt_pk_bf16_f32 v%d, 0, v%d" % (t + k, t + k))
            I("v_pk_add_f32 v[%d:%d], v[%d:%d], v[%d:%d]" % (y, y + 1, y, y + 1, t, t + 1))
            I("v_pk_add_f32 v[%d:%d], v[%d:%d], v[%d:%d]" % (y + 2, y + 3, y + 2, y + 3, t + 2, t + 3))
            I("buffer_store_dwordx4 v[%d:%d], v%d, %s, s%d offen%s" % (y, y + 3, vo, srd_s(S_SS), S_STD2, ("", " nt", " sc1")[int(os.environ.get("G2NT", "0"))]))
        if js + 4 < 8:
            xload(js + 4)


CT, TT = 82, 85


def subroutines(a):
    Tile(a, "t_g2", 'b', False, acc_g1, 8).gen(cont=True)
    Tile(a, "t_g1", 'n', False, acc_g1).gen()
    a.L("t_scan")
    g1_scan(a, CT, TT)
    a.I("s_setpc_b64 s[%d:%d]" % (S_RET, S_RET + 1))


def program(a, done):
    import kvs
    I = a.I
    st = lambda i: WSTAMP[0](a, i)
    lbig = a.uid("L_big")
    I("s_cmp_eq_u32 s%d, 0" % S_XW)
    I("s_cbranch_scc1 %s" % lbig)
    kvs.program(a, st)
    I("s_branch %s" % done)
    a.L(lbig)
    if "nobig" in os.environ.get("XP", ""):
        I("s_branch %s" % done)
    for _ in range(int(os.environ.get("XDLY", "0"))):
        I("s_sleep 36")
    G.setup(a)
    I("s_and_b32 s%d, s%d, 3" % (CT, S_RK))
    I("s_lshr_b32 s%d, s%d, 2" % (TT, S_RK))
    keys(a, CT, TT)
    I("s_lshl_b32 s%d, s%d, 19" % (T0, TT))
    next_op(a, NP, ptr(A_X), "s%d" % T0, 4 * MB, *PAT_D['time'])
    I("s_lshl_b32 s%d, s%d, 18" % (T0, CT))
    next_op(a, NS, ptr(A_BRE), "s%d" % T0, 2 * MB, *PAT_D['chan'], 128)
    I("s_cmp_ge_u32 s%d, 2" % S_WV)
    I("s_cselect_b32 s%d, s%d, s%d" % (NS, ptr(A_BIM), ptr(A_BRE)))
    I("s_cselect_b32 s%d, s%d, s%d" % (NS + 1, ptr(A_BIM) + 1, ptr(A_BRE) + 1))
    I("s_and_b32 s%d, s%d, 0xffff" % (NS + 1, NS + 1))
    pat_n(a, V_NDP, 'time')
    pat_n(a, V_NDS, 'chan')
    g1_params(a, CT, True)
    prologue(a)
    I("s_add_u32 s%d, s%d, 0x100000" % (NS + 3, NS + 3))
    ws_srd(a, S_SO, 0, 0)

    def g1_touch(cgadd):
        I("s_lshr_b32 s%d, s%d, 2" % (T0, TT))
        I("s_lshl_b32 s%d, s%d, 21" % (T0, T0))
        I("s_add_u32 s%d, s%d, s%d" % (S_NT, ptr(A_X), T0))
        I("s_addc_u32 s%d, s%d, 0" % (S_NT + 1, ptr(A_X) + 1))
        I("s_and_b32 s%d, s%d, 15" % (T0, S_RK))
        I("s_lshl1_add_u32 s%d, s%d, s%d" % (T0, T0, S_WV))
        I("s_lshl_b32 s%d, s%d, 16" % (S_NTB, T0))
        I("s_bitcmp1_b32 s%d, 0" % TT)
        I("s_cselect_b64 s[%d:%d], s[%d:%d], s[%d:%d]" % (T2, T3, ptr(A_BIM), ptr(A_BIM) + 1, ptr(A_BRE), ptr(A_BRE) + 1))
        I("s_lshr_b32 s%d, s%d, 1" % (T0, TT))
        I("s_lshl2_add_u32 s%d, s%d, s%d" % (T0, CT, T0))
        I("s_add_u32 s%d, s%d, %d" % (T0, T0, 4 * cgadd))
        I("s_lshl_b32 s%d, s%d, 16" % (T0, T0))
        I("s_cmp_eq_u32 s%d, 2" % S_WV)
        I("s_cselect_b64 s[%d:%d], s[%d:%d], s[%d:%d]" % (S_NT, S_NT + 1, T2, T3, S_NT, S_NT + 1))
        I("s_cselect_b32 s%d, s%d, s%d" % (S_NTB, T0, S_NTB))
        I("s_cmp_eq_u32 s%d, 3" % S_WV)
        I("s_cselect_b32 s%d, 0x40000000, s%d" % (S_NTB, S_NTB))
        I("s_and_b32 s%d, s%d, 0xffff" % (S_NT + 1, S_NT + 1))
    g1_touch(0)
    I("s_mov_b64 s[%d:%d], s[%d:%d]" % (S_TS, S_TS + 1, S_NT, S_NT + 1))
    I("s_add_u32 s%d, s%d, 512" % (S_TB, S_NTB))
    g1_touch(4)
    I("s_waitcnt vmcnt(24)")
    g1_params(a, CT)

    def sig0(word):
        I("s_cmp_eq_u32 s%d, 0" % S_WV)
        I("s_cselect_b32 s%d, %d, 0" % (S_SIG0, word * 4))
    for r in (S_SIG0, S_SIG, S_WAIT, S_STB, S_STD0, S_STD1, S_STD2):
        I("s_mov_b32 s%d, 0" % r)
    I("s_waitcnt vmcnt(8)")
    I("s_barrier")
    st(4)
    call(a, "t_g1")
    st(5)
    I("v_mov_b32 v%d, %d" % (V_X, D_CAL * 4))
    I("global_load_dword v123, v%d, s[%d:%d] sc1" % (V_X, ptr(D_DBG), ptr(D_DBG) + 1))
    kvs.ROLE[1](a, (S_XW, 4), S_WV, T0, G.ABORT[0])
    kvs.ROLE[0](a, S_RK, lbig, S_WV, 0, T0, V_X)
    I("s_waitcnt vmcnt(0)")
    kvs.get_polarity(a, 123, V_X)
    call(a, "t_scan")
    I("s_add_u32 s%d, s%d, 4" % (CT, CT))
    g1_params(a, CT, True, 40)

    def next_g2(q):
        I("s_and_b32 s%d, s%d, 7" % (T2, S_RK))
        I("s_lshr_b32 s%d, s%d, 3" % (T3, S_RK))
        I("s_lshl_b32 s%d, s%d, 19" % (T0, T3))
        I("s_add_u32 s%d, s%d, %d" % (T0, T0, (q >> 1) * 1024))
        next_op(a, NP, ptr(A_CIM if q & 1 else A_CRE), "s%d" % T0, 2 * MB, *PAT_D['nat'])
        ht_base(a, T0, T2)
        I("s_add_u32 s%d, s%d, 0x%x" % (T0, T0, q * 0x80000))
        next_op(a, NS, ptr(D_WS), "s%d" % T0, 16 * MB, 2048, 32768, 65536, cst=WS_HT)
        keys(a, T2, T3)
        I("s_mov_b64 s[%d:%d], s[%d:%d]" % (S_NT, S_NT + 1, NP, NP + 1))
        I("s_lshl_b32 s%d, s%d, 16" % (T2, T2))
        I("s_add_u32 s%d, s%d, s%d" % (S_NTB, NP + 3, T2))
        I("s_cmp_eq_u32 s%d, 0" % S_WV)
        I("s_cselect_b32 s%d, s%d, 0x40000000" % (S_NTB, S_NTB))
        if q == 0:
            pat_n(a, V_NDP, 'nat')
            pat_b(a, V_NDS)
    next_g2(0)
    I("s_mov_b32 s%d, 0x%x" % (S_SO + 2, WS_END))
    I("s_mov_b32 s%d, %d" % (S_SIG, D_EH * 4))
    I("s_mov_b32 s%d, %d" % (S_WAIT, D_EH * 4))
    I("s_waitcnt vmcnt(0)")
    g1_params(a, CT, False, 40)
    st(6)
    call(a, "t_g1")
    st(7)
    call(a, "t_scan")
    st(8)
    next_g2(1)
    I("s_mov_b32 s%d, 0" % S_WAIT)
    call(a, "t_g2")
    next_g2(2)
    I("s_mov_b32 s%d, 0" % (S_SO + 2))
    sig0(D_EH + 1)
    I("s_mov_b32 s%d, %d" % (S_WAIT, (D_EH + 1) * 4))
    call(a, "t_g2_c")
    st(9)
    next_g2(3)
    I("s_mov_b32 s%d, 0" % S_WAIT)
    call(a, "t_g2_c")
    next_none(a)
    call(a, "t_g2_c")
    st(11)
    I("s_and_b32 s%d, s%d, 7" % (TT, S_RK))
    I("s_lshr_b32 s%d, s%d, 3" % (CT, S_RK))
    g2_epilogue(a, CT, TT)
    st(12)
```

```python
import sys, os
sys.path.insert(0, os.path.dirname(os.path.abspath(__file__)))
from asmlib import *
from L2 import *
import gemm2, worker2, kvs

NAME = "concat_heads__ssm_conv_s5__memory_aug_recurrent_mem_tr__prompt"
HEADER = open(os.path.join(os.path.dirname(os.path.abspath(__file__)), "header.txt")).read()
ABL = os.environ.get("ABL", "")
WT = int(os.environ.get("WT", "0"))
STAMP = int(os.environ.get("STAMP", "0"))
L_ROLE = 31744


def wstamp(a, idx, vr=126):
    if not WT:
        return
    I = lambda l: a.I(l.replace("v127", "v%d" % (vr + 1)).replace("v126", "v%d" % vr))
    I("s_memrealtime s[62:63]")
    I("s_lshl_b32 vcc_lo, s%d, 5" % gemm2.S_XW)
    I("s_add_u32 vcc_lo, vcc_lo, s%d" % gemm2.S_RK)
    I("s_lshl_b32 vcc_lo, vcc_lo, 8")
    I("s_add_u32 vcc_lo, vcc_lo, 0x%x" % (WS_DBG + 131072 + idx * 4))
    I("v_mov_b32 v127, vcc_lo")
    I("s_waitcnt lgkmcnt(0)")
    I("v_mov_b32 v126, s62")
    I("s_memtime s[62:63]")
    I("s_mov_b64 exec, 1")
    I("global_store_dword v127, v126, s[%d:%d]" % (ptr(D_WS), ptr(D_WS) + 1))
    I("s_waitcnt lgkmcnt(0)")
    I("v_mov_b32 v126, s62")
    I("global_store_dword v127, v126, s[%d:%d] offset:128" % (ptr(D_WS), ptr(D_WS) + 1))
    I("s_mov_b64 exec, -1")


worker2.WSTAMP[0] = wstamp


def entry(a, name):
    I = a.I
    I("s_load_dwordx4 s[%d:%d], s[0:1], 128" % (PTR0 + 32, PTR0 + 35))
    I("s_load_dwordx2 s[%d:%d], s[0:1], 144" % (PTR0 + 36, PTR0 + 37))
    I("s_load_dwordx16 s[%d:%d], s[0:1], 0" % (PTR0, PTR0 + 15))
    I("s_load_dwordx16 s[%d:%d], s[0:1], 64" % (PTR0 + 16, PTR0 + 31))
    I("s_getreg_b32 s16, hwreg(HW_REG_XCC_ID)")
    I("s_and_b32 s16, s16, 7")
    I("v_lshrrev_b32 v1, 6, v0")
    I("s_nop 0")
    I("v_readfirstlane_b32 s18, v1")
    I("s_waitcnt lgkmcnt(0)")
    lt = a.uid("L_role")
    I("s_lshr_b32 s17, s2, 3")
    I("s_mov_b32 s%d, 0" % R_OK)
    I("s_cmp_lg_u32 s18, 0")
    I("s_cbranch_scc1 %s" % lt)
    I("s_lshl_b32 s12, s16, 8")
    I("s_add_u32 s12, s12, 0x%x" % X_LF)
    I("v_lshl_add_u32 v1, v0, 2, s12")
    I("v_mov_b32 v2, 0")
    I("global_store_dword v1, v2, s[%d:%d]" % (ptr(D_WS), ptr(D_WS) + 1))
    I("s_lshl_b32 s12, s16, 3")
    I("s_add_u32 s12, s12, %d" % (D_ROLE * 4))
    I("s_lshl_b32 s%d, 1, s17" % R_AT)
    I("s_mov_b32 s%d, 0x100" % (R_AT + 1))
    I("s_waitcnt vmcnt(0)")
    I("s_atomic_add_x2 s[%d:%d], s[%d:%d], s12 glc" % (R_AT, R_AT + 1, ptr(D_DBG), ptr(D_DBG) + 1))
    a.L(lt)


R_AT, R_OK = 94, 2


def role_poll(a, s_xcc, s_wave, tmp, abort):
    I = a.I
    lw, lp = a.uid("L_rw"), a.uid("L_rp")
    I("s_or_b32 s%d, s%d, s%d" % (tmp, R_OK, s_wave))
    I("s_cbranch_scc1 %s" % lw)
    I("s_lshl_b32 s%d, s%d, 3" % (tmp + 2, s_xcc[0]))
    I("s_add_u32 s%d, s%d, %d" % (tmp + 2, tmp + 2, D_ROLE * 4 + s_xcc[1] * 8))
    I("s_mov_b32 s%d, 0" % (tmp + 3))
    a.L(lp)
    I("s_load_dwordx2 s[%d:%d], s[%d:%d], s%d glc" % (tmp, tmp + 1, ptr(D_DBG), ptr(D_DBG) + 1, tmp + 2))
    I("s_add_u32 s%d, s%d, 1" % (tmp + 3, tmp + 3))
    I("s_cmp_gt_u32 s%d, 0x100000" % (tmp + 3))
    I("s_cbranch_scc1 %s" % abort)
    I("s_waitcnt lgkmcnt(0)")
    I("s_cmp_lt_u32 s%d, 0x2000" % (tmp + 1))
    I("s_cbranch_scc1 %s" % lp)
    I("s_lshr_b32 s%d, s%d, 8" % (tmp + 1, R_AT + 1))
    I("s_cmp_eq_u32 s%d, -1" % tmp)
    I("s_cselect_b32 s%d, -1, s%d" % (R_AT, tmp + 1))
    a.L(lw)


def role_check(a, s_rank, restart, s_wave, lds, tmp, vt):
    I = a.I
    lok, lw = a.uid("L_rok"), a.uid("L_rw")
    I("s_cmp_lg_u32 s%d, 0" % R_OK)
    I("s_cbranch_scc1 %s" % lok)
    I("v_mov_b32 v%d, %d" % (vt, lds))
    I("s_cmp_lg_u32 s%d, 0" % s_wave)
    I("s_cbranch_scc1 %s" % lw)
    I("v_mov_b32 v%d, s%d" % (vt + 1, R_AT))
    I("ds_write_b32 v%d, v%d" % (vt, vt + 1))
    I("s_waitcnt lgkmcnt(0)")
    a.L(lw)
    I("s_barrier")
    I("ds_read_b32 v%d, v%d" % (vt + 1, vt))
    I("s_waitcnt lgkmcnt(0)")
    I("v_readfirstlane_b32 s%d, v%d" % (tmp, vt + 1))
    I("s_mov_b32 s%d, 1" % R_OK)
    I("s_cmp_eq_u32 s%d, -1" % tmp)
    I("s_cbranch_scc1 %s" % lok)
    I("s_mov_b32 s%d, s%d" % (s_rank, tmp))
    I("s_waitcnt vmcnt(0)")
    I("s_barrier")
    I("s_cmp_ge_u32 s%d, 32" % s_rank)
    I("s_cbranch_scc1 chain_kernel_end")
    I("s_branch %s" % restart)
    a.L(lok)


kvs.ROLE.append(role_poll)
kvs.ROLE[0] = role_check


def kernel(a, name):
    I = a.I
    a.raw(".globl %s\n.p2align 8\n.type %s,@function" % (name, name))
    a.L(name)
    I("s_cmp_ge_u32 s2, 256")
    I("s_cbranch_scc1 %s_end" % name)
    if WT:
        I("s_memrealtime s[22:23]")
        I("s_mov_b32 s26, s2")
    entry(a, name)
    if WT:
        I("s_mov_b32 s24, s22")
        I("s_lshl_b32 s26, s26, 4")
        I("s_add_u32 s26, s26, 0x%x" % (WS_DBG + 327680))
        I("v_mov_b32 v8, s26")
        I("v_mov_b32 v4, s22")
        I("v_mov_b32 v5, s24")
        I("v_mov_b32 v6, s16")
        I("v_mov_b32 v7, s17")
        I("global_store_dwordx4 v8, v[4:7], s[%d:%d]" % (ptr(D_WS), ptr(D_WS) + 1))
    I("s_cmp_ge_u32 s16, 4")
    I("s_cbranch_scc1 %s_worker" % name)
    a.L("chain_start")
    if 'nochain' not in ABL:
        import chain2 as chain
        import diag
        chain.chain_main(a, name, diag.setup(a, chain, STAMP))
    a.L("%s_end" % name)
    I("s_endpgm")
    a.L("%s_worker" % name)
    gemm2.ABORT[0] = name + "_wabort"
    I("s_sub_u32 s%d, s16, 4" % gemm2.S_XW)
    I("s_mov_b32 s%d, s17" % gemm2.S_RK)
    I("s_mov_b32 s%d, s18" % gemm2.S_WV)
    if 'nowork' not in ABL:
        worker2.program(a, name + "_seg")
    a.L(name + "_seg")
    if 'noseg' not in ABL and 'nowork' not in ABL:
        import seg
        seg.program(a, wstamp)
    I("s_endpgm")
    a.L(name + "_wabort")
    I("s_mov_b64 exec, 1")
    I("v_mov_b32 v1, 0xdeadbeef")
    I("v_mov_b32 v2, 120")
    I("global_store_dword v2, v1, s[%d:%d]" % (ptr(D_DBG), ptr(D_DBG) + 1))
    I("s_endpgm")
    if 'nowork' not in ABL:
        worker2.subroutines(a)


def build():
    a = Asm()
    out = HEADER
    out += "; @launch kernel=chain_kernel grid=(256,1,1) block=(256,1,1) lds=163840\n"
    out += '.amdgcn_target "amdgcn-amd-amdhsa--gfx950"\n.text\n'
    kernel(a, "chain_kernel")
    out += a.text()
    out += kernel_desc("chain_kernel")
    return out


if __name__ == "__main__":
    dst = sys.argv[1] if len(sys.argv) > 1 else "/code/%s.s" % NAME
    open(dst, "w").write(build())
    print("wrote", dst)
```

```python
A_X, A_LRE, A_LIM, A_BRE, A_BIM, A_CRE, A_CIM, A_LOGDT, A_DSKIP, B_X, B_MEM0, B_WQ, B_WK, B_WV, B_WO, B_SEG, D_OUT, D_DBG, D_WS = range(19)
MB = 1 << 20
PTR0 = 64
def ptr(i):
    return PTR0 + 2 * i
WS_SIZE = 268435456
WS_KVQ = 0
X_PXF = 128 * MB
WS_HT = 192 * MB
X_EX = 208 * MB
X_AGG = 209 * MB
X_LF = 210 * MB
X_SF = X_LF + 1024
X_CAL = 212 * MB
X_SP = 216 * MB
WS_END = 224 * MB
WS_DBG = 232 * MB
D_CAL, D_EH, D_AGG = 1, 3, 5
D_PROG = 52
D_EV = 16
D_ROLE = 32
NKV = 96
import os
NREP = int(os.environ.get("PXR", "2"))
```

```python
from asmlib import *
from L2 import *
import kvs
import os

E = lambda k, d: int(os.environ.get(k, str(d)))
PRE_Q, PACE = E("PRE_Q", 44), E("PACE", 14)
GAP_S = E("GAP_S", 14)
PRE_S = E("PRE_S", 4)
VPRE, VMID = E("VPRE", 2), E("VMID", 2)
PF = os.environ.get("PF", "B")
OSTA, TCHA = E("OSTA", 1), E("TCHA", 0)
KQW = os.environ.get("KQW", "AD")
SB = E("SB", 0)
if SB:
    KQW, OSTA, TCHA = "B", 0, 0
KB = E("KB", 0)
TS = E("TS", 2)
OSS = E("OSS", 1)
if OSS:
    OSTA = 0
PXH = 1
RQ, RM = E("RQ", 1), E("RM", 1)
WNT = " nt" if E("WNT", 1) else ""
KVP = os.environ.get("KVP", "near")
PRE_O = E("PRE_O", 36)
PRE_P, GAP_P = E("PRE_P", 0), E("GAP_P", 0)

S_WS, S_TMPSRD = 8, 12
S_X, S_J, S_W, S_STEP = 16, 17, 18, 19
S_T0, S_T1, S_T2, S_T3 = 20, 21, 22, 23
S_M8 = 24
S_EV = 26
S_REL = 30
S_KV = 31
S_KM = 32
S_SPIN = 33
S_PXB = 52
S_EXB = 53
S_KVL = 54
S_CUR, S_NXT, S_POI, S_PX0, S_PX1, S_PP0, S_PP1 = 40, 41, 42, 43, 44, 45, 46
S_ID = 47
S_KVB, S_KMB, S_POL, S_LF = 48, 49, 50, 62
S_TCH = 63
S_W01, S_WT = 38, 39
S_JQ, S_JM = 28, 29
S_GATE = 55
S_DBG = 60
S_C = 56
S_SCL = 58

V_LIN = 1
V_GLD = 2
V_OLD = 3
V_QXST, V_QXLD, V_OXST, V_MEMST, V_PXST = 4, 5, 6, 7, 8
V_PXLD = 9
V_RQW = 12
V_RQR, V_RW, V_ROR, V_SEL, V_IDX, V_CHK = 15, 16, 17, 18, 19, 20
V_KVR = 21
V_H0, V_H1, V_H2, V_H3 = 22, 23, 24, 25
V_L8 = 26
V_M0LD = 27
V_ONES = 28
V_M = 32
V_MR = 48
V_AQ = 64
V_AV = 72
V_AO = 76
V_R = 80
V_KF = 104
V_VT = 136
V_VM = 144
V_QS = (148, 164, 32, 48)
V_SC = (80, 92, 220)
V_S0, V_S1, V_S2 = 180, 184, 188
V_P = 192
V_O = 200
V_T = 208
V_L = 220
V_Y = 246
V_KXW = 234
V_ROW = 238
V_D0, V_D1, V_D2 = 235, 236, 237
V_SMP = 248
V_ONEB = 216
V_XQ, V_XKM, V_XT, V_XB = 148, 164, 86, 226
V_XKA, V_XQA, V_KQ, V_B4 = 241, 242, 243, 245

L_RQK, L_RV, L_RO, L_VMF, L_ROLE, L_KX, L_KV = 0, 12288, 20480, 28672, 31744, 29696, 32768
L_STAGE = 32768
L_Q, L_QXC = L_KV + 10240, L_KV + 18432

SPIN_LIMIT = 1 << 20
LAST = E("LAST", 63)
ABL = os.environ.get('ABL', '')
ABORT = [None]
DUMP = [None]
COLD = []
LOOPSTART = [None, None]
W = "s[%d:%d]" % (S_WS, S_WS + 3)


def a_qk(t, b):
    return (t * 4 + b) * 8


def a_v(t, b):
    return 128 + (t * 4 + b) * 8


def a_wo(t, b):
    return 192 + (t * 4 + b) * 8


def fill(a, work, n):
    k = 0
    while work and k < n:
        a.I(work.pop(0))
        k += 1
    n -= k
    if E("SLP", 0) and n >= 16:
        a.I("s_sleep %d" % (n // 16))
        n %= 16
    while n > 0:
        q = min(n, 16)
        a.I("s_nop %d" % (q - 1))
        n -= q


def spin_lines(cnt=None, bound=True):
    pre = ["s_add_u32 s%d, s%d, 1" % (94 + cnt, 94 + cnt)] if (cnt is not None and os.environ.get("STAMP") == "2") else []
    if not bound:
        return pre
    return pre + ["s_add_u32 s%d, s%d, 1" % (S_SPIN, S_SPIN), "s_cmp_gt_u32 s%d, 0x%x" % (S_SPIN, SPIN_LIMIT), "s_cbranch_scc1 %s" % ABORT[0]]


def gather_fifo(a, tag, loads, accs, wts, extra=[]):
    uid = a.uid("G" + tag)
    done = uid + "_done"
    nm = lambda st, p: "".join(map(str, st)) + ("" if p is None else "p%d" % p)
    lab = lambda st, p: uid + "_s" + nm(st, p)
    cnt = {"q": 0, "o": 2}[tag]
    U = lambda b: [smf(c, wts(k, 0, b), V_M + 4 * b) for k, c in enumerate(accs)]
    R = lambda b: [smf(c, wts(k, 1, b), V_MR + 4 * b) for k, c in enumerate(accs)]
    ror = lambda b: ["v_mov_b32_dpp v%d, v%d row_ror:8 row_mask:0xf bank_mask:0xf" % (V_MR + 4 * b + i, V_M + 4 * b + i) for i in range(4)]
    ind = lambda ls: ["    " + l for l in ls]
    defer = len(accs) == 2
    emitted, todo = set(), []

    def body(st, p, hot):
        c = st[0]
        f = uid + "_f" + nm(st, p)
        o = ror(c)
        seq = ["s_waitcnt vmcnt(%d)" % (len(st) - 1), "v_cmp_eq_u32 vcc, -1, v%d" % (V_M + 4 * c)]
        seq += o if p is None else [R(p)[0], o[0], o[1], R(p)[1], o[2], o[3]]
        seq += ["s_cbranch_vccnz %s" % f] + U(c)
        if not defer or len(st) == 1:
            seq += R(c)
        nxt = st[1:] + (c,)
        stub = [f + ":"] + ind([loads[c]] + spin_lines(cnt, not hot) + ["s_branch %s" % lab(nxt, None)])
        emitted.add((st, p))
        todo.append((nxt, None))
        return [lab(st, p) + ":"] + ind(seq), stub, (st[1:], c if defer else None)
    st, p = (0, 1, 2, 3), None
    while st:
        out, stub, (st, p) = body(st, p, len(st) == 4)
        for l in out:
            a.raw(l)
        COLD.extend(stub)
    a.L(done)
    COLD.extend([uid + "_redo:"] + ind(loads + spin_lines(cnt) + ["s_nop 5"] + ["v_mov_b32 v%d, 0" % (x + i) for x in accs + extra for i in range(4)] +
                                       ["s_branch %s" % lab((0, 1, 2, 3), None)]))
    while todo:
        st, p = todo.pop(0)
        stubs = []
        while st and (st, p) not in emitted:
            out, stub, (st, p) = body(st, p, False)
            COLD.extend(out)
            stubs.extend(stub)
            if not st or (st, p) in emitted:
                COLD.append("    s_branch %s" % (lab(st, p) if st else done))
        COLD.extend(stubs)
    t0, t1 = V_CHK, V_T
    m = lambda b, i: V_M + 4 * b + i
    return ["v_max3_u32 v%d, v%d, v%d, v%d" % (t0, m(0, 1), m(0, 2), m(0, 3)),
            "v_max3_u32 v%d, v%d, v%d, v%d" % (t1, m(1, 1), m(1, 2), m(1, 3)),
            "v_max3_u32 v%d, v%d, v%d, v%d" % (t1 + 1, m(2, 1), m(2, 2), m(2, 3)),
            "v_max3_u32 v%d, v%d, v%d, v%d" % (t1 + 2, m(3, 1), m(3, 2), m(3, 3)),
            "v_max_u32 v%d, v%d, v%d" % (t0, t0, t1),
            "v_max3_u32 v%d, v%d, v%d, v%d" % (t0, t0, t1 + 1, t1 + 2),
            "v_cmp_eq_u32 vcc, -1, v%d" % t0], "s_cbranch_vccnz %s_redo" % uid


def prologue_addrs(a):
    I = a.I
    T = V_T
    a.C("---- chain address registers")
    I("s_mov_b32 s%d, 0x00ff00ff" % S_M8)
    I("s_mov_b32 s%d, 0x00ff00ff" % (S_M8 + 1))
    I("s_mov_b32 s%d, 0x55555555" % S_EV)
    I("s_mov_b32 s%d, 0x55555555" % (S_EV + 1))
    I("s_mov_b32 s%d, 0x3fb8aa3b" % S_C)
    I("s_mov_b32 s%d, 0x3fb8aa3b" % (S_C + 1))
    I("s_mov_b32 s%d, 0x3db504f3" % S_SCL)
    I("s_mov_b32 s%d, 0x3db504f3" % (S_SCL + 1))
    I("s_lshl_b32 s%d, s%d, 16" % (S_EXB, S_X))
    I("s_add_u32 s%d, s%d, 0x%x" % (S_EXB, S_EXB, X_EX))
    I("s_lshl_b32 s%d, s%d, 5" % (S_ID, S_X))
    I("s_add_u32 s%d, s%d, s%d" % (S_ID, S_ID, S_J))
    I("s_mov_b64 s[%d:%d], s[%d:%d]" % (S_DBG, S_DBG + 1, ptr(D_DBG), ptr(D_DBG) + 1))
    for i in range(4):
        I("v_mov_b32 v%d, -1" % (V_ONES + i))
    n, g, l, t0, t1, t2 = T, T + 1, T + 2, T + 4, T + 5, T + 6
    I("v_and_b32 v%d, 63, v0" % l)
    I("v_and_b32 v%d, 15, v0" % n)
    I("v_bfe_u32 v%d, v0, 4, 2" % g)
    I("v_lshlrev_b32 v%d, 4, v%d" % (V_LIN, l))
    I("v_lshlrev_b32 v%d, 3, v%d" % (V_L8, l))
    I("s_lshl_b32 s%d, s%d, 12" % (S_T1, S_W))
    I("v_add_u32 v%d, s%d, v%d" % (V_GLD, S_T1, V_LIN))
    I("s_xor_b32 s%d, s%d, 3" % (S_T2, S_W))
    I("s_lshl_b32 s%d, s%d, 4" % (S_T2, S_T2))
    if 'noperm' in ABL:
        I("s_mov_b32 s%d, 0" % S_T2)
    I("v_xor_b32 v%d, s%d, v%d" % (V_OLD, S_T2, V_GLD))
    I("v_add_u32 v%d, 16384, v%d" % (V_OLD, V_OLD))
    I("s_and_b32 s%d, s%d, 16" % (S_T2, S_T2))
    I("s_lshl_b32 s%d, s%d, 1" % (S_T2, S_T2))
    I("v_xor_b32 v%d, s%d, v%d" % (V_GLD, S_T2, V_GLD))
    I("v_mov_b32 v%d, 0xeeeeeeee" % V_IDX)
    I("v_mov_b32 v%d, 0x44444444" % t0)
    I("v_cndmask_b32 v%d, v%d, v%d, s[%d:%d]" % (V_IDX, V_IDX, t0, S_M8, S_M8 + 1))
    I("v_mov_b32 v%d, 0x03020706" % V_SEL)
    I("v_mov_b32 v%d, 0x05040100" % t0)
    I("v_cndmask_b32 v%d, v%d, v%d, s[%d:%d]" % (V_SEL, V_SEL, t0, S_EV, S_EV + 1))
    I("s_lshr_b32 s%d, s%d, 2" % (S_T1, S_J))
    I("s_lshl_b32 s%d, s%d, 12" % (S_T1, S_T1))
    I("s_add_u32 s%d, s%d, 32768" % (S_T1, S_T1))
    I("v_add_u32 v%d, s%d, v%d" % (V_QXLD, S_T1, V_LIN))
    I("s_and_b32 s%d, s%d, 1" % (S_T2, S_JQ))
    I("s_lshl_b32 s%d, s%d, 11" % (S_T2, S_T2))
    I("s_add_u32 s%d, s%d, s%d" % (S_T1, S_T1, S_T2))
    I("s_bfe_u32 s%d, s%d, 0x10001" % (S_T2, S_JQ))
    I("s_lshl_b32 s%d, s%d, 7" % (S_T2, S_T2))
    I("s_add_u32 s%d, s%d, s%d" % (S_T3, S_T1, S_T2))
    I("v_and_b32 v%d, 1, v%d" % (t0, g))
    I("v_lshlrev_b32 v%d, %d, v%d" % (V_KXW, 5 if RQ else 6, t0))
    I("v_and_b32 v%d, 1, v%d" % (t0, n))
    I("v_lshl_add_u32 v%d, v%d, 4, v%d" % (V_KXW, t0, V_KXW))
    I("v_bfe_u32 v%d, v%d, 1, 2" % (t0, n))
    I("v_lshl_add_u32 v%d, v%d, 2, v%d" % (V_KXW, t0, V_KXW))
    I("s_and_b32 s%d, s%d, 1" % (S_T2, S_W))
    I("s_lshl_b32 s%d, s%d, %d" % (S_T2, S_T2, 6 if RQ else 5))
    I("v_add_u32 v%d, s%d, v%d" % (V_KXW, S_T2, V_KXW))
    I("v_lshrrev_b32 v%d, 3, v%d" % (t0, n))
    I("v_and_b32 v%d, 2, v%d" % (t1, g))
    I("v_add_u32 v%d, v%d, v%d" % (t0, t0, t1))
    I("s_and_b32 s%d, s%d, 2" % (S_T2, S_W))
    I("s_lshl_b32 s%d, s%d, 1" % (S_T2, S_T2))
    I("v_add_u32 v%d, s%d, v%d" % (t0, S_T2, t0))
    I("v_lshl_add_u32 v%d, v%d, 8, v%d" % (V_QXST, t0, V_KXW))
    I("v_lshlrev_b32 v%d, 3, v%d" % (V_KXW, n))
    I("v_and_b32 v%d, 1, v%d" % (t0, g))
    I("v_lshl_add_u32 v%d, v%d, %d, v%d" % (V_KXW, t0, 8 if RQ else 7, V_KXW))
    I("v_lshrrev_b32 v%d, 1, v%d" % (t0, g))
    I("v_lshl_add_u32 v%d, v%d, %d, v%d" % (V_KXW, t0, 7 if RQ else 8, V_KXW))
    I("v_add_u32 v%d, s%d, v%d" % (V_QXST, S_T3, V_QXST))
    I("v_lshrrev_b32 v%d, 3, v%d" % (t0, l))
    I("v_and_b32 v%d, 7, v%d" % (t1, l))
    I("v_lshlrev_b32 v%d, 8, v%d" % (V_H0, t0))
    I("v_lshl_add_u32 v%d, v%d, 4, v%d" % (V_H0, t1, V_H0))
    I("v_add_u32 v%d, s%d, v%d" % (V_H0, S_T3, V_H0))
    I("s_lshr_b32 s%d, s%d, 2" % (S_T0, S_ID))
    I("s_lshl_b32 s%d, s%d, 16" % (S_KVB, S_T0))
    I("s_and_b32 s%d, s%d, 3" % (S_T1, S_J))
    I("s_lshl_b32 s%d, s%d, 11" % (S_T2, S_T1))
    I("s_add_u32 s%d, s%d, 0x4000" % (S_T2, S_T2))
    I("v_add_u32 v%d, s%d, v%d" % (V_D2, S_T2, V_LIN))
    I("v_lshlrev_b32 v%d, 7, v%d" % (V_D1, n))
    I("v_and_b32 v%d, 1, v%d" % (t0, g))
    I("v_lshl_add_u32 v%d, v%d, 15, v%d" % (V_D1, t0, V_D1))
    I("s_lshl_b32 s%d, s%d, 11" % (S_T2, S_T1))
    I("v_add_u32 v%d, s%d, v%d" % (V_D1, S_T2, V_D1))
    if KB:
        I("v_or_b32 v%d, 0x8000, v%d" % (V_D1, V_D1))
        I("v_add_u32 v%d, 0x1000, v%d" % (V_B4, V_LIN))
    if SB:
        I("v_lshrrev_b32 v%d, 1, v%d" % (t0, g))
        I("v_lshlrev_b32 v%d, 14, v%d" % (t0, t0))
        I("v_and_b32 v%d, 0xffff7fff, v%d" % (t1, V_D1))
        I("v_add_u32 v%d, v%d, v%d" % (t1, t1, t0))
        I("v_cmp_lt_u32 vcc, 1, v%d" % g)
        I("s_nop 1")
        I("v_cndmask_b32 v%d, v%d, v%d, vcc" % (V_D1, V_D1, t1))
        for i in range(3):
            I("v_add_u32 v%d, 0x%x, v%d" % (V_B4 + i, (0x1000, 0x8000, 0x9000)[i], V_LIN))
    if TCHA == 1 or TS == 1:
        I("v_or_b32 v%d, 0x8000, v%d" % (V_H3, V_D1))
        I("v_xor_b32 v%d, 0x8000, v%d" % (V_D1, V_H3))
    else:
        I("v_mov_b32 v%d, v%d" % (V_H3, V_D1))
    I("s_cmp_lt_u32 s%d, 2" % S_W)
    I("s_cselect_b32 s%d, 0xf0000000, 0" % S_W01)
    I("s_cmp_lg_u32 s%d, 1" % S_W)
    I("s_cselect_b32 s%d, 0xf0000000, 0" % S_WT)
    I("s_lshr_b32 s%d, s%d, 1" % (S_T2, S_W))
    I("s_mul_i32 s%d, s%d, %d" % (S_KVL, S_T2, L_Q - L_KV))
    I("s_lshl_b32 s%d, s%d, 15" % (S_T2, S_T2))
    I("s_and_b32 s%d, s%d, 1" % (S_T3, S_W))
    I("s_lshl_b32 s%d, s%d, 12" % (S_T3, S_T3))
    I("s_add_u32 s%d, s%d, s%d" % (S_KVL, S_KVL, S_T3))
    I("s_add_u32 s%d, s%d, %d" % (S_KVL, S_KVL, L_KV))
    I("s_add_u32 s%d, s%d, s%d" % (S_T2, S_T2, S_T3))
    I("v_add_u32 v%d, s%d, v%d" % (V_D0, S_T2, V_LIN))
    I("s_lshl_b32 s%d, s%d, 11" % (S_KVL - 3, S_W))
    I("v_add_u32 v%d, s%d, v%d" % (V_KQ, S_KVL - 3, V_LIN))
    I("v_add_u32 v%d, 0x8000, v%d" % (V_KQ + 1, V_KQ))
    I("v_lshrrev_b32 v%d, 3, v%d" % (t0, l))
    I("v_lshl_add_u32 v%d, v%d, 7, v%d" % (V_H2, t0, V_QXLD))
    I("v_add_u32 v%d, 128, v%d" % (V_H2, V_H2))
    I("s_and_b32 s%d, s%d, 1" % (S_T2, S_W))
    I("s_lshl_b32 s%d, s%d, 12" % (S_T2, S_T2))
    I("v_add_u32 v%d, s%d, v%d" % (V_XQA, S_T2, V_LIN))
    I("s_lshl_b32 s%d, s%d, 10" % (S_T1, S_T1))
    I("s_add_u32 s%d, s%d, 0xc000" % (S_T1, S_T1))
    I("v_add_u32 v%d, s%d, v%d" % (V_H1, S_T1, V_XQA))
    I("v_lshlrev_b32 v%d, 7, v%d" % (V_XKA, g))
    for bit, sh in ((2, 6), (3, 5), (0, 4)):
        I("v_bfe_u32 v%d, v0, %d, 1" % (t0, bit))
        I("v_lshl_add_u32 v%d, v%d, %d, v%d" % (V_XKA, t0, sh, V_XKA))
    I("v_and_b32 v%d, 7, v%d" % (t0, n))
    I("v_lshlrev_b32 v%d, 4, v%d" % (V_OXST, t0))
    I("v_lshl_add_u32 v%d, v%d, 7, v%d" % (V_OXST, g, V_OXST))
    I("s_lshl_b32 s%d, s%d, 9" % (S_T1, S_J))
    I("s_add_u32 s%d, s%d, 16384" % (S_T2, S_T1))
    I("v_add_u32 v%d, s%d, v%d" % (V_OXST, S_T2, V_OXST))
    I("v_lshrrev_b32 v%d, 3, v%d" % (t0, n))
    I("v_and_b32 v%d, 2, v%d" % (t1, g))
    I("v_add_u32 v%d, v%d, v%d" % (t0, t0, t1))
    I("v_lshlrev_b32 v%d, 7, v%d" % (V_MEMST, t0))
    I("v_and_b32 v%d, 1, v%d" % (t0, g))
    I("v_lshl_add_u32 v%d, v%d, %d, v%d" % (V_MEMST, t0, 4 if RM else 6, V_MEMST))
    I("v_bfe_u32 v%d, v%d, 1, 2" % (t0, n))
    I("v_lshl_add_u32 v%d, v%d, 2, v%d" % (V_MEMST, t0, V_MEMST))
    I("s_lshl_b32 s%d, s%d, 9" % (S_T1, S_JM))
    I("s_lshl_b32 s%d, s%d, %d" % (S_T2, S_W, 5 if RM else 4))
    I("s_add_u32 s%d, s%d, s%d" % (S_T1, S_T1, S_T2))
    I("v_add_u32 v%d, s%d, v%d" % (V_MEMST, S_T1, V_MEMST))
    I("v_bfe_u32 v%d, v%d, 1, 3" % (t0, l))
    I("v_and_b32 v%d, 1, v%d" % (t1, l))
    I("v_lshlrev_b32 v%d, 11, v%d" % (V_M0LD, t0))
    I("v_lshl_add_u32 v%d, v%d, 3, v%d" % (V_M0LD, t1, V_M0LD))
    I("v_lshl_add_u32 v%d, v%d, 4, v%d" % (V_M0LD, g, V_M0LD))
    I("s_lshl_b32 s%d, s%d, 6" % (S_T1, S_JM))
    I("v_add_u32 v%d, s%d, v%d" % (V_M0LD, S_T1, V_M0LD))
    I("v_lshlrev_b32 v%d, 2, v%d" % (t0, l))
    for e in range(3):
        I("s_xor_b32 s%d, s%d, %d" % (S_T1, S_W, e ^ 3))
        I("s_mul_i32 s%d, s%d, 768" % (S_T1, S_T1))
        I("s_add_u32 s%d, s%d, %d" % (S_T1, S_T1, e * 256))
        I("v_add_u32 v%d, s%d, v%d" % (V_ROW + e, S_T1, t0))
        I("v_lshlrev_b32 v%d, 1, v%d" % (V_RQW + e, V_ROW + e))
    I("s_mul_i32 s%d, s%d, 768" % (S_T1, S_W))
    I("v_add_u32 v%d, s%d, v%d" % (V_ROR, S_T1, t0))
    I("v_lshlrev_b32 v%d, 1, v%d" % (V_RQR, V_ROR))
    I("s_lshl_b32 s%d, s%d, 10" % (S_T1, S_W))
    I("v_add_u32 v%d, s%d, v%d" % (V_RW, S_T1, V_LIN))


def dbg_wait(a, word, target, mask=None):
    I = a.I
    I("v_mov_b32 v%d, %s" % (V_SMP, word * 4 if isinstance(word, int) else word))
    rt, ok = a.uid("L_kvw"), a.uid("L_kvok")
    I("s_branch %s_c" % rt)
    a.L(rt)
    I("global_load_dword v%d, v%d, s[%d:%d] sc1" % (V_SMP + 1, V_SMP, S_DBG, S_DBG + 1))
    for l in spin_lines():
        I(l)
    I("s_waitcnt vmcnt(0)")
    a.L(rt + "_c")
    I("v_readfirstlane_b32 s%d, v%d" % (S_T0, V_SMP + 1))
    if mask:
        I("s_and_b32 s%d, s%d, 0x%x" % (S_T1, S_T0, mask))
    I("s_cmp_ge_u32 s%d, %d" % (S_T1 if mask else S_T0, target))
    I("s_cbranch_scc1 %s" % ok)
    I("s_sleep 16")
    I("s_branch %s" % rt)
    a.L(ok)


def relay_wait(a, g):
    I = a.I
    lp, lo, ok = a.uid("L_rl"), a.uid("L_rlo"), a.uid("L_rlok")
    I("v_mov_b32 v%d, 0" % V_SMP)
    I("s_lshl2_add_u32 s%d, s%d, s%d" % (S_T0, S_J, S_W))
    I("s_cmp_lg_u32 s%d, 5" % S_T0)
    I("s_cbranch_scc1 %s" % lo)
    a.L(lp)
    I("s_load_dword s%d, s[%d:%d], %d glc" % (S_T0, S_DBG, S_DBG + 1, (D_EV + g) * 4))
    for l in spin_lines():
        I(l)
    I("s_waitcnt lgkmcnt(0)")
    I("s_cmp_lt_u32 s%d, %d" % (S_T0, NKV))
    I("s_cbranch_scc1 %s" % lp)
    I("v_mov_b32 v%d, %d" % (V_SMP + 1, g + 1))
    I("buffer_store_dword v%d, v%d, %s, s%d offen offset:128" % (V_SMP + 1, V_SMP, W, S_LF))
    I("s_branch %s" % ok)
    a.L(lo)
    I("buffer_load_dword v%d, v%d, %s, s%d offen offset:128 sc1" % (V_SMP + 1, V_SMP, W, S_LF))
    for l in spin_lines():
        I(l)
    I("s_waitcnt vmcnt(0)")
    I("v_readfirstlane_b32 s%d, v%d" % (S_T0, V_SMP + 1))
    I("s_cmp_ge_u32 s%d, %d" % (S_T0, g + 1))
    I("s_cbranch_scc1 %s" % ok)
    I("s_sleep 1")
    I("s_branch %s" % lo)
    a.L(ok)


def px_setup(a):
    I = a.I
    dbg_wait(a, D_CAL, 15, 0xff)
    I("s_cmp_ge_u32 s%d, 0x800" % S_T0)
    I("s_cselect_b32 s%d, 0x2000, 0" % S_POL)
    I("s_add_u32 s%d, s%d, 0x%x" % (S_PXB, S_POL, X_PXF))
    I("s_add_u32 s%d, s%d, s%d" % (S_KVB, S_KVB, S_POL))
    t = V_T
    I("v_and_b32 v%d, 63, v0" % t)
    I("v_lshlrev_b32 v%d, 1, v%d" % (t, t))
    I("s_lshr_b32 s%d, s%d, 4" % (S_T2, S_J))
    I("s_lshl_b32 s%d, s%d, 14" % (S_T2, S_T2))
    I("s_and_b32 s%d, s%d, 15" % (S_T3, S_J))
    I("s_lshl2_add_u32 s%d, s%d, s%d" % (S_T3, S_T3, S_W))
    I("s_lshl_b32 s%d, s%d, 7" % (S_T3, S_T3))
    I("s_add_u32 s%d, s%d, s%d" % (S_T2, S_T2, S_T3))
    for xo in range(4):
        I("s_xor_b32 s%d, s%d, %d" % (S_T1, S_X, xo))
        I("s_lshl_b32 s%d, s%d, 15" % (S_T1, S_T1))
        I("s_add_u32 s%d, s%d, s%d" % (S_T1, S_T1, S_T2))
        I("v_add_u32 v%d, s%d, v%d" % (V_PXST if xo == 0 else V_PXLD + xo - 1, S_T1, t))


def load_weights(a, filler, mid, late):
    I = a.I
    T = 160
    S_T2, S_T3 = 80, 81
    a.C("---- load weights")
    t0, t1, va, vq, vg, vg2, vr_, vw = T, T + 1, T + 2, T + 3, T + 5, T + 6, T + 7, T + 11
    I("s_lshl_b32 s%d, s%d, 10" % (S_T0, S_X))
    I("s_lshr_b32 s%d, s%d, 2" % (S_T1, S_J))
    I("s_lshl_b32 s%d, s%d, 7" % (S_T1, S_T1))
    I("s_add_u32 s%d, s%d, s%d" % (S_T0, S_T0, S_T1))
    I("v_bfe_u32 v%d, v0, 5, 1" % t0)
    I("v_lshlrev_b32 v%d, 1, v%d" % (va, t0))
    I("v_bfe_u32 v%d, v0, 3, 1" % t0)
    I("v_add_u32 v%d, v%d, v%d" % (va, va, t0))
    I("v_bfe_u32 v%d, v0, 4, 1" % t0)
    I("v_lshl_add_u32 v%d, v%d, 3, v%d" % (va, t0, va))
    I("v_lshrrev_b32 v%d, 6, v0" % t0)
    I("v_lshl_add_u32 v%d, v%d, 8, v%d" % (va, t0, va))
    I("v_and_b32 v%d, 7, v0" % t1)
    I("v_lshlrev_b32 v%d, 13, v%d" % (vq, va))
    I("v_lshl_add_u32 v%d, v%d, 4, v%d" % (vq, t1, vq))
    I("s_and_b32 s%d, s%d, 1" % (S_T1, S_JQ))
    I("s_lshl_b32 s%d, s%d, 6" % (S_T1, S_T1))
    I("s_add_u32 s%d, s%d, s%d" % (S_T1, S_T1, S_T0))
    I("s_lshl_b32 s%d, s%d, 1" % (S_T1, S_T1))
    I("v_add_u32 v%d, s%d, v%d" % (vq, S_T1, vq))
    I("v_add_u32 v%d, 0x8000, v%d" % (vq + 1, vq))
    I("v_bfe_u32 v%d, v0, 4, 2" % t0)
    I("v_lshlrev_b32 v%d, 1, v%d" % (va, t0))
    I("v_bfe_u32 v%d, v0, 2, 1" % t0)
    I("v_add_u32 v%d, v%d, v%d" % (va, va, t0))
    I("v_bfe_u32 v%d, v0, 3, 1" % t0)
    I("v_lshl_add_u32 v%d, v%d, 3, v%d" % (va, t0, va))
    I("v_lshrrev_b32 v%d, 6, v0" % t0)
    I("v_lshl_add_u32 v%d, v%d, 8, v%d" % (va, t0, va))
    I("v_and_b32 v%d, 3, v0" % t1)
    I("v_lshlrev_b32 v%d, 13, v%d" % (vg, va))
    I("v_lshl_add_u32 v%d, v%d, 4, v%d" % (vg, t1, vg))
    I("s_and_b32 s%d, s%d, 3" % (S_T1, S_J))
    I("s_lshl_b32 s%d, s%d, 5" % (S_T1, S_T1))
    I("s_add_u32 s%d, s%d, s%d" % (S_T1, S_T1, S_T0))
    I("s_lshl_b32 s%d, s%d, 1" % (S_T1, S_T1))
    I("v_add_u32 v%d, s%d, v%d" % (vg, S_T1, vg))
    I("v_bfe_u32 v%d, v0, 2, 1" % vg2)
    for bit, sh in ((4, 1), (3, 2), (5, 4)):
        I("v_bfe_u32 v%d, v0, %d, 1" % (t0, bit))
        I("v_lshl_add_u32 v%d, v%d, %d, v%d" % (vg2, t0, sh, vg2))
    I("v_lshrrev_b32 v%d, 6, v0" % t0)
    I("v_lshl_add_u32 v%d, v%d, 8, v%d" % (vg2, t0, vg2))
    I("s_lshl_b32 s%d, s%d, 10" % (S_T1, S_X))
    I("v_add_u32 v%d, s%d, v%d" % (vg2, S_T1, vg2))
    I("v_lshlrev_b32 v%d, 11, v%d" % (vg2, vg2))
    I("v_lshl_add_u32 v%d, v%d, 4, v%d" % (vg2, t1, vg2))
    I("s_lshl_b32 s%d, s%d, 6" % (S_T1, S_JM))
    I("v_add_u32 v%d, s%d, v%d" % (vg2, S_T1, vg2))
    I("s_lshl_b32 s%d, s%d, 15" % (S_T2, S_W))
    I("s_add_u32 s%d, s%d, %d" % (S_T2, S_T2, L_STAGE))
    RV_, RO_ = 32, 96

    def safe(i):
        for l in filler[i:]:
            op = l.split()[0]
            if op.startswith(("s_cselect", "s_addc", "s_cmov", "s_cbranch")):
                return False
            if op.startswith(("s_cmp", "s_bitcmp", "s_add", "s_and", "s_lsh", "s_xor", "s_or", "s_bfe", "s_sub")):
                return True
        return True
    cut = [next(i for i in range(p * len(filler) // 8, len(filler) + 1) if safe(i)) for p in range(9)]
    I("s_bitcmp1_b32 s%d, 1" % S_JQ)
    I("s_cselect_b32 s%d, s%d, s%d" % (S_TMPSRD, ptr(B_WK), ptr(B_WQ)))
    I("s_cselect_b32 s%d, s%d, s%d" % (S_TMPSRD + 1, ptr(B_WK) + 1, ptr(B_WQ) + 1))
    I("s_and_b32 s%d, s%d, 0xffff" % (S_TMPSRD + 1, S_TMPSRD + 1))
    I("s_mov_b32 s%d, 0x%x" % (S_TMPSRD + 2, 8 * MB))
    I("s_mov_b32 s%d, 0x00020000" % (S_TMPSRD + 3))
    a.srd(4, ptr(B_WV), 0, 8 * MB)
    a.srd(40, ptr(B_WO), 0, 8 * MB)
    for p in range(8):
        for l in filler[cut[p]:cut[p + 1]] if p else []:
            a.raw(l)
        if p == 2:
            lc = a.uid("L_cal")
            I("s_or_b32 s76, s%d, s%d" % (S_X, S_W))
            I("s_or_b32 s76, s76, s2")
            I("s_cbranch_scc1 %s" % lc)
            I("s_waitcnt lgkmcnt(0)")
            I("s_lshr_b32 s74, s95, 8")
            I("s_cmp_ge_u32 s74, 15")
            I("s_cbranch_scc1 %s" % lc)
            kvs.calibrate(a, 74, False, 76, 64)
            a.L(lc)
        if p == 6:
            kvs.ROLE[1](a, (S_X, 0), S_W, 76, ABORT[0])
        if p >= 6:
            I("s_waitcnt vmcnt(44)")
        for i in range(4 * p, 4 * p + 4):
            I("s_add_u32 m0, s%d, %d" % (S_T2, i * 1024))
            I("s_mov_b32 s%d, %d" % (S_T3, (i >> 1) * 16 * 8192))
            I("buffer_load_dwordx4 v%d, s[%d:%d], s%d offen%s lds" % (vq + (i & 1), S_TMPSRD, S_TMPSRD + 3, S_T3, WNT))
        for i in range(2 * p, 2 * p + 2):
            I("s_mov_b32 s%d, %d" % (S_T3, i * 16 * 8192))
            I("buffer_load_dwordx4 v[%d:%d], v%d, s[4:7], s%d offen%s" % (RV_ + 4 * i, RV_ + 4 * i + 3, vg, S_T3, WNT))
            I("s_mov_b32 s%d, %d" % (S_T3, (32 * (i >> 1) + 8 * (i & 1)) * 2048))
            I("buffer_load_dwordx4 v[%d:%d], v%d, s[40:43], s%d offen%s" % (RO_ + 4 * i, RO_ + 4 * i + 3, vg2, S_T3, WNT))
        if p == 0:
            for l in filler[:cut[1]]:
                a.raw(l)
    mid()
    I("v_bfe_u32 v%d, v0, 4, 2" % t0)
    I("v_lshlrev_b32 v%d, 3, v%d" % (t0, t0))
    I("v_bfe_u32 v%d, v0, 2, 2" % va)
    I("v_add_u32 v%d, v%d, v%d" % (t0, t0, va))
    I("v_and_b32 v%d, 3, v0" % t1)
    I("v_bfe_u32 v%d, v0, 3, 1" % vq)
    I("v_lshlrev_b32 v%d, 7, v%d" % (va, t0))
    I("v_and_b32 v%d, 1, v0" % (vq + 1))
    I("v_lshl_add_u32 v%d, v%d, 5, v%d" % (va, vq + 1, va))
    I("v_bfe_u32 v%d, v0, 1, 1" % (vq + 1))
    I("v_lshl_add_u32 v%d, v%d, 3, v%d" % (va, vq + 1, va))
    I("v_lshl_add_u32 v%d, v%d, 4, v%d" % (va, vq, va))
    for X in range(2):
        I("s_lshr_b32 s%d, s%d, 1" % (S_T1, S_W))
        I("s_xor_b32 s%d, s%d, %d" % (S_T1, S_T1, X ^ 1))
        I("s_lshl_b32 s%d, s%d, 6" % (S_T1, S_T1))
        I("s_add_u32 s%d, s%d, s%d" % (S_T1, S_T1, S_T2))
        I("v_add_u32 v%d, s%d, v%d" % (vr_ + 2 * X, S_T1, va))
        I("v_xor_b32 v%d, 256, v%d" % (vr_ + 2 * X + 1, vr_ + 2 * X))
    for b in range(4):
        I("s_waitcnt vmcnt(%d)" % min(44, 9 + 16 * (3 - b)))
        for t in range(4):
            d = a_qk(t, b)
            for u, o in enumerate((0, 4, 32, 36)):
                I("ds_read_b64_tr_b16 a[%d:%d], v%d offset:%d" % (d + 2 * u, d + 2 * u + 1, vr_ + t, (b * 64 + o) * 128))
            if t & 1:
                I("s_waitcnt lgkmcnt(0)")
    I("v_add_u32 v%d, s%d, v%d" % (vw, S_T2, V_LIN))
    I("v_lshlrev_b32 v%d, 6, v%d" % (va, t0))
    I("v_add_u32 v%d, s%d, v%d" % (va, S_T2, va))
    I("v_lshl_add_u32 v%d, v%d, 3, v%d" % (vr_ + 2, t1, va))
    I("v_lshl_add_u32 v%d, v%d, 5, v%d" % (vr_ + 2, vq, vr_ + 2))
    I("v_xor_b32 v%d, 128, v%d" % (vr_ + 3, vr_ + 2))
    for vb, areg, vra, half, cnt in ((RV_, a_v, vr_ + 2, 0, 0), (RO_, a_wo, vr_ + 2, 1, 0)):
        if half == 0:
            I("s_waitcnt vmcnt(0)")
            late()
        for i in range(16):
            I("ds_write_b128 v%d, v[%d:%d] offset:%d" % (vw, vb + 4 * i, vb + 4 * i + 3, half * 16384 + i * 1024))
        I("s_waitcnt lgkmcnt(0)")
        for b in range(4):
            for t in range(2):
                d = areg(t, b)
                for u, o in enumerate((0, 4, 32, 36)):
                    I("ds_read_b64_tr_b16 a[%d:%d], v%d offset:%d" % (d + 2 * u, d + 2 * u + 1, vra + t, half * 16384 + (b * 64 + o) * 64))
            I("s_waitcnt lgkmcnt(0)")


def blk_addr(d, delta):
    out = ["s_add_u32 s%d, s%d, %d" % (S_T1, S_STEP, delta)]
    if delta >= 0:
        out += ["s_min_u32 s%d, s%d, %d" % (S_T1, S_T1, 0 if 'samekv' in ABL else 63)]
    return out + ["s_lshl_b32 s%d, s%d, 21" % (d, S_T1), "s_lshl_b32 s%d, s%d, 13" % (S_T1, S_T1), "s_and_b32 s%d, s%d, 0x2000" % (S_T1, S_T1),
                  "s_xor_b32 s%d, s%d, s%d" % (S_T1, S_T1, S_KVB), "s_add_u32 s%d, s%d, s%d" % (d, d, S_T1)]


def kv_dma(w):
    if 'nopf' in ABL:
        return []
    ld = lambda v, o: "buffer_load_dwordx4 v%d, %s, s%d offen offset:%d lds" % (v, W, S_KV, o)
    if w == 't':
        return ["buffer_load_dword v%d, v%d, %s, s%d offen" % (V_SMP + 2, V_D1, W, S_KV)]
    grp = lambda base, v, o0, n: ["s_mov_b32 m0, %d" % base, "s_nop 0"] + [ld(v, (o0 + i) * 1024) for i in range(n)]
    if w == 'kb':
        return grp(L_KV, V_LIN, 0, 4) + grp(L_KV + 4096, V_B4, 0, 4)
    if w == 'b1':
        return grp(L_KV, V_LIN, 0, 4) + grp(L_KV + 4096, V_B4, 0, 2)
    if w == 'b2':
        return grp(L_Q, V_B4 + 1, 0, 4) + grp(L_Q + 4096, V_B4 + 2, 0, 3)
    if w == 'b3':
        return grp(L_KV + 4096, V_B4, 2, 2) + grp(L_KV + 8192, V_D2, 0, 2) + grp(L_Q + 4096, V_B4 + 2, 3, 1)
    if w == 't2':
        return ["buffer_load_dword v%d, v%d, %s, s%d offen sc1" % (V_SMP + 2, V_D1, W, S_TCH)]
    if w in ('k', 'q'):
        return ["s_add_u32 m0, s%d, %d" % (S_KVL - 3, L_KV if w == 'k' else L_Q)] + [ld(V_KQ + (w == 'q'), i * 1024) for i in range(2)]
    if w == 'v':
        return ["s_mov_b32 m0, %d" % (L_KV + 8192), "s_nop 0"] + [ld(V_D2, i * 1024) for i in range(2)]
    return ["s_mov_b32 m0, s%d" % S_KVL, "s_nop 0"] + [ld(V_D0, i * 1024) for i in range(4)]


def xatt1():
    kf = lambda i: V_KF + 4 * i
    o = []
    for c in range(4):
        o += ["ds_read_b128 v[%d:%d], v%d offset:%d" % (V_XQ + 4 * c, V_XQ + 4 * c + 3, V_XQA, L_Q + c * 1024)]
        o += ["ds_read_b128 v[%d:%d], v%d offset:%d" % (kf(2 * c + t), kf(2 * c + t) + 3, V_LIN, L_KV + (t * 4 + c) * 1024) for t in range(2)]
    o += ["ds_read_b128 v[%d:%d], v%d offset:%d" % (V_VT + 4 * t, V_VT + 4 * t + 3, V_LIN, L_KV + 8192 + t * 1024) for t in range(2)]
    for c in range(4):
        o += ["s_waitcnt lgkmcnt(%d)" % (11 - 3 * c)]
        o += ["v_mfma_f32_16x16x32_bf16 v[%d:%d], v[%d:%d], v[%d:%d], %s" % (d, d + 3, kf(2 * c + t), kf(2 * c + t) + 3, V_XQ + 4 * c, V_XQ + 4 * c + 3, "0" if c == 0 else "v[%d:%d]" % (d, d + 3))
              for t, d in enumerate((V_S0, V_S1))]
    post = ["v_cvt_pk_bf16_f32 v%d, 0, v%d" % (v, v) for v in range(V_S0, V_S0 + 8)]
    post += ["v_pk_mul_f32 v[%d:%d], v[%d:%d], s[%d:%d]" % (p, p + 1, p, p + 1, S_SCL, S_SCL + 1) for p in range(V_S0, V_S0 + 8, 2)]
    post += post[:8]
    post += [pk("add", V_S0 + i, V_S0 + i, V_XB + i) for i in range(0, 8, 2)]
    m, t = V_XT, V_XT + 1
    post += ["v_max3_f32 v%d, v%d, v%d, v%d" % (m, V_S0, V_S0 + 1, V_S0 + 2), "v_max3_f32 v%d, v%d, v%d, v%d" % (t, V_S0 + 3, V_S1, V_S1 + 1),
             "v_max3_f32 v%d, v%d, v%d, v%d" % (m, m, V_S1 + 2, V_S1 + 3), "v_max_f32 v%d, v%d, v%d" % (m, m, t)]
    return o, post


def xatt2():
    SM, m, t, sm = V_S2, V_XT, V_XT + 1, V_XT + 2
    o = ["ds_read_b128 v[%d:%d], v%d offset:%d" % (V_XKM + 4 * c, V_XKM + 4 * c + 3, V_XKA, L_QXC + c * 512) for c in range(4)]
    for c in range(4):
        o += ["s_waitcnt lgkmcnt(%d)" % (3 - c),
              "v_mfma_f32_16x16x32_bf16 v[%d:%d], v[%d:%d], v[%d:%d], %s" % (SM, SM + 3, V_XKM + 4 * c, V_XKM + 4 * c + 3, V_XQ + 4 * c, V_XQ + 4 * c + 3, "0" if c == 0 else "v[%d:%d]" % (SM, SM + 3))]
    rn = ["v_cvt_pk_bf16_f32 v%d, 0, v%d" % (v, v) for v in (SM, SM + 1)]
    o += ["s_nop 7"] + rn + ["v_pk_mul_f32 v[%d:%d], v[%d:%d], s[%d:%d]" % (SM, SM + 1, SM, SM + 1, S_SCL, S_SCL + 1)] + rn
    o += ["v_max3_f32 v%d, v%d, v%d, v%d" % (m, m, SM, SM + 1)]

    def xred(op, v):
        r = []
        for sw in ("v_permlane16_swap_b32", "v_permlane32_swap_b32"):
            r += ["v_mov_b32 v%d, v%d" % (t, v), "s_nop 1", "%s v%d, v%d" % (sw, v, t), "%s v%d, v%d, v%d" % (op, v, v, t)]
        return r
    prs = [V_S0, V_S0 + 2, V_S1, V_S1 + 2, SM]
    o += xred("v_max_f32", m) + ["v_mul_f32 v%d, s%d, v%d" % (m, S_C, m)]
    o += ["v_pk_fma_f32 v[%d:%d], v[%d:%d], s[%d:%d], v[%d:%d] op_sel_hi:[1,1,0] neg_lo:[0,0,1] neg_hi:[0,0,1]" % (p, p + 1, p, p + 1, S_C, S_C + 1, m, m + 1) for p in prs]
    o += ["v_exp_f32 v%d, v%d" % (v, v) for v in range(V_S0, V_S0 + 10)]
    o += [pk("add", sm, V_S0, V_S0 + 2), pk("add", sm + 2, V_S1, V_S1 + 2), pk("add", sm, sm, SM), pk("add", sm, sm, sm + 2), "v_add_f32 v%d, v%d, v%d" % (sm, sm, sm + 1)]
    o += xred("v_add_f32", sm) + ["v_rcp_f32 v%d, v%d" % (sm, sm), "s_nop 0"]
    o += [pk("mul", p, p, sm, " op_sel_hi:[1,0]") for p in prs]
    o += ["v_cvt_pk_bf16_f32 v%d, v%d, v%d" % (V_P + i, V_S0 + 2 * i, V_S0 + 2 * i + 1) for i in range(4)]
    o += ["v_cvt_pk_bf16_f32 v%d, v%d, v%d" % (V_P + 4, SM, SM + 1), "v_cvt_pk_bf16_f32 v%d, v%d, v%d" % (V_P + 7, SM, SM + 1)]
    o += ["v_mfma_f32_16x16x32_bf16 v[%d:%d], v[%d:%d], v[%d:%d], 0" % (V_O + 4 * tt, V_O + 4 * tt + 3, V_VT + 4 * tt, V_VT + 4 * tt + 3, V_P, V_P + 3) for tt in range(2)]
    o += ["v_mfma_f32_16x16x16_bf16 v[%d:%d], v[%d:%d], v[%d:%d], v[%d:%d]" % (
        V_O + 4 * tt, V_O + 4 * tt + 3, V_VM, V_VM + 1, V_P + 4 + 2 * tt, V_P + 5 + 2 * tt, V_O + 4 * tt, V_O + 4 * tt + 3) for tt in range(2)]
    fin = ["v_cvt_pk_bf16_f32 v%d, v%d, v%d" % (V_O + i, V_O + 2 * i, V_O + 2 * i + 1) for i in range(4)]
    return o, fin


def smf(c, areg, m):
    return "v_smfmac_f32_16x16x64_bf16 v[%d:%d], v[%d:%d], a[%d:%d], v%d" % (c, c + 3, m, m + 3, areg, areg + 7, V_IDX)


def pk(op, d, x, y, extra=""):
    return "v_pk_%s_f32 v[%d:%d], v[%d:%d], v[%d:%d]%s" % (op, d, d + 1, x, x + 1, y, y + 1, extra)


def slot_update():
    out = ["s_add_u32 s%d, s%d, 0x40000" % (S_REL, S_REL),
           "s_and_b32 s%d, s%d, 0xc0000" % (S_REL, S_REL),
           "s_xor_b32 s%d, s%d, 0x80000" % (S_T0, S_REL),
           "s_add_u32 s%d, s%d, s%d" % (S_POI, S_EXB, S_T0)]
    out += ["s_lshl_b32 s%d, s%d, 18" % (S_PX0, S_STEP),
            "s_lshl_b32 s%d, s%d, 10" % (S_T0, S_STEP),
            "s_and_b32 s%d, s%d, 0x2000" % (S_T0, S_T0),
            "s_xor_b32 s%d, s%d, s%d" % (S_T0, S_T0, S_PXB),
            "s_add_u32 s%d, s%d, s%d" % (S_PX0, S_PX0, S_T0),
            "s_add_u32 s%d, s%d, 0x20000" % (S_PX1, S_PX0)]
    out += ["s_add_u32 s%d, s%d, 0x40000" % (S_T0, S_REL),
            "s_and_b32 s%d, s%d, 0xc0000" % (S_T0, S_T0),
            "s_add_u32 s%d, s%d, s%d" % (S_NXT, S_EXB, S_T0)]
    return out


STAMPF = [None]


def step_body(a, name, stamp0):
    I = a.I
    STAMPF[0] = stamp0
    stamp = (lambda i: None if i in (1, 2, 8, 7) else stamp0(i)) if os.environ.get("GST") else stamp0
    loop, done = name + "_loop", name + "_done"
    lhelp, lb4 = a.uid("L_help"), a.uid("L_b4")
    a.L(loop)
    stamp(0)
    a.C("==== Q phase")
    zero = ["v_mov_b32 v%d, 0" % (V_AQ + i) for i in range(16)]
    PADW = list(zero) if E("PADP", 0) >= 16 else []
    XN2 = E("XN2", 0)
    xt = xatt2()[0][-XN2:] if XN2 else []
    work = ["s_mov_b32 s%d, s%d" % (S_CUR, S_NXT)] + xt + ([] if PADW else zero) + slot_update()
    if OSTA:
        work += xatt2()[1] + blk_addr(S_KM, -1) + ["s_or_b32 s%d, s%d, s%d" % (S_KM, S_KM, S_W01)]
    if TCHA:
        work += blk_addr(S_KV, 1) + ["s_cmp_eq_u32 s%d, 0" % S_STEP, "s_cselect_b32 s%d, 0x%x, s%d" % (S_T1, 0xf0000000, S_WT), "s_or_b32 s%d, s%d, s%d" % (S_KV, S_KV, S_T1)]
    fill(a, work, max(PRE_Q, 1))
    loads = ["buffer_load_dwordx4 v[%d:%d], v%d, %s, s%d offen offset:%d sc1" % (V_M + 4 * b, V_M + 4 * b + 3, V_GLD, W, S_CUR, b * 1024) for b in range(4)]
    for b in range(4):
        I(loads[b])
        fill(a, work, PACE if b < 3 else len(work))
    ver, vbr = gather_fifo(a, "q", loads, [V_AQ, V_AQ + 4], lambda k, ty, b: a_qk(2 * k + ty, b), [V_AV])
    stamp(1)
    vm = [smf(V_AV, a_v(t, b), (V_M, V_MR)[t] + 4 * b) for b in range(4) for t in range(2)]
    for l in ver[:4]:
        I(l)
    I("ds_write_b64 v%d, v[%d:%d] offset:%d" % (V_RQW, V_AQ, V_AQ + 1, L_RQK))
    I("ds_write_b64 v%d, v[%d:%d] offset:%d" % (V_RQW + 1, V_AQ + 2, V_AQ + 3, L_RQK))
    for l in ver[4:6]:
        I(l)
    I("ds_write_b64 v%d, v[%d:%d] offset:%d" % (V_RQW + 2, V_AQ + 4, V_AQ + 5, L_RQK))
    kd_ = kv_dma('k') if 'A' in KQW else []
    for l in kd_[:1] + ver[6:] + kd_[1:]:
        I(l)
    for _ in range(VPRE):
        I(vm.pop(0))
    I(vbr)
    I("s_waitcnt lgkmcnt(0)")
    I("s_barrier")
    for i in range(3):
        I("ds_read_b64 v[%d:%d], v%d offset:%d" % (V_R + 2 * i, V_R + 2 * i + 1, V_RQR, L_RQK + i * 512))
    if OSTA and 'nopub' not in ABL:
        I("buffer_store_dwordx4 v[%d:%d], v%d, %s, s%d offen sc1" % (V_O, V_O + 3, V_H1, W, S_KM))
    if TCHA:
        I("buffer_load_dword v%d, v%d, %s, s%d offen" % (V_SMP + 2, V_H3, W, S_KV))
    for _ in range(VMID):
        I(vm.pop(0))
    A = V_AQ + 6
    I("s_waitcnt lgkmcnt(2)")
    I(pk("add", A, A, V_R))
    I("s_waitcnt lgkmcnt(0)")
    I(pk("add", V_R + 2, V_R + 2, V_R + 4))
    I(pk("add", A, A, V_R + 2))
    I("v_cvt_pk_bf16_f32 v%d, v%d, v%d" % (A, A, A + 1))
    I("s_cmp_lg_u32 s%d, 0" % S_W)
    I("s_nop 0")
    I("v_mov_b32_dpp v%d, v%d quad_perm:[1,0,3,2] row_mask:0xf bank_mask:0xf" % (A + 1, A))
    I("v_perm_b32 v%d, v%d, v%d, v%d" % (A, A + 1, A, V_SEL))
    I("v_min_u32 v%d, 0xfffffffe, v%d" % (A, A))
    I("buffer_store_dword v%d, v%d, %s, s%d offen" % (A, V_QXST, W, S_CUR))
    late = len(vm) > 0
    for l in vm:
        I(l)
    if late:
        I("s_nop 7")
    I("ds_write_b128 v%d, v[%d:%d] offset:%d" % (V_RW, V_AV, V_AV + 3, L_RV))
    I("s_cbranch_scc1 %s" % lhelp)
    stamp(2)
    a.C("==== S phase, wave 0")
    NS = E("NSET", 3)
    ql = [["buffer_load_dwordx4 v[%d:%d], v%d, %s, s%d offen offset:%d sc1" % (q + 4 * c, q + 4 * c + 3, V_QXLD, W, S_CUR, c * 1024) for c in range(4)] for q in V_QS[:NS]]
    work = ["ds_read_b128 v[%d:%d], v%d offset:%d" % (V_KF + 4 * i, V_KF + 4 * i + 3, V_LIN, L_KV + i * 1024) for i in range(10)]
    if E("B2E", 1):
        I("s_waitcnt %slgkmcnt(0)" % ("vmcnt(%d) " % (1 + OSTA + (TCHA > 0)) if 'A' in KQW else ""))
        I("s_barrier")
        fill(a, work, PRE_S)
        for l in ql[0]:
            I(l)
    else:
        fill(a, [], PRE_S)
        for l in ql[0]:
            I(l)
        I("s_waitcnt %slgkmcnt(0)" % ("vmcnt(%d) " % (5 + OSTA + (TCHA > 0)) if 'A' in KQW else ""))
        I("s_barrier")
    for k in range(1, NS):
        fill(a, work, GAP_S - (4 if k == 1 and not E("B2E", 1) else 0))
        for l in ql[k]:
            I(l)
    for l in work:
        I(l)
    I("s_waitcnt lgkmcnt(0)")
    lsd = a.uid("L_sd")
    ror = lambda d, s, bm: "v_mov_b32_dpp v%d, v%d row_ror:8 row_mask:0xf bank_mask:0x%x" % (d, s, bm)
    slab = lambda k, c: "%s_%d_%d" % (lsd, k, c)
    for k in range(NS + 1):
        out, stubs = [], []
        for c in range(4):
            r = V_QS[k % NS] + 4 * c
            dst = V_SC[c] if c < 3 else V_S0
            mf = lambda i, ar_: "    v_mfma_f32_16x16x32_bf16 v[%d:%d], v[%d:%d], v[%d:%d], %s" % (
                dst + 4 * i, dst + 4 * i + 3, ar_, ar_ + 3, r, r + 3, "0" if c == 0 else "v[%d:%d]" % (V_SC[c - 1] + 4 * i, V_SC[c - 1] + 4 * i + 3))
            f = slab(k, c) + "f"
            direct = k < NS - 1 and os.environ.get("STAMP") != "2"
            out += [slab(k, c) + ":", "    s_waitcnt vmcnt(%d)" % (4 * max(NS - 1 - k, 0) + 3 - c),
                    "    v_max3_u32 v%d, v%d, v%d, v%d" % (V_CHK, r, r + 1, r + 2), mf(2, r),
                    "    v_max_u32 v%d, v%d, v%d" % (V_CHK, V_CHK, r + 3),
                    "    v_cmp_eq_u32 vcc, -1, v%d" % V_CHK,
                    mf(1, V_KF + 16 + 4 * c), mf(0, V_KF + 4 * c)]
            if c == 3:
                out += ["    " + ror(V_S2, V_S2 + 1, 0xc), "    " + ror(V_S2 + 2, V_S2 + 3, 0xc)]
            out += ["    s_cbranch_vccnz %s" % (slab(k + 1, c) if direct else f)]
            if k < NS - 1:
                stubs += [f + ":"] + ["    " + l for l in spin_lines(1, False)] + ["    s_branch %s" % slab(k + 1, c)]
            else:
                stubs += [f + ":"] + ["    " + l for l in ql[0][c:] + spin_lines(1)] + ["    s_branch %s" % slab(NS, c)]
        if k == 0:
            for l in out:
                a.raw(l)
        else:
            COLD.extend(out + ["    s_branch %s" % lsd])
        COLD.extend(stubs)
    a.L(lsd)
    I("s_barrier")
    stamp(8)
    ror = lambda d, s, bm: "v_mov_b32_dpp v%d, v%d row_ror:8 row_mask:0xf bank_mask:0x%x" % (d, s, bm)
    rnd = lambda v: "v_cvt_pk_bf16_f32 v%d, 0, v%d" % (v, v)
    A0, F, m, t = V_S0, V_S2 + 2, V_T, V_T + 1
    I("v_permlane32_swap_b32 v%d, v%d" % (V_S2, V_S2 + 2))
    I("ds_read_b64 v[%d:%d], v%d offset:%d" % (V_VM, V_VM + 1, V_L8, L_VMF))
    I("s_cmp_eq_u32 s%d, %d" % (S_STEP, LAST))
    I("s_cbranch_scc1 %s" % (name + "_fin"))
    for i in range(4):
        I(ror(A0 + i, V_S1 + i, 0xc))
    I("v_max3_f32 v%d, v%d, v%d, v%d" % (m, F, A0, A0 + 1))
    I("v_max3_f32 v%d, v%d, v%d, v%d" % (m, m, A0 + 2, A0 + 3))
    I(rnd(A0))
    I(rnd(A0 + 1))
    I("v_max_f32_dpp v%d, v%d, v%d row_ror:8 row_mask:0xf bank_mask:0xf" % (m, m, m))
    I("v_mov_b32 v%d, v%d" % (t, m))
    I(rnd(A0 + 2))
    I(rnd(A0 + 3))
    I("v_permlane16_swap_b32 v%d, v%d" % (m, t))
    I(rnd(F))
    I("v_max_f32 v%d, v%d, v%d" % (m, m, t))
    I("v_mov_b32 v%d, v%d" % (t, m))
    I("v_pk_mul_f32 v[%d:%d], v[%d:%d], s[%d:%d]" % (A0, A0 + 1, A0, A0 + 1, S_SCL, S_SCL + 1))
    I("v_pk_mul_f32 v[%d:%d], v[%d:%d], s[%d:%d]" % (A0 + 2, A0 + 3, A0 + 2, A0 + 3, S_SCL, S_SCL + 1))
    I("v_permlane32_swap_b32 v%d, v%d" % (m, t))
    I("v_mul_f32 v%d, s%d, v%d" % (F, S_SCL, F))
    I("v_max_f32 v%d, v%d, v%d" % (m, m, t))
    I(rnd(F))
    I(rnd(m))
    I(rnd(A0))
    I("v_mul_f32 v%d, s%d, v%d" % (m, S_SCL, m))
    I(rnd(A0 + 1))
    I(rnd(m))
    I(rnd(A0 + 2))
    I("v_mul_f32 v%d, s%d, v%d" % (m, S_C, m))
    I(rnd(A0 + 3))
    pf = lambda i: "v_pk_fma_f32 v[%d:%d], v[%d:%d], s[%d:%d], v[%d:%d] op_sel_hi:[1,1,0] neg_lo:[0,0,1] neg_hi:[0,0,1]" % (A0 + i, A0 + i + 1, A0 + i, A0 + i + 1, S_C, S_C + 1, m, m + 1)
    ex = lambda v: "v_exp_f32 v%d, v%d" % (v, v)
    sm = V_S1
    mm = lambda d, x: "v_mfma_f32_16x16x32_bf16 v[%d:%d], v[%d:%d], v[%d:%d], v[%d:%d]" % (d, d + 3, x, x + 3, V_P, V_P + 3, d, d + 3)
    m16 = lambda d, x, tt: "v_mfma_f32_16x16x16_bf16 v[%d:%d], v[%d:%d], v[%d:%d], 0" % (d, d + 3, x, x + 1, V_P + 4 + 2 * tt, V_P + 5 + 2 * tt)
    for l in ["v_fma_f32 v%d, v%d, s%d, -v%d" % (F, F, S_C, m), pf(0), ex(F), pf(2), ex(A0), ror(t, F, 0xf), ex(A0 + 1),
              "v_cvt_pk_bf16_f32 v%d, v%d, v%d" % (V_P + 4, F, t), "v_cvt_pk_bf16_f32 v%d, v%d, v%d" % (V_P + 7, F, t), ex(A0 + 2),
              m16(sm, V_ONEB, 0), ex(A0 + 3), "s_waitcnt lgkmcnt(0)", m16(V_O, V_VM, 0),
              "v_cvt_pk_bf16_f32 v%d, v%d, v%d" % (V_P, A0, A0 + 1), "v_cvt_pk_bf16_f32 v%d, v%d, v%d" % (V_P + 1, A0 + 2, A0 + 3),
              m16(V_O + 4, V_VM, 1), ror(V_P + 2, V_P, 0xf), ror(V_P + 3, V_P + 1, 0xf),
              "s_mov_b64 exec, s[%d:%d]" % (S_M8, S_M8 + 1), "s_nop 0",
              mm(sm, V_ONEB), mm(V_O, V_VT), mm(V_O + 4, V_VT + 4), "s_nop 0",
              "v_rcp_f32 v%d, v%d" % (sm, sm), "s_nop %d" % E("ANOP", 1)]:
        I(l)
    for h in range(2):
        for i in (4 * h, 4 * h + 2):
            I(pk("mul", V_O + i, V_O + i, sm, " op_sel_hi:[1,0]"))
        for i in (2 * h, 2 * h + 1):
            I("v_cvt_pk_bf16_f32 v%d, v%d, v%d" % (V_O + i, V_O + 2 * i, V_O + 2 * i + 1))
    for i in range(4):
        I("v_min_u32 v%d, 0xfffffffe, v%d" % (V_O + i, V_O + i))
    I("buffer_store_dwordx4 v[%d:%d], v%d, %s, s%d offen" % (V_O, V_O + 3, V_OXST, W, S_CUR))
    I("s_mov_b64 exec, -1")
    stamp(7)
    a.L(lb4)
    I("s_barrier")
    stamp(3)
    a.C("==== O phase")
    work = ([] if SB else blk_addr(S_KV, 1)) + ["s_add_u32 s%d, s%d, 1" % (S_STEP, S_STEP)]
    fill(a, work, max(PRE_O, len(work)))
    loads = ["buffer_load_dwordx4 v[%d:%d], v%d, %s, s%d offen offset:%d sc1" % (V_M + 4 * b, V_M + 4 * b + 3, V_OLD, W, S_CUR, b * 1024) for b in range(4)]
    for b in range(4):
        I(loads[b])
        if b < 3:
            fill(a, work, PACE)
    ver, vbr = gather_fifo(a, "o", loads, [V_AO], lambda k, ty, b: a_wo(ty, b))
    stamp(4)
    qd_ = (kv_dma('q') if 'C' in KQW else []) or ["s_nop 0"]
    for l in ver + qd_[:1]:
        I(l)
    for e in range(3):
        I("ds_write_b32 v%d, v%d offset:%d" % (V_ROW + e, V_AO + e, L_RO))
    for l in qd_[1:]:
        I(l)
    I(vbr)
    I("s_waitcnt lgkmcnt(0)")
    I("s_barrier")
    for i in range(3):
        I("ds_read_b32 v%d, v%d offset:%d" % (V_R + i, V_ROR, L_RO + i * 256))
    I("s_cmp_lt_u32 s%d, 2" % S_W)
    I("s_waitcnt lgkmcnt(2)")
    I("v_add_f32 v%d, v%d, v%d" % (V_R, V_R, V_AO + 3))
    I("s_waitcnt lgkmcnt(0)")
    I("v_add_f32 v%d, v%d, v%d" % (V_R + 1, V_R + 1, V_R + 2))
    I("v_add_f32 v%d, v%d, v%d" % (V_R, V_R, V_R + 1))
    if PXH:
        I("v_cvt_pk_bf16_f32 v%d, 0, v%d" % (V_R, V_R))
    I("v_min_u32 v%d, 0x%x, v%d" % (V_R, 0xfffe0000 if PXH else 0xfffffffe, V_R))
    pst = ["buffer_store_%s v%d, v%d, %s, s%d offen sc1" % ("short_d16_hi" if PXH else "dword", V_R, V_PXST, W, S_PX0 + r) for r in range(NREP)]
    I(pst[0])
    stamp(5)
    a.C("==== P phase")
    x2, x2fin = xatt2()
    if 'nox' in ABL:
        x2 = []
    n0, n1 = E("XN0", 20), E("XN1", 22)
    NSH = max(2, NREP)
    VL = (V_L, V_L + 3, V_R + 2)
    pl = [["buffer_load_%s v%d, v%d, %s, s%d offen sc1" % ("short_d16_hi" if PXH else "dword", VL[k] + i, V_PXLD + i, W, S_PX0 + min(k, NREP - 1)) for i in range(3)] for k in range(NSH)]
    x2 = x2[:len(x2) - XN2]
    x2 = x2[:E("ST1", 0)] + pst[1:] + x2[E("ST1", 0):]
    if PXH:
        x2 = x2[:4] + ["v_mov_b32 v%d, 0" % (VL[k] + i) for k in range(NSH) for i in range(3)] + x2[4:]
        n0 += 3 * NSH
    n0 += NREP - 1
    cuts = [0, n0, n0 + n1, n0 + n1 + E("XN3", 20)][:NSH + 1]
    for k in range(NSH):
        for l in x2[cuts[k]:cuts[k + 1]]:
            I(l)
        fill(a, [], GAP_P if k else PRE_P)
        for l in pl[k]:
            I(l)
    rest = x2[cuts[NSH]:]
    kq = {"D": kv_dma('kq'), "AC": [], "CD": kv_dma('k')[:1] + ["s_nop 0"] + kv_dma('k')[1:], "AD": kv_dma('q')[:1] + ["s_nop 0"] + kv_dma('q')[1:], "B": [], "C": [], "Q": kv_dma('q')[:1] + ["s_nop 0"] + kv_dma('q')[1:]}[KQW]
    kd = E("KQD", 6)
    for l in kq[:1]:
        I(l)
    for i, l in enumerate(kq[2:]):
        for x in rest[kd * i:kd * i + kd] or ["s_nop 0"]:
            I(x)
        I(l)
    for l in rest[kd * len(kq[2:]):]:
        I(l)
    nd = len(kq[2:])
    fill(a, PADW, E("PADP", 0))
    lpd = a.uid("L_pd")

    def rsum(k, other, extra):
        L = VL[k]
        f = a.uid("L_pf")
        y = 3 * (NSH - 1) + extra
        out = ["s_waitcnt vmcnt(%d)" % (2 + y), "v_add_f32 v%d, v%d, v%d" % (V_T, V_R, L), "s_waitcnt vmcnt(%d)" % y,
               "v_max3_u32 v%d, v%d, v%d, v%d" % (V_CHK, L, L + 1, L + 2),
               "v_add_f32 v%d, v%d, v%d" % (V_T + 1, L + 1, L + 2),
               "v_cmp_eq_u32 vcc, %s, v%d" % ("0xffff0000" if PXH else "-1", V_CHK),
               "v_add_f32 v%d, v%d, v%d" % (V_T, V_T, V_T + 1),
               "s_nop 1",
               "v_mov_b32_dpp v%d, v%d quad_perm:[1,0,3,2] row_mask:0xf bank_mask:0xf" % (V_T + 1, V_T),
               "s_mov_b64 exec, s[%d:%d]" % (S_EV, S_EV + 1),
               "v_cvt_pk_bf16_f32 v%d, v%d, v%d" % (V_T, V_T, V_T + 1),
               "v_min_u32 v%d, 0xfffffffe, v%d" % (V_T, V_T),
               "s_cbranch_vccnz %s" % f]
        stub = [f + ":"] + ["    " + l for l in ["s_mov_b64 exec, -1"] + pl[k] + spin_lines(3)] + ["    s_branch %s" % other]
        return out, stub
    plab = lambda i: "%s_%d" % (lpd, i)
    for i in range(2 * NSH):
        out, stub = rsum(i % NSH, plab(i + 1 if i + 1 < 2 * NSH else NSH), nd if i < NSH else 0)
        if i == 0:
            for l in out:
                I(l)
        else:
            COLD.extend([plab(i) + ":"] + ["    " + l for l in out] + ["    s_branch %s" % lpd])
        COLD.extend(stub)
    a.L(lpd)
    I("buffer_store_dword v%d, v%d, %s, s%d offen" % (V_T, V_MEMST, W, S_NXT))
    I("s_mov_b64 exec, -1")
    stamp(6)
    I("s_branch %s" % loop)

    a.L(lhelp)
    I("s_waitcnt %slgkmcnt(0)" % ("vmcnt(%d) " % (1 + OSTA + (TCHA > 0)) if 'A' in KQW else ""))
    I("s_barrier")
    lw2, lw3, lhe = a.uid("L_w2"), a.uid("L_w3"), a.uid("L_he")
    if os.environ.get("STAMP") == "2":
        stamp(2)
        I("s_waitcnt lgkmcnt(0)")
    I("s_cmp_ge_u32 s%d, 2" % S_W)
    I("s_cbranch_scc1 %s" % lw2)
    a.C("---- wave 1: reduce v, gate, K prefetch, poison, progress word")
    GA = 2
    for i, src in enumerate((0, 2, 3)):
        I("ds_read_b128 v[%d:%d], v%d offset:%d" % (V_R + 4 * i, V_R + 4 * i + 3, V_LIN, L_RV + src * 1024))
    for i, src in enumerate((0, 2, 3)):
        I("s_waitcnt lgkmcnt(%d)" % (2 - i))
        for k in (0, 2):
            I(pk("add", V_AV + k, V_AV + k, V_R + 4 * i + (k if src & 1 else k ^ 2)))
    for tt in range(2):
        I("v_cvt_pk_bf16_f32 v%d, v%d, v%d" % (V_VM + tt, V_AV + 2 * tt, V_AV + 2 * tt + 1))
    I("s_nop 1")
    I("v_permlane32_swap_b32 v%d, v%d" % (V_VM, V_VM + 1))
    I("s_nop 1")
    I("ds_write_b64 v%d, v[%d:%d] offset:%d" % (V_KXW, V_VM, V_VM + 1, L_VMF))
    if SB:
        for l in blk_addr(S_TCH, 2) + kv_dma('t2'):
            I(l)
    if TS:
        fill(a, blk_addr(S_TCH, 1), E("TSD", 40))
        I("buffer_load_dword v%d, v%d, %s, s%d offen sc1" % (V_SMP + 2, V_H3, W, S_TCH))
    I("s_add_u32 s%d, s%d, %d" % (S_T0, S_STEP, GA))
    I("s_min_u32 s%d, s%d, 63" % (S_T0, S_T0))
    kvs.group_word(a, S_T0, S_KM, S_T2)
    I("s_cmp_eq_u32 s%d, %d" % (S_ID, 999 if 'nowork' in ABL else 1))
    I("s_cselect_b32 s%d, s%d, s%d" % (S_KM, S_KM, S_GATE))
    for l in blk_addr(S_KV, 1):
        I(l)
    I("s_waitcnt lgkmcnt(0)")
    lng, lgr, lnf = a.uid("L_nog"), a.uid("L_gr"), a.uid("L_nof")
    I("s_cmp_eq_u32 s%d, s%d" % (S_KM, S_GATE))
    I("s_cbranch_scc1 %s" % lng)
    I("s_load_dword s%d, s[%d:%d], s%d glc" % (S_T2, S_DBG, S_DBG + 1, S_KM))
    a.L(lng)
    I("s_mov_b32 s%d, 1" % S_T3)
    stamp(8)
    I("s_barrier")

    def first_gate():
        if 'nowork' not in ABL:
            lns = a.uid("L_ns0")
            I("s_cmp_lg_u32 s%d, 0" % S_STEP)
            I("s_cbranch_scc1 %s" % lns)
            relay_wait(a, 1)
            a.L(lns)
    first_gate()
    for l in kv_dma('b1') if SB else (kv_dma('t') if TCHA < 2 and TS < 2 else []) + kv_dma('v') + (kv_dma('kb') if KB else []):
        I(l)
    I("s_cmp_lg_u32 s%d, 0" % S_ID)
    I("s_cbranch_scc1 %s" % lnf)
    I("s_atomic_add s%d, s[%d:%d], %d" % (S_T3, S_DBG, S_DBG + 1, D_PROG * 4))
    a.L(lnf)
    poison(a, S_POI)
    I("s_cmp_eq_u32 s%d, s%d" % (S_KM, S_GATE))
    I("s_cbranch_scc1 %s" % lhe)
    I("s_mov_b32 s%d, s%d" % (S_GATE, S_KM))
    a.L(lgr)
    I("s_waitcnt lgkmcnt(0)")
    I("s_cmp_ge_u32 s%d, %d" % (S_T2, NKV))
    I("s_cbranch_scc1 %s" % lhe)
    for l in spin_lines():
        I(l)
    I("s_load_dword s%d, s[%d:%d], s%d glc" % (S_T2, S_DBG, S_DBG + 1, S_KM))
    I("s_branch %s" % lgr)
    a.L(lw2)
    a.C("---- waves 2, 3: x-token attention (query tile w&1), o of the previous step, Q / V prefetch")
    x1, x1post = xatt1()
    ost = "buffer_store_dwordx4 v[%d:%d], v%d, %s, s%d offen sc1" % (V_O, V_O + 3, V_H1, W, S_KM)
    if SB or OSS:
        seq = x1[:14] + x2fin + blk_addr(S_KM, -1) + x1[14:] + (blk_addr(S_KV, 1) + x1post if SB else ["s_nop 6"] + x1post[:E("X1P", 28)])
        if 'nopub' not in ABL:
            seq.insert(E("OSP", 36), ost)
    else:
        seq = x1[:14] + ([] if OSTA else x2fin) + x1[14:] + blk_addr(S_KM, -1) + ["s_nop 0"] + x1post
    for l in seq:
        I(l)
    I("s_cmp_eq_u32 s%d, 3" % S_W)
    I("s_waitcnt lgkmcnt(0)")
    stamp(8)
    I("s_barrier")
    if 'nopub' not in ABL and not OSTA and not SB and not OSS:
        I(ost)
    I("ds_read_b64 v[%d:%d], v%d offset:%d" % (V_VM, V_VM + 1, V_L8, L_VMF))
    if SB:
        I("s_cbranch_scc1 %s" % lw3)
        first_gate()
        for l in kv_dma('b2'):
            I(l)
        I("s_branch %s" % lhe)
        a.L(lw3)
        first_gate()
        for l in kv_dma('b3'):
            I(l)
    else:
        I("s_cbranch_scc0 %s" % lw3)
    for c in range(2):
        I("s_mov_b32 m0, %d" % (L_QXC - c * 1024))
        I("s_nop 0")
        I("buffer_load_dwordx4 v%d, %s, s%d offen offset:%d sc1 lds" % (V_H2, W, S_CUR, c * 2048))
    if not SB:
        a.L(lw3)
        if OSS:
            for l in x1post[E("X1P", 28):]:
                I(l)
    a.L(lhe)
    stamp(7)
    I("s_cmp_lg_u32 s%d, %d" % (S_STEP, LAST))
    I("s_cbranch_scc1 %s" % lb4)
    a.L(name + "_fin")
    I("s_waitcnt vmcnt(0) lgkmcnt(0)")
    I("s_barrier")
    lf = a.uid("L_f2")
    I("s_cmp_lt_u32 s%d, 2" % S_W)
    I("s_cbranch_scc1 %s" % lf)
    for l in xatt2()[0] + blk_addr(S_KM, 0) + ["s_nop 1"] + x2fin + [ost]:
        I(l)
    I("s_waitcnt vmcnt(0)")
    a.L(lf)
    I("s_barrier")
    I("s_cmp_lg_u32 s%d, 0" % S_W)
    I("s_cbranch_scc1 %s" % done)
    I("s_add_u32 s%d, s%d, 4096" % (S_T0, S_LF))
    I("s_mov_b32 s%d, 1" % S_T1)
    I("s_atomic_add s%d, s[%d:%d], s%d" % (S_T1, ptr(D_WS), ptr(D_WS) + 1, S_T0))
    I("s_branch %s" % done)


def poison(a, s_slot):
    I = a.I
    I("buffer_store_dwordx4 v[%d:%d], v%d, %s, s%d offen" % (V_ONES, V_ONES + 3, V_H0, W, s_slot))
    I("s_lshl_b32 s%d, s%d, 9" % (S_T1, S_JM))
    I("s_add_u32 s%d, s%d, s%d" % (S_T1, S_T1, s_slot))
    I("buffer_store_dwordx2 v[%d:%d], v%d, %s, s%d offen" % (V_ONES, V_ONES + 1, V_L8, W, S_T1))
    I("s_xor_b32 s%d, s%d, %d" % (S_T1, S_T1, 16384 + 4096))
    I("buffer_store_dwordx2 v[%d:%d], v%d, %s, s%d offen" % (V_ONES, V_ONES + 1, V_L8, W, S_T1))


def bias(a):
    I = a.I
    t0, t1 = V_T, V_T + 1
    I("v_and_b32 v%d, 15, v0" % t0)
    I("v_bfe_u32 v%d, v0, 6, 1" % t1)
    I("v_lshl_add_u32 v%d, v%d, 4, v%d" % (t0, t1, t0))
    I("v_bfe_u32 v%d, v0, 4, 2" % t1)
    I("v_lshlrev_b32 v%d, 2, v%d" % (t1, t1))
    I("v_sub_u32 v%d, v%d, v%d" % (t0, t0, t1))
    I("v_mov_b32 v%d, 0xff800000" % t1)
    for i in range(8):
        I("v_cmp_gt_i32 vcc, %d, v%d" % (16 * (i >> 2) + (i & 3), t0))
        I("s_nop 1")
        I("v_cndmask_b32 v%d, 0, v%d, vcc" % (V_XB + i, t1))


def chain_main(a, name, stamp=None):
    I = a.I
    a.srd(S_WS, ptr(D_WS), 0, WS_SIZE)
    ABORT[0] = name + "_abort"
    I("s_mov_b32 s%d, 0" % S_SPIN)
    I("s_xor_b32 s%d, s%d, 8" % (S_JM, S_J))
    I("s_and_b32 s%d, s%d, 1" % (S_JQ, S_J))
    I("s_bfe_u32 s%d, s%d, 0x10001" % (S_T0, S_J))
    I("s_xor_b32 s%d, s%d, 1" % (S_T0, S_T0))
    I("s_lshl1_add_u32 s%d, s%d, s%d" % (S_JQ, S_JQ, S_T0))

    for _ in range(E("CDLY", 0)):
        I("s_sleep 36")
    pa = Asm()
    prologue_addrs(pa)
    pa.I("global_load_dwordx2 v[%d:%d], v%d, s[%d:%d]" % (V_Y, V_Y + 1, V_M0LD, ptr(B_MEM0), ptr(B_MEM0) + 1))
    bias(pa)

    def mid():
        if len(LOOPSTART) > 2:
            LOOPSTART[2]()
        kvs.ROLE[0](a, S_J, "chain_start", S_W, L_ROLE, S_T0, V_T)
        I("s_lshl_b32 s%d, s%d, 18" % (S_POI, S_W))
        I("s_add_u32 s%d, s%d, s%d" % (S_POI, S_POI, S_EXB))
        poison(a, S_POI)
        I("s_lshl_b32 s%d, s%d, 8" % (S_LF, S_X))
        I("s_add_u32 s%d, s%d, 0x%x" % (S_LF, S_LF, X_LF))
        I("s_cmp_eq_u32 s%d, 1" % S_J)
        I("s_cselect_b32 s%d, s%d, 0x%x" % (S_T1, S_LF, WS_SIZE))
        I("v_mov_b32 v%d, 0" % V_SMP)
        I("s_add_u32 s%d, s%d, 4096" % (S_T1, S_T1))
        I("buffer_store_dword v%d, v%d, %s, s%d offen sc1" % (V_SMP, V_SMP, W, S_T1))
        I("v_mov_b32 v%d, %d" % (V_SMP + 1, D_CAL * 4))
        I("global_load_dword v%d, v%d, s[%d:%d] sc1" % (V_SMP + 1, V_SMP + 1, S_DBG, S_DBG + 1))

    def early():
        l1 = a.uid("L_m0")
        I("s_barrier")
        warm = os.environ.get("WARM", "bcx")
        if warm:
            I("s_load_dwordx16 s[64:79], s[0:1], 0")
            I("v_lshlrev_b32 v%d, 3, v%d" % (V_T, V_LIN))
            I("s_lshl2_add_u32 s%d, s%d, s%d" % (S_T0, S_ID, S_W))
            I("s_lshl_b32 s%d, s%d, 13" % (S_T0, S_T0))
            I("s_and_b32 s%d, s%d, 0x1fffff" % (S_T1, S_T0))
            I("s_waitcnt lgkmcnt(0)")
            for c in warm:
                if c in "bc":
                    p = ptr(A_BRE if c == 'b' else A_CRE)
                    I("s_bitcmp1_b32 s%d, 21" % S_T0)
                    I("s_cselect_b64 s[%d:%d], s[%d:%d], s[%d:%d]" % (S_T2, S_T3, p + 2, p + 3, p, p + 1))
                    a.srd(S_TMPSRD, S_T2, 0, 2 * MB)
                    I("buffer_load_dword v%d, v%d, s[%d:%d], s%d offen" % (V_SMP + 2, V_T, S_TMPSRD, S_TMPSRD + 3, S_T1))
                else:
                    a.srd(S_TMPSRD, ptr({'a': A_X, 'x': B_X, 'o': B_WO, 'p': B_WO}[c]), 4 * MB if c == 'p' else 0, 4 * MB)
                    I("buffer_load_dword v%d, v%d, s[%d:%d], s%d offen" % (V_SMP + 2, V_T, S_TMPSRD, S_TMPSRD + 3, S_T0))
        I("v_and_b32 v%d, 15, v0" % V_T)
        I("v_lshlrev_b32 v%d, 7, v%d" % (V_T, V_T))
        I("s_lshl_b32 s%d, s%d, 11" % (S_T1, S_J))
        I("s_add_u32 s%d, s%d, s%d" % (S_T1, S_T1, S_POI))
        I("buffer_load_dword v%d, v%d, %s, s%d offen sc1" % (V_SMP + 2, V_T, W, S_T1))
        I("s_cmp_lg_u32 s%d, 0" % S_W)
        I("s_cbranch_scc1 %s" % l1)
        I("s_lshl2_add_u32 s%d, s%d, s%d" % (S_T1, S_J, S_LF))
        I("buffer_store_dword v%d, v%d, %s, s%d offen" % (V_ONES, V_SMP, W, S_T1))
        I("s_lshl_b32 s%d, s%d, 9" % (S_T1, S_JM))
        I("s_add_u32 s%d, s%d, s%d" % (S_T1, S_T1, S_EXB))
        I("v_min_u32 v%d, 0xfffffffe, v%d" % (V_Y, V_Y))
        I("v_min_u32 v%d, 0xfffffffe, v%d" % (V_Y + 1, V_Y + 1))
        I("buffer_store_dwordx2 v[%d:%d], v%d, %s, s%d offen" % (V_Y, V_Y + 1, V_L8, W, S_T1))
        a.L(l1)
    load_weights(a, pa.lines, mid, early)
    if LOOPSTART[1]:
        LOOPSTART[1]()
    I("s_mov_b32 s%d, 0" % S_STEP)
    I("s_mov_b32 s%d, 0" % S_GATE)
    I("s_mov_b32 s%d, 0xc0000" % S_REL)
    I("s_mov_b32 s%d, s%d" % (S_NXT, S_EXB))
    for r in (V_P + 5, V_P + 6):
        I("v_mov_b32 v%d, 0" % r)
    for i in range(4):
        I("v_mov_b32 v%d, 0x3f803f80" % (V_ONEB + i))
    for i in range(16):
        I("v_mov_b32 v%d, 0" % (V_AQ + i))
    px_setup(a)
    I("s_barrier")
    if E("PRIO", 0):
        lpr = a.uid("L_prio")
        I("s_cmp_lg_u32 s%d, 0" % S_W)
        I("s_cbranch_scc1 %s" % lpr)
        I("s_setprio 3")
        a.L(lpr)
    lab0 = a.uid("L_init0")
    for l in blk_addr(S_KV, 0):
        I(l)
    I("s_cmp_lg_u32 s%d, 1" % S_W)
    I("s_cbranch_scc1 %s" % lab0)
    if 'nowork' not in ABL:
        relay_wait(a, 0)
    for l in kv_dma('v'):
        I(l)
    a.L(lab0)
    lab2, lp = a.uid("L_init2"), a.uid("L_initp")
    I("s_cmp_lg_u32 s%d, 2" % S_W)
    I("s_cbranch_scc1 %s" % lab2)
    I("v_and_b32 v%d, 31, v0" % V_SMP)
    I("v_lshlrev_b32 v%d, 2, v%d" % (V_SMP, V_SMP))
    a.L(lp)
    I("buffer_load_dword v%d, v%d, %s, s%d offen sc1" % (V_SMP + 1, V_SMP, W, S_LF))
    for l in spin_lines():
        I(l)
    I("s_waitcnt vmcnt(0)")
    I("v_cmp_eq_u32 vcc, 0, v%d" % (V_SMP + 1))
    I("s_cbranch_vccz %s" % lab2)
    I("s_sleep 2")
    I("s_branch %s" % lp)
    a.L(lab2)
    I("s_barrier")
    for l in kv_dma('kq'):
        I(l)
    I("s_waitcnt vmcnt(0) lgkmcnt(0)")
    I("s_barrier")
    if LOOPSTART[0]:
        LOOPSTART[0]()
    step_body(a, name, stamp if stamp else (lambda i: None))
    for line in COLD:
        a.raw(line)
    del COLD[:]
    a.L(ABORT[0])
    a.srd(S_TMPSRD, ptr(D_DBG), 0, 256)
    I("s_mov_b64 exec, 1")
    I("v_mov_b32 v1, s%d" % S_STEP)
    I("v_or_b32 v1, 0xdead0000, v1")
    I("v_mov_b32 v2, 124")
    I("buffer_store_dword v1, v2, s[%d:%d], 0 offen" % (S_TMPSRD, S_TMPSRD + 3))
    a.L(name + "_done")
    if DUMP[0]:
        DUMP[0]()
    I("s_endpgm")
```

```python
from asmlib import *
from L2 import *
import gemm2 as G
from gemm2 import S_XW, S_RK, S_WV, S_POL, T0, T1, T2, T3, srd_s, LDS_END, signal_lines, SPIN_LIMIT
import os

SX, SW, SO = 8, 12, 16
S_M, S_R, S_D, S_XO, S_SEG, S_KO, S_PO, S_TO, S_WO, S_C32 = 20, 21, 22, 23, 24, 25, 26, 27, 28, 29
S_KB, S_PB, S_TC, S_MK = 30, 31, 33, 34
V_LIN, V_DX, V_RX, V_DW, V_RW, V_TCH, V_POLV, V_L4 = 1, 2, 4, 6, 8, 10, 11, 12
V_ONE, V_ACC, V_OUT, V_PK, V_F = 28, 32, 48, 64, 72
GROUP_END = [int(x) for x in os.environ.get("GRP", "0,1,2,3,4,6,9,13,18,25,34,46,63").split(",")]


def ring(r):
    return ["s_add_u32 s%d, s%d, 32768" % (r, r), "s_cmp_ge_u32 s%d, %d" % (r, LDS_END), "s_cselect_b32 s%d, %d, 0" % (T0, LDS_END), "s_sub_u32 s%d, s%d, s%d" % (r, r, T0)]


def get_polarity(a, vpol, vt):
    I = a.I
    lp, lok = a.uid("L_pp"), a.uid("L_pok")
    I("s_mov_b32 s%d, 0" % T2)
    a.L(lp)
    I("v_readfirstlane_b32 s%d, v%d" % (S_POL, vpol))
    I("s_and_b32 s%d, s%d, 0xff" % (T0, S_POL))
    I("s_cmp_ge_u32 s%d, 15" % T0)
    I("s_cbranch_scc1 %s" % lok)
    I("v_mov_b32 v%d, %d" % (vt, D_CAL * 4))
    I("global_load_dword v%d, v%d, s[%d:%d] sc1" % (vpol, vt, ptr(D_DBG), ptr(D_DBG) + 1))
    I("s_add_u32 s%d, s%d, 1" % (T2, T2))
    I("s_cmp_gt_u32 s%d, 0x%x" % (T2, SPIN_LIMIT))
    I("s_cbranch_scc1 %s" % G.ABORT[0])
    I("s_waitcnt vmcnt(0)")
    I("s_branch %s" % lp)
    a.L(lok)
    I("s_cmp_ge_u32 s%d, 0x800" % S_POL)
    I("s_cselect_b32 s%d, 0x2000, 0" % S_POL)


def xdma():
    return [("s_add_u32 m0, s%d, %d" % (S_M, st * (4096 - 128)), "buffer_load_dwordx4 v%d, %s, s%d offen offset:%d lds" % (V_DX, srd_s(SX), S_XO, st * 128)) for st in range(8)]


XADV = ["s_add_u32 s%d, s%d, 1024" % (S_XO, S_XO), "s_bitcmp1_b32 s%d, 11" % S_XO, "s_cselect_b32 s%d, 0x%x, 0" % (T0, 65536 - 2048), "s_add_u32 s%d, s%d, s%d" % (S_XO, S_XO, T0)]


ROLE = [None]


def calibrate(a, s_id, s_far, T0, B):
    T1, T2, T3 = T0 + 1, T0 + 2, T0 + 3
    import re
    I = lambda l: a.I(re.sub(r'@(\d)', lambda m: str(B + int(m.group(1))), l))
    I("s_lshl_b32 s%d, s%d, 14" % (T0, s_id))
    I("s_add_u32 s%d, s%d, 0x%x" % (T0, T0, X_CAL))
    I("s_add_u32 s@0, s%d, s%d" % (ptr(D_WS), T0))
    I("s_addc_u32 s@1, s%d, 0" % (ptr(D_WS) + 1))
    I("s_mov_b32 s%d, 0" % T0)
    I("s_atomic_or s%d, s[@0:@1], 0" % T0)
    I("s_atomic_or s%d, s[@0:@1], 0x2000" % T0)
    I("s_waitcnt lgkmcnt(0)")
    I("s_mov_b32 s%d, -1" % T1)
    I("s_mov_b32 s%d, -1" % T2)
    for rep in range(4):
        I("s_memtime s[@2:@3]")
        I("s_atomic_or s%d, s[@0:@1], 0" % T0)
        I("s_waitcnt lgkmcnt(0)")
        I("s_memtime s[@4:@5]")
        I("s_atomic_or s%d, s[@0:@1], 0x2000" % T0)
        I("s_waitcnt lgkmcnt(0)")
        I("s_sub_u32 s%d, s@4, s@2" % T3)
        I("s_memtime s[@2:@3]")
        I("s_min_u32 s%d, s%d, s%d" % (T1, T1, T3))
        I("s_waitcnt lgkmcnt(0)")
        I("s_sub_u32 s%d, s@2, s@4" % T3)
        I("s_min_u32 s%d, s%d, s%d" % (T2, T2, T3))
    I("s_cmp_lt_u32 s%d, s%d" % (T2, T1))
    I("s_cselect_b32 s%d, %s" % (T0, "1, 0x101" if s_far else "0x101, 1"))
    I("s_atomic_add s%d, s[%d:%d], %d" % (T0, ptr(D_DBG), ptr(D_DBG) + 1, D_CAL * 4))
    I("s_waitcnt lgkmcnt(0)")


def wload_setup(a, lg, split, pol):
    I = a.I
    t0, t1 = 24, 25
    I("v_bfe_u32 v%d, v0, 4, 3" % t0)
    I("v_lshlrev_b32 v%d, 1, v%d" % (t0, t0))
    I("v_and_b32 v%d, 15, v0" % t1)
    I("v_xor_b32 v%d, v%d, v%d" % (t0, t0, t1))
    I("v_lshlrev_b32 v%d, 4, v%d" % (V_DW, t0))
    for bit, n, sh in ((4, 2, 0), (6, 1, 2 if split else 3), (7, 1, 4 if split else 2)):
        I("v_bfe_u32 v%d, v0, %d, %d" % (t0, bit, n))
        I("v_lshl_add_u32 v%d, v%d, %d, v%d" % (V_DW, t0, lg + sh, V_DW))
    I("s_and_b32 s%d, s%d, 1" % (T0, S_WV))
    I("s_lshl_b32 s%d, s%d, 11" % (T1, T0))
    I("s_lshr_b32 s%d, s%d, 1" % (T0, S_WV))
    I("s_lshl_b32 s%d, s%d, 10" % (T0, T0))
    I("s_add_u32 s32, s%d, s%d" % (T0, T1))

    def wunit(u, slot=None):
        for m in range(8):
            row = 32 * (m >> 1) + 8 * (m & 1) if split else 16 * m
            I("s_add_u32 m0, s32, %d" % ((u % 5 if slot is None else slot) * 32768 + m * 4096))
            I("s_add_u32 s%d, s%d, 0x%x" % (T1, S_WO, (u * 128 + row) << lg))
            I("buffer_load_dwordx4 v%d, %s, s%d offen%s lds" % (V_DW, srd_s(SW), T1, pol))
    return wunit


def wread_setup(a, s_tx=None):
    I = a.I
    t0, t1 = 24, 25
    I("v_bfe_u32 v%d, v0, 2, 3" % t0)
    I("v_lshrrev_b32 v%d, 6, v0" % t1)
    I("v_lshlrev_b32 v%d, 1, v%d" % (t1, t1))
    I("v_xor_b32 v%d, v%d, v%d" % (t0, t0, t1))
    I("v_lshlrev_b32 v%d, 5, v%d" % (V_RW, t0))
    for bit, n, sh in ((0, 2, 3), (2, 2, 8), (4, 2, 11)):
        I("v_bfe_u32 v%d, v0, %d, %d" % (t0, bit, n))
        I("v_lshl_add_u32 v%d, v%d, %d, v%d" % (V_RW, t0, sh, V_RW))
    if s_tx is not None:
        I("v_xor_b32 v%d, s%d, v%d" % (V_RW, s_tx, V_RW))
    I("v_xor_b32 v%d, 32, v%d" % (V_RW + 1, V_RW))


def wo_setup(a, s_rank):
    I = a.I
    a.srd(SW, ptr(B_WO), 0, 8 * MB)
    I("s_lshr_b32 s%d, s%d, 3" % (T0, s_rank))
    I("s_lshl_b32 s%d, s%d, 21" % (S_WO, T0))
    I("s_and_b32 s%d, s%d, 7" % (T0, s_rank))
    I("s_lshl_b32 s%d, s%d, 8" % (T0, T0))
    I("s_add_u32 s%d, s%d, s%d" % (S_WO, S_WO, T0))
    return wload_setup(a, 11, True, " nt" * int(os.environ.get("SEGNT", "1")))


WPF = int(os.environ.get("WPF", "1"))
WPF0 = 46


def wread(a, u, slot=None, d=None):
    I = a.I
    if slot is None:
        slot = u % 5
        d = {2: 65536, 4: 65536, 5: -131072, 7: 65536}.get(u)
    if d:
        for t in range(2):
            I("v_add_u32 v%d, 0x%x, v%d" % (V_RW + t, d & 0xffffffff, V_RW + t))
    for ks in range(4):
        for t in range(2):
            d = ((u * 4 + ks) * 2 + t) * 4
            for hf in range(2):
                I("ds_read_b64_tr_b16 a[%d:%d], v%d offset:%d" % (d + 2 * hf, d + 2 * hf + 1, V_RW + t, (slot & 1) * 32768 + ks * 8192 + hf * 1024))
        if ks == 1:
            I("s_waitcnt lgkmcnt(0)")
    I("s_waitcnt lgkmcnt(0)")


def program(a, st):
    I = a.I
    t0, t1 = 24, 25
    a.L("kvs_start")
    I("s_cmp_eq_u32 s%d, 3" % S_XW)
    I("s_cselect_b64 s[%d:%d], s[%d:%d], s[%d:%d]" % (SW, SW + 1, ptr(B_WV), ptr(B_WV) + 1, ptr(B_WK), ptr(B_WK) + 1))
    I("s_cmp_eq_u32 s%d, 1" % S_XW)
    I("s_cselect_b64 s[%d:%d], s[%d:%d], s[%d:%d]" % (SW, SW + 1, ptr(B_WQ), ptr(B_WQ) + 1, SW, SW + 1))
    I("s_and_b32 s%d, s%d, 0xffff" % (SW + 1, SW + 1))
    I("s_mov_b32 s%d, 0x%x" % (SW + 2, 8 * MB))
    I("s_mov_b32 s%d, 0x00020000" % (SW + 3))
    I("s_lshl_b32 s%d, s%d, 8" % (S_WO, S_RK))
    wunit = wload_setup(a, 13, False, " nt")
    wunit(0)
    a.srd(SX, ptr(B_X), 0, 4 * MB)
    a.srd(SO, ptr(D_WS), 0, X_PXF + 64 * MB)
    I("v_and_b32 v%d, 63, v0" % t0)
    I("v_lshlrev_b32 v%d, 4, v%d" % (V_LIN, t0))
    I("v_add_u32 v%d, 4096, v%d" % (V_L4, V_LIN))
    I("v_lshlrev_b32 v%d, 7, v%d" % (V_TCH, t0))
    I("s_lshl_b32 s%d, s%d, 13" % (S_TO, S_RK))
    wunit(1)
    I("v_bfe_u32 v%d, v0, 4, 3" % t0)
    I("v_and_b32 v%d, 7, v0" % t1)
    I("v_xor_b32 v%d, v%d, v%d" % (t0, t0, t1))
    I("v_lshlrev_b32 v%d, 4, v%d" % (V_DX, t0))
    I("v_lshrrev_b32 v%d, 3, v0" % t0)
    I("v_lshl_add_u32 v%d, v%d, 11, v%d" % (V_DX, t0, V_DX))
    I("v_bfe_u32 v%d, v0, 1, 3" % t0)
    I("v_bfe_u32 v%d, v0, 4, 2" % t1)
    I("v_xor_b32 v%d, v%d, v%d" % (t0, t0, t1))
    I("v_lshlrev_b32 v%d, 4, v%d" % (V_RX, t0))
    I("v_and_b32 v%d, 15, v0" % t1)
    I("v_lshl_add_u32 v%d, v%d, 7, v%d" % (V_RX, t1, V_RX))
    I("v_add_u32 v%d, %d, v%d" % (V_RX, 3 * 32768, V_RX))
    I("v_xor_b32 v%d, 64, v%d" % (V_RX + 1, V_RX))
    wunit(2)
    wread_setup(a)
    for i in range(4):
        I("v_mov_b32 v%d, -1" % (V_ONE + i))
    I("s_lshl_b32 s%d, s%d, 10" % (S_M, S_WV))
    I("s_add_u32 s%d, s%d, %d" % (S_M, S_M, 3 * 32768))
    I("s_mov_b32 s%d, %d" % (S_R, 3 * 32768))
    I("s_mov_b32 s%d, 0" % S_XO)
    I("s_mov_b32 s%d, 32768" % S_C32)
    wunit(3)
    I("s_lshl_b32 s%d, s%d, 16" % (S_KB, S_RK))
    I("s_cmp_eq_u32 s%d, 3" % S_XW)
    I("s_cselect_b32 s%d, 11, 10" % T0)
    I("s_cselect_b32 s%d, 0x4000, 0" % T1)
    I("s_lshl_b32 s%d, s%d, s%d" % (T0, S_WV, T0))
    I("s_add_u32 s%d, s%d, s%d" % (S_KB, S_KB, T0))
    I("s_add_u32 s%d, s%d, s%d" % (S_KB, S_KB, T1))
    I("s_lshr_b32 s%d, s%d, 1" % (S_PB, S_RK))
    I("s_lshl_b32 s%d, s%d, 14" % (S_PB, S_PB))
    I("s_and_b32 s%d, s%d, 1" % (T1, S_RK))
    I("s_lshl2_add_u32 s%d, s%d, s%d" % (T0, T1, S_WV))
    I("s_lshl_b32 s%d, s%d, 10" % (T0, T0))
    I("s_add_u32 s%d, s%d, s%d" % (S_PB, S_PB, T0))
    I("s_mov_b32 s%d, 0x%x" % (T1, X_PXF + 64 * MB))
    I("s_cmp_eq_u32 s%d, 1" % S_XW)
    I("s_cmov_b32 s%d, 0x%x" % (T1, X_PXF))
    I("s_add_u32 s%d, s%d, s%d" % (S_PB, S_PB, T1))
    I("s_cmp_eq_u32 s%d, 1" % S_XW)
    I("s_cselect_b32 s%d, 0x8000, 0" % T0)
    I("s_add_u32 s%d, s%d, s%d" % (S_KB, S_KB, T0))
    wunit(4)
    for u in range(8):
        I("s_waitcnt vmcnt(%d)" % (32 if u == 0 else 24))
        I("s_barrier")
        if u == 0:
            st(1)
        if u >= 1:
            if u + 4 < 8:
                wunit(u + 4)
            elif u < 7:
                for m, l in xdma():
                    I(m)
                    I("s_nop 0")
                    I(l)
                for l in XADV + ring(S_M):
                    I(l)
        if u == int(os.environ.get("XTU", "2")):
            I("s_and_b32 s%d, s%d, 1" % (T0, S_WV))
            I("s_lshl_b32 s%d, s%d, 18" % (T0, T0))
            I("s_add_u32 s%d, s%d, s%d" % (T0, T0, S_TO))
            I("buffer_load_dword v13, v%d, %s, s%d offen%s" % (V_TCH, srd_s(SX), T0, " nt" * int(os.environ.get("XNT0", "0"))))
            I("s_add_u32 s%d, s%d, 0x80000" % (S_TO, S_TO))
        if u == 3:
            I("v_mov_b32 v%d, %d" % (t0, D_CAL * 4))
            I("global_load_dword v%d, v%d, s[%d:%d] sc1" % (V_POLV, t0, ptr(D_DBG), ptr(D_DBG) + 1))
        if u == 3:
            ROLE[1](a, (S_XW, 4), S_WV, T0, G.ABORT[0])
        if u == 7:
            st(4)
            ROLE[0](a, S_RK, "kvs_start", S_WV, 32768, T0, t0)
        wread(a, u)
    I("s_waitcnt vmcnt(16)")
    I("s_barrier")
    st(5)
    get_polarity(a, V_POLV, t0)
    I("s_xor_b32 s%d, s%d, s%d" % (S_PB, S_PB, S_POL))
    I("s_xor_b32 s%d, s%d, s%d" % (S_KB, S_KB, S_POL))
    if WPF:
        I("s_xor_b32 s%d, s%d, 2" % (T3, S_RK))
        wo_setup(a, T3)
    I("s_mov_b32 s%d, 0" % S_SEG)
    I("s_mov_b32 s%d, 0" % (SO + 2))
    st(2)
    lv, le = a.uid("L_kvv"), a.uid("L_kve")
    I("s_cmp_eq_u32 s%d, 3" % S_XW)
    I("s_cbranch_scc1 %s" % lv)
    stream(a, 'k', le, st)
    a.L(lv)
    stream(a, 'v', le, st)
    a.L(le)
    st(3)


def stream(a, kind, end, st):
    I = a.I
    nm = "kvs" + kind
    D = 3
    rd = lambda ks, tau: "ds_read_b128 v[%d:%d], v%d offset:%d" % (V_F + (ks & 3) * 8 + tau * 4, V_F + (ks & 3) * 8 + tau * 4 + 3, V_RX + (ks & 1), ((ks & 15) >> 1) * 4096 + tau * 2048)
    idx = (lambda tau, t: tau * 2 + t) if kind == 'k' else (lambda tau, t: t * 2 + tau)
    cvt = ["v_cvt_pk_bf16_f32 v%d, v%d, v%d" % (V_PK + i, V_OUT + 2 * i, V_OUT + 2 * i + 1) for i in range(8)]
    addr = ["s_lshl_b32 s%d, s%d, 21" % (S_KO, S_SEG), "s_lshl_b32 s%d, s%d, 13" % (T2, S_SEG), "s_and_b32 s%d, s%d, 0x2000" % (T2, T2),
            "s_xor_b32 s%d, s%d, s%d" % (T2, T2, S_KB), "s_add_u32 s%d, s%d, s%d" % (S_KO, S_KO, T2),
            "s_lshl_b32 s%d, s%d, 18" % (S_PO, S_SEG), "s_lshl_b32 s%d, s%d, 10" % (T2, S_SEG), "s_and_b32 s%d, s%d, 0x2000" % (T2, T2),
            "s_xor_b32 s%d, s%d, s%d" % (T2, T2, S_PB), "s_add_u32 s%d, s%d, s%d" % (S_PO, S_PO, T2)]
    stores = ["buffer_store_dwordx4 v[%d:%d], v%d, %s, s%d offen sc1" % (V_PK, V_PK + 3, V_LIN, srd_s(SO), S_KO),
              "buffer_store_dwordx4 v[%d:%d], v%d, %s, s%d offen%s sc1" % (V_PK + 4, V_PK + 7, V_L4 if kind == 'k' else V_LIN, srd_s(SO), S_KO, "" if kind == 'k' else " offset:1024"),
              "buffer_store_dwordx4 v[%d:%d], v%d, %s, s%d offen sc1" % (V_ONE, V_ONE + 3, V_LIN, srd_s(SO), S_PO)]
    radv = [["s_cmp_ge_u32 s%d, %d" % (S_R, LDS_END - 32768), "s_cselect_b32 s%d, 0x%x, s%d" % (S_D, (-131072) & 0xffffffff, S_C32), "s_add_u32 s%d, s%d, s%d" % (S_R, S_R, S_D)],
            ["v_add_u32 v%d, s%d, v%d" % (V_RX, S_D, V_RX)], ["v_add_u32 v%d, s%d, v%d" % (V_RX + 1, S_D, V_RX + 1)]]
    for ks in range(D):
        for tau in range(2):
            I(rd(ks, tau))
    items = []
    add = lambda s, ls, at=False: items.append((s, ls, at))
    E = lambda k, d: int(os.environ.get(k, str(d)))
    add(3, cvt)
    for i, l in enumerate(stores):
        add(E("KST0", 8) + E("KSTD", 2) * i, [l + " #st"])
    add(15, ["buffer_load_dword v13, v%d, %s, s%d offen%s" % (V_TCH, srd_s(SX), S_TC, " nt" * E("XNT", 0))])
    mg = sum(1 << g for g in GROUP_END if 3 <= g < 63)
    mk = mg | (1 << 62) | ((0xffff << (WPF0 - 2)) if WPF else 0)
    add(18, ["s_mov_b32 s%d, 0x%x" % (SO + 2, X_PXF + 64 * MB)] + addr + radv[0] +
        ["s_add_u32 s%d, s%d, 0x10000" % (S_TO, S_TO), "s_andn2_b32 s%d, 3, s%d" % (T1, S_SEG), "s_or_b32 s%d, s%d, s%d" % (T1, T1, S_WV),
         "s_cselect_b32 s%d, 0x400000, s%d" % (S_TC, S_TO), "s_cmp_lt_u32 s%d, 4" % S_SEG, "s_cselect_b64 vcc, -1, 0"])
    d0, dd = E("KD0", 40), E("KDD", 5)
    for un in range(2):
        for q, (m, l) in enumerate(xdma()):
            add(d0 + dd * (8 * un + q), [m, l + (" #" + "ab"[un] if q == 7 else "")] + (XADV + ring(S_M) if q == 7 else []))
        add(un * 64 + 4 * (14 - D) + 1.5, radv[1], True)
        add(un * 64 + 4 * (15 - D) + 1.5, radv[2], True)
    add(62, radv[0])
    add(124, ["s_add_u32 s%d, s%d, 1" % (S_SEG, S_SEG), "s_sub_u32 s%d, s%d, 2" % (T1, S_SEG), "s_bitcmp1_b64 s[%d:%d], s%d" % (S_MK, S_MK + 1, T1)])
    items = [(int(s + 0.5), ls, at) for s, ls, at in sorted(items, key=lambda it: it[0])]
    fill = place(items, [(1, 1, 2, 1)[i & 3] for i in range(120)] + [2] * 8)
    for kk in fill:
        assert radv[1][0] not in fill[kk] or 46 <= kk % 64 < 52
        assert radv[2][0] not in fill[kk] or 50 <= kk % 64 < 56
    late_a = min(kk for kk in fill if any(l.endswith("#a") for l in fill[kk])) >= 52
    late_b = min(kk for kk in fill if any(l.endswith("#b") for l in fill[kk])) >= 116
    I("s_mov_b32 s%d, 0x%x" % (S_MK, mk & 0xffffffff))
    I("s_mov_b32 s%d, 0x%x" % (S_MK + 1, (mk >> 32) & 0x7fffffff))
    I("s_cmp_eq_u32 s%d, 0" % S_WV)
    I("s_cselect_b32 s%d, s%d, 0x400000" % (S_TC, S_TO))
    I("s_mov_b32 s%d, 0" % S_KO)
    I("s_mov_b32 s%d, 0" % S_PO)
    early = []

    def body(v):
        for ks in range(32):
            if ks == 16 - D:
                v.I("@wait %s" % ("a" if late_a else "a<"))
                v.I("s_cbranch_vccnz %s_early" % nm)
                early.append(len(v.seq) - 1 - max(i for i, t in enumerate(v.seq) if t == "st"))
                v.I("s_barrier")
                v.I(nm + "_mid:")
            if ks == 32 - D:
                v.I("@wait %s st" % ("b" if late_b else "b<"))
                v.I("s_barrier")
            v.I("s_waitcnt lgkmcnt(%d)" % (2 * D - 2))
            k = 0
            for tau, t in ((0, 0), (0, 1), (1, 1), (1, 0)):
                c = V_ACC + idx(tau, t) * 4
                d = V_OUT + idx(tau, t) * 4 if ks == 31 else c
                w, x = "a[%d:%d]" % ((ks * 2 + t) * 4, (ks * 2 + t) * 4 + 3), "v[%d:%d]" % (V_F + (ks & 3) * 8 + tau * 4, V_F + (ks & 3) * 8 + tau * 4 + 3)
                v.I("v_mfma_f32_16x16x32_bf16 v[%d:%d], %s, %s, %s" % (d, d + 3, w if kind == 'k' else x, x if kind == 'k' else w, "0" if ks == 0 else "v[%d:%d]" % (c, c + 3)))
                if k < 2:
                    v.I(rd(ks + D, k))
                for l in fill.get(ks * 4 + k, []):
                    v.I(l)
                k += 1
    v0 = VM(Asm())
    body(v0)
    a.L(nm)
    body(VM(a, v0.seq))
    I("s_cbranch_scc0 %s" % nm)
    I("s_cmp_eq_u32 s%d, 64" % S_SEG)
    I("s_cbranch_scc1 %s_fin" % nm)
    if WPF:
        def pick(lo, n):
            if n == 1:
                for i in (2 * lo, 2 * lo + 1):
                    u, m = i >> 3, i & 7
                    I("s_add_u32 s%d, s%d, 0x%x" % (T2, S_WO, (u * 128 + 32 * (m >> 1) + 8 * (m & 1)) << 11))
                    I("buffer_load_dwordx4 v[%d:%d], v%d, %s, s%d offen nt" % (128 + 4 * i, 131 + 4 * i, V_DW, srd_s(SW), T2))
                I("s_branch %s_sig" % nm)
                return
            lab = a.uid("L_wp")
            I("s_cmp_ge_u32 s%d, %d" % (S_SEG, WPF0 + lo + n // 2))
            I("s_cbranch_scc1 %s" % lab)
            pick(lo, n // 2)
            a.L(lab)
            pick(lo + n // 2, n // 2)
        I("s_sub_u32 s%d, s%d, %d" % (T2, S_SEG, WPF0))
        I("s_cmp_ge_u32 s%d, 16" % T2)
        I("s_cbranch_scc1 %s_sig" % nm)
        pick(0, 16)
    a.L(nm + "_sig")
    I("s_cmp_lg_u32 s%d, 0" % S_WV)
    I("s_cbranch_scc1 %s" % nm)
    I("s_mov_b32 s%d, 0x%x" % (T2, mg & 0xffffffff))
    I("s_mov_b32 s%d, 0x%x" % (T3, mg >> 32))
    I("s_bitcmp1_b64 s[%d:%d], s%d" % (T2, T3, T1))
    I("s_cbranch_scc0 %s" % nm)
    group_word(a, T1, T0)
    signal_lines(a, T0)
    I("s_branch %s" % nm)
    a.L(nm + "_early")
    I("s_waitcnt vmcnt(%d)" % early[0])
    I("s_barrier")
    I("s_cmp_eq_u32 s%d, 0" % S_SEG)
    I("s_cbranch_scc1 %s_mid" % nm)
    I("s_cmp_lg_u32 s%d, 0" % S_WV)
    I("s_cbranch_scc1 %s_mid" % nm)
    I("s_lshl_b32 s%d, s%d, 2" % (T0, S_SEG))
    I("s_add_u32 s%d, s%d, %d" % (T0, T0, D_EV * 4 - 4))
    signal_lines(a, T0)
    if int(os.environ.get("WT", "0")):
        I("s_cmp_lg_u32 s%d, 1" % S_SEG)
        I("s_cbranch_scc1 %s_mid" % nm)
        st(6)
    I("s_branch %s_mid" % nm)
    a.L(nm + "_fin")
    for l in ["s_nop 7"] + cvt + stores:
        I(l)
    I("s_waitcnt vmcnt(0) lgkmcnt(0)")
    I("s_barrier")
    I("s_cmp_lg_u32 s%d, 0" % S_WV)
    I("s_cbranch_scc1 %s" % end)
    I("s_mov_b32 s%d, %d" % (T0, (D_EV + len(GROUP_END) - 1) * 4))
    signal_lines(a, T0)
    I("s_branch %s" % end)


def group_word(a, s_seg, d, p0=T2):
    I = a.I
    m = sum(1 << g for g in GROUP_END)
    I("s_bfm_b64 s[%d:%d], s%d, 0" % (p0, p0 + 1, s_seg))
    I("s_and_b32 s%d, s%d, 0x%x" % (p0, p0, m & 0xffffffff))
    I("s_and_b32 s%d, s%d, 0x%x" % (p0 + 1, p0 + 1, m >> 32))
    I("s_bcnt1_i32_b64 s%d, s[%d:%d]" % (d, p0, p0 + 1))
    I("s_lshl_b32 s%d, s%d, 2" % (d, d))
    I("s_add_u32 s%d, s%d, %d" % (d, d, D_EV * 4))
```

```python
from asmlib import *
from L2 import *
import gemm2 as G
from gemm2 import S_XW, S_RK, S_WV, S_POL, T0, T1, T2, T3, srd_s, SPIN_LIMIT, LDS_END
import kvs
import os

E = lambda k, d: int(os.environ.get(k, str(d)))
PTH = E("PTH", 15)
PFIRST = [int(x) for x in os.environ.get("PFIRST", "%d,0,1,2" % (PTH + 3)).split(",")]
PCNT = [int(x) for x in os.environ.get("PCNT", "10,16,16,15").split(",")]
TLIST = [[int(y) for y in x.split(",") if y] for x in os.environ.get("TLIST", "60;57,61;59,63;58,62").split(";")]


def plist(x):
    out, s = [], PFIRST[x]
    for i in range(PCNT[x]):
        out.append(s)
        s += 3 if s < PTH else 4
    return out


assert sorted(sum([plist(x) for x in range(4)] + TLIST, [])) == list(range(64))
SWS, SOUT = 8, 16
W = srd_s(SWS)
S_M, S_R, S_D, S_OA, S_PS, S_OUTO, S_TICK, S_FL = 20, 21, 22, 23, 24, 25, 26, 27
S_C32, S_SPIN, S_HB, S_SEG, S_NEED, S_LASTS, S_TL, S_TA, S_TD, S_CNT, S_FIN = 29, 30, 31, 33, 34, 35, 36, 37, 38, 39, 40
S_NX, S_HIST = 41, 42
V_LIN, V_L4, V_RO, V_TCH, V_OA, V_PA, V_PT, V_PV, V_PS, V_PL, V_Z, V_TK = 1, 2, 4, 10, 15, 16, 18, 19, 20, 23, 11, 12
V_ACC, V_OUT, V_H, V_F, V_RL = 32, 48, 64, 72, 104


def o_dma(tag):
    out = []
    for hf in range(2):
        out += ["s_add_u32 m0, s%d, %d" % (S_M, hf * 4096), "s_nop 0"]
        out += ["buffer_load_dwordx4 v%d, %s, s%d offen offset:%d lds #%s" % ((V_LIN, V_L4)[hf], W, S_OA, i * 1024, tag if hf and i == 3 else "d") for i in range(4)]
    return out


def seg_addr(s, d=S_OA):
    return ["s_lshl_b32 s%d, s%d, 13" % (T1, s), "s_and_b32 s%d, s%d, 0x2000" % (T1, T1), "s_xor_b32 s%d, s%d, s%d" % (T1, T1, S_HB),
            "s_lshl_b32 s%d, s%d, 21" % (d, s), "s_add_u32 s%d, s%d, s%d" % (d, d, T1),
            "s_cmp_gt_u32 s%d, s%d" % (s, S_LASTS), "s_cselect_b32 s%d, 0x%x, s%d" % (d, WS_END, d)]


HALF2 = ["s_add_u32 s%d, s%d, 0x40000" % (S_OA, S_OA)]
PST = ["buffer_store_dwordx4 v[%d:%d], v%d, %s, s%d offen #pst" % (V_OUT + 4 * e, V_OUT + 4 * e + 3, V_PS + e, W, S_PS) for e in range(3)]
RED = ["buffer_load_dwordx4 v[%d:%d], v%d, %s, s%d offen offset:%d sc1 #red" % (V_RL + 4 * e, V_RL + 4 * e + 3, V_PL, W, S_PS, e * 1024) for e in range(3)]


def red_fin(hold):
    r = V_RL
    pa = lambda d, x, y: "v_pk_add_f32 v[%d:%d], v[%d:%d], v[%d:%d]" % (d, d + 1, x, x + 1, y, y + 1)
    o = [pa(r, r, hold), pa(r + 2, r + 2, hold + 2), pa(r + 4, r + 4, r + 8), pa(r + 6, r + 6, r + 10), pa(r, r, r + 4), pa(r + 2, r + 2, r + 6)]
    o += ["v_cvt_pk_bf16_f32 v%d, 0, v%d" % (r + i, r + i) for i in range(4)]
    o += ["buffer_store_dwordx4 v[%d:%d], v%d, %s, s%d offen%s #out" % (r, r + 3, V_OA, srd_s(SOUT), S_OUTO, ("", " nt", " sc1")[E("ONT", 0)])]
    return o


PUBLISH = ["s_add_u32 s%d, s%d, 1" % (S_TICK, S_TICK), "v_mov_b32 v%d, s%d" % (V_TK, S_TICK),
           "buffer_store_dword v%d, v%d, %s, s%d offen #fl" % (V_TK, V_Z, W, S_FL)]
POLL = "global_load_dword v%d, v[%d:%d], off sc1 #poll" % (V_PV, V_PA, V_PA + 1)
TARGETS = ["v_mov_b32 v%d, s%d" % (V_PT, S_TICK), "v_writelane_b32 v%d, s%d, 32" % (V_PT, S_NEED), "v_writelane_b32 v%d, s%d, 33" % (V_PT, S_FIN)]


def poll_loop(a, sleep=1):
    I = a.I
    lp, ok = a.uid("L_sp"), a.uid("L_spok")
    a.L(lp)
    I(POLL.split(" #")[0])
    I("s_add_u32 s%d, s%d, 1" % (S_SPIN, S_SPIN))
    I("s_cmp_gt_u32 s%d, 0x%x" % (S_SPIN, SPIN_LIMIT))
    I("s_cbranch_scc1 %s" % G.ABORT[0])
    I("s_waitcnt vmcnt(0)")
    I("v_cmp_lt_u32 vcc, v%d, v%d" % (V_PV, V_PT))
    I("s_cbranch_vccz %s" % ok)
    if sleep:
        I("s_sleep %d" % sleep)
    I("s_branch %s" % lp)
    a.L(ok)


D = 3


def rd(ks, tl, lin=False):
    o = (ks >> 2) * 8192 if lin else ((ks & 15) >> 2) * 8192
    return "ds_read_b128 v[%d:%d], v%d offset:%d" % (V_F + (ks & 3) * 8 + tl * 4, V_F + (ks & 3) * 8 + tl * 4 + 3, V_RO + tl, o + (ks & 3) * 1024)


def op_body(v, fill, bars, cyc):
    for ks in range(32):
        for l in bars.get(ks, []):
            v.I(l)
        v.I("s_waitcnt lgkmcnt(%d)" % (2 * D - 2 if cyc else min(2 * D - 2, 2 * (31 - ks))))
        k = 0
        for tl, t in ((0, 0), (0, 1), (1, 1), (1, 0)):
            c = V_ACC + (tl * 2 + t) * 4
            d = V_OUT + (tl * 2 + t) * 4 if ks == 31 else c
            w = (ks * 2 + t) * 4
            x = V_F + (ks & 3) * 8 + tl * 4
            v.I("v_mfma_f32_16x16x32_bf16 v[%d:%d], a[%d:%d], v[%d:%d], %s" % (d, d + 3, w, w + 3, x, x + 3, "0" if ks == 0 else "v[%d:%d]" % (c, c + 3)))
            if k < 2 and (cyc or ks + D < 32):
                v.I(rd(ks + D, k, not cyc))
            for l in fill.get(ks * 4 + k, []):
                v.I(l)
            k += 1


def table(a, d, vals, bits=8):
    a.I("s_mul_i32 s%d, s%d, %d" % (d, S_XW, bits))
    a.I("s_lshr_b32 s%d, 0x%x, s%d" % (d, sum(x << (bits * i) for i, x in enumerate(vals)), d))
    a.I("s_and_b32 s%d, s%d, %d" % (d, d, (1 << bits) - 1))


def ring_reset(a):
    I = a.I
    I("s_lshl_b32 s%d, s%d, 13" % (S_M, S_WV))
    I("s_mov_b32 s%d, 0" % S_R)
    I("s_lshr_b32 s%d, s%d, 4" % (T0, S_RK))
    I("s_lshl_b32 s%d, s%d, 12" % (T0, T0))
    I("v_add_u32 v%d, s%d, v%d" % (V_RO + 1, T0, V_LIN))
    I("v_xor_b32 v%d, 4096, v%d" % (V_RO, V_RO + 1))


def setup(a):
    I = a.I
    t0, t1 = 24, 25
    a.srd(SWS, ptr(D_WS), 0, WS_END)
    a.srd(SOUT, ptr(D_OUT), 0, 16 * MB)
    I("v_and_b32 v%d, 63, v0" % t0)
    I("v_lshlrev_b32 v%d, 4, v%d" % (V_LIN, t0))
    I("v_add_u32 v%d, 4096, v%d" % (V_L4, V_LIN))
    I("v_lshlrev_b32 v%d, 7, v%d" % (V_TCH, t0))
    I("v_mov_b32 v%d, 0" % V_Z)
    I("s_lshl_b32 s%d, s%d, 8" % (T0, S_XW))
    I("s_add_u32 s%d, s%d, 0x%x" % (T0, T0, X_SF))
    I("s_lshl2_add_u32 s%d, s%d, s%d" % (S_FL, S_RK, T0))
    I("s_and_b32 s%d, s%d, 7" % (S_TD, S_RK))
    I("s_lshl_b32 s%d, s%d, 16" % (S_TD, S_TD))
    I("s_cmp_eq_u32 s%d, 0" % S_WV)
    I("s_cselect_b32 s%d, s%d, 0x%x" % (S_FL, S_FL, WS_END))
    I("s_cselect_b32 s%d, s%d, 0x%x" % (S_TD, S_TD, WS_END))
    I("s_add_u32 s%d, s%d, s%d" % (T0, T0, ptr(D_WS)))
    I("s_addc_u32 s%d, s%d, 0" % (T1, ptr(D_WS) + 1))
    I("v_and_b32 v%d, 31, v0" % t1)
    I("v_lshlrev_b32 v%d, 2, v%d" % (t1, t1))
    I("v_add_u32 v%d, s%d, v%d" % (V_PA, T0, t1))
    I("v_mov_b32 v%d, s%d" % (V_PA + 1, T1))
    I("s_add_u32 s%d, s%d, %d" % (T0, ptr(D_DBG), D_PROG * 4))
    I("s_addc_u32 s%d, s%d, 0" % (T1, ptr(D_DBG) + 1))
    I("v_writelane_b32 v%d, s%d, 32" % (V_PA, T0))
    I("v_writelane_b32 v%d, s%d, 32" % (V_PA + 1, T1))
    for r in (S_TICK, S_SPIN, S_FIN):
        I("s_mov_b32 s%d, 0" % r)
    I("s_mov_b32 s%d, 32768" % S_C32)
    I("v_and_b32 v%d, 15, v0" % t0)
    I("v_lshlrev_b32 v%d, 13, v%d" % (V_OA, t0))
    I("v_bfe_u32 v%d, v0, 4, 2" % t0)
    I("v_lshl_add_u32 v%d, v%d, 4, v%d" % (V_OA, t0, V_OA))
    I("s_lshr_b32 s%d, s%d, 4" % (T0, S_RK))
    I("s_lshl_b32 s%d, s%d, 17" % (T0, T0))
    I("s_and_b32 s%d, s%d, 7" % (T1, S_RK))
    I("s_lshl_b32 s%d, s%d, 9" % (T1, T1))
    I("s_add_u32 s%d, s%d, s%d" % (T0, T0, T1))
    I("s_lshl_b32 s%d, s%d, 7" % (T1, S_WV))
    I("s_add_u32 s%d, s%d, s%d" % (T0, T0, T1))
    I("s_and_b32 s%d, s%d, 8" % (T1, S_RK))
    I("s_lshl_b32 s%d, s%d, 3" % (T1, T1))
    I("s_add_u32 s%d, s%d, s%d" % (T0, T0, T1))
    I("s_add_u32 s%d, s%d, 4096" % (T0, T0))
    I("v_add_u32 v%d, s%d, v%d" % (V_OA, T0, V_OA))
    I("s_lshl_b32 s%d, s%d, 12" % (T1, S_WV))
    for e in range(4):
        I("s_xor_b32 s%d, s%d, %d" % (T0, S_RK, (e ^ 3) << 3))
        I("s_lshl_b32 s%d, s%d, 14" % (T0, T0))
        I("s_add_u32 s%d, s%d, s%d" % (T0, T0, T1))
        I("s_add_u32 s%d, s%d, %d" % (T0, T0, (e % 3) * 1024))
        I("v_add_u32 v%d, s%d, v%d" % (V_PS + e, T0, V_LIN))
    I("s_lshl_b32 s%d, s%d, 20" % (S_PS, S_XW))
    I("s_add_u32 s%d, s%d, 0x%x" % (S_PS, S_PS, X_SP))
    I("s_and_b32 s%d, s%d, 24" % (T0, S_RK))
    I("s_add_u32 s%d, s%d, s%d" % (T0, T0, S_WV))
    I("s_lshl_b32 s%d, s%d, 16" % (S_HB, T0))
    I("s_add_u32 s%d, s%d, 0xc000" % (S_HB, S_HB))
    I("s_add_u32 s%d, s%d, s%d" % (S_HB, S_HB, S_POL))
    table(a, S_SEG, PFIRST)
    table(a, S_CNT, PCNT)
    for x in range(4):
        I("s_cmp_eq_u32 s%d, %d" % (S_XW, x))
        I("s_cmov_b32 s%d, 0x%x" % (S_TL, sum(s << (8 * i) for i, s in enumerate(TLIST[x]))))


def plain(a, lines):
    for l in lines:
        a.I(l.split(" #")[0])


def sync(a):
    a.I("s_waitcnt vmcnt(0)")
    a.I("s_barrier")
    plain(a, PUBLISH + TARGETS)
    poll_loop(a, 0)


def program(a, wstamp):
    I = a.I
    st = lambda i: wstamp(a, i, 126)
    a.C("======== output projection")
    I("s_xor_b32 s%d, s%d, 2" % (S_RK, S_RK))
    for x in range(4):
        if not PCNT[x] and not TLIST[x]:
            I("s_cmp_eq_u32 s%d, %d" % (S_XW, x))
            I("s_cbranch_scc1 seg_end")
    I("s_waitcnt vmcnt(0) lgkmcnt(0)")
    I("s_barrier")
    wunit = kvs.wo_setup(a, S_RK)
    I("s_andn2_b32 s%d, 8, s%d" % (T0, S_RK))
    I("s_lshl_b32 s%d, s%d, 2" % (T0, T0))
    kvs.wread_setup(a, T0)
    if kvs.WPF:
        I("s_cmp_eq_u32 s%d, 0" % S_XW)
        I("s_cbranch_scc1 seg_w0")
        I("v_and_b32 v26, 63, v0")
        I("v_lshl_add_u32 v26, v26, 4, s32")
        for u in range(4):
            wunit(u + 4, u + 1)
            for m in range(8):
                r = 128 + 4 * (8 * u + m)
                I("ds_write_b128 v26, v[%d:%d] offset:%d" % (r, r + 3, m * 4096))
            I("s_waitcnt lgkmcnt(0)")
            I("s_barrier")
            kvs.wread(a, u, 0, None)
            I("s_barrier")
        setup(a)
        for u in range(4, 8):
            I("s_waitcnt vmcnt(%d)" % (8 * (7 - u)))
            I("s_barrier")
            kvs.wread(a, u, u - 3, 65536 if u in (5, 7) else None)
        I("s_branch seg_w1")
        a.L("seg_w0")
    for u in range(5):
        wunit(u)
    setup(a)
    for u in range(8):
        I("s_waitcnt vmcnt(%d)" % (32 if u == 0 else 8 * min(3, 7 - u)))
        I("s_barrier")
        if 1 <= u < 4:
            wunit(u + 4)
        kvs.wread(a, u)
    a.L("seg_w1")
    st(13)
    I("s_barrier")
    I("s_cmp_eq_u32 s%d, 0" % S_CNT)
    I("s_cbranch_scc1 seg_t0")
    ring_reset(a)
    table(a, S_LASTS, [(plist(x) or [0])[-1] for x in range(4)])
    I("s_add_u32 s%d, s%d, 11" % (S_NEED, S_SEG))
    I("s_mov_b32 s%d, 0" % S_OUTO)
    I("s_mov_b32 s%d, 0" % S_HIST)
    I("s_mov_b32 s%d, 0" % (SOUT + 2))
    plain(a, TARGETS)
    poll_loop(a, 4)
    step = ["s_cmp_lt_u32 s%d, %d" % (S_SEG, PTH), "s_cselect_b32 s%d, 3, 4" % S_NX, "s_add_u32 s%d, s%d, s%d" % (S_NX, S_NX, S_SEG)]
    adv = ["s_lshl_b32 s%d, s%d, 8" % (S_HIST, S_HIST), "s_or_b32 s%d, s%d, s%d" % (S_HIST, S_HIST, S_SEG), "s_mov_b32 s%d, s%d" % (S_SEG, S_NX)] + step
    nxt = seg_addr(S_SEG)
    plain(a, step + seg_addr(S_SEG) + o_dma("") + kvs.ring(S_M) + HALF2 + o_dma("") + kvs.ring(S_M) + adv + nxt + o_dma("") + kvs.ring(S_M) + HALF2)
    I("s_mov_b32 s%d, 0x%x" % (S_TA, WS_END))
    I("s_waitcnt vmcnt(8)")
    I("s_barrier")
    st(14)
    for ks in range(D):
        I(rd(ks, 0))
        I(rd(ks, 1))
    radv = [["s_cmp_ge_u32 s%d, %d" % (S_R, LDS_END - 32768), "s_cselect_b32 s%d, 0x%x, s%d" % (S_D, (-131072) & 0xffffffff, S_C32), "s_add_u32 s%d, s%d, s%d" % (S_R, S_R, S_D)],
            ["v_add_u32 v%d, s%d, v%d" % (V_RO + i, S_D, V_RO + i) for i in range(2)]]

    def pbody(v):
        items = []
        add = lambda s, ls, at=False: items.append((s, ls, at))
        sp = lambda ls, s0, d: [add(s0 + d * i, [l]) for i, l in enumerate(ls)]
        nn = lambda ls: [l for l in ls if l != "s_nop 0"]
        add(0, ["@wait red"] + red_fin(V_H)[:2] + ["s_xor_b32 s%d, s%d, 0x80000" % (S_PS, S_PS)])
        sp(PST, 3, 2)
        add(0, ["buffer_load_dword v13, v%d, %s, s%d offen #tch" % (V_TCH, W, S_TA)])
        add(0, red_fin(V_H)[2:] + ["v_mov_b32 v%d, v%d" % (V_H + i, V_OUT + 12 + i) for i in range(4)])
        ntop = len(items)
        d0, dd = E("OD0", 40), E("ODD", 5)
        da, db = nn(o_dma("a")), nn(o_dma("b"))
        k = 0
        for grp in (da[0:2], da[2:3], da[3:4], da[4:5], da[5:7], da[7:8], da[8:9], da[9:10] + kvs.ring(S_M) + nxt,
                    db[0:2], db[2:3], db[3:4], db[4:5], db[5:7], db[7:8], db[8:9], db[9:10]):
            add(d0 + dd * k, grp)
            k += 1
        add(24, adv + radv[0] + ["s_min_u32 s%d, s%d, s%d" % (S_NEED, S_NX, S_LASTS), "s_add_u32 s%d, s%d, 3" % (S_NEED, S_NEED),
                                 "s_bfe_u32 s%d, s%d, 0x80010" % (S_OUTO, S_HIST), "s_lshl_b32 s%d, s%d, 18" % (S_OUTO, S_OUTO),
                                 "s_cmp_ge_u32 s%d, 1" % S_TICK, "s_cselect_b32 s%d, 0x%x, 0" % (SOUT + 2, 16 * MB)])
        add(63, seg_addr(S_NX, S_TA) + ["s_add_u32 s%d, s%d, s%d" % (S_TA, S_TA, S_TD)])
        add(49.5, radv[1], True)
        add(52, PUBLISH)
        add(57, TARGETS)
        add(62, radv[0])
        add(E("SP0", 72), [POLL])
        add(E("SP1", 96), ["@wait poll", "v_cmp_lt_u32 vcc, v%d, v%d" % (V_PV, V_PT)], True)
        add(E("SP1", 96) + 3, ["s_cbranch_vccnz seg_pslow", "seg_pok:"], True)
        add(E("SP1", 96) + 3.5, RED)
        add(113.5, radv[1], True)
        add(d0 + dd * 15 + 0.5, kvs.ring(S_M) + HALF2)
        add(126, ["s_cmp_lt_u32 s%d, s%d" % (S_TICK, S_CNT)])
        items = items[:ntop] + sorted(items[ntop:], key=lambda it: it[0])
        items = [(int(s + 0.5), ls, at) for s, ls, at in items]
        fill = place(items, [(1, 1, 2, 1)[i & 3] for i in range(116)] + [2] * 12)
        for k in fill:
            if radv[1][1] in fill[k]:
                assert k % 64 in (50, 51), k
        late_a = min(k for k in fill if any(l.endswith("#a") for l in fill[k])) >= 52
        late_b = min(k for k in fill if any(l.endswith("#b") for l in fill[k])) >= 116
        op_body(v, fill, {13: ["@wait %s pst" % ("a" if late_a else "a<"), "s_barrier"], 29: ["@wait %s" % ("b" if late_b else "b<"), "s_barrier"]}, True)
    v0 = VM(Asm())
    pbody(v0)
    a.L("seg_p")
    pbody(VM(a, v0.seq))
    I("s_cbranch_scc1 seg_p")
    st(16)
    I("s_xor_b32 s%d, s%d, 0x80000" % (S_PS, S_PS))
    I("s_waitcnt vmcnt(0)")
    plain(a, red_fin(V_H) + PST)
    I("s_lshl_b32 s%d, s%d, 18" % (S_OUTO, S_LASTS))
    sync(a)
    plain(a, RED)
    I("s_waitcnt vmcnt(0) lgkmcnt(0)")
    plain(a, red_fin(V_OUT + 12))
    a.L("seg_t0")
    I("s_mov_b32 s%d, 63" % S_LASTS)
    I("s_lshr_b32 s%d, s%d, 3" % (T0, S_RK))
    I("s_lshl_b32 s%d, s%d, 8" % (T0, T0))
    I("s_add_u32 s%d, s%d, 0x%x" % (T0, T0, X_LF + 4096))
    I("s_add_u32 s%d, s%d, s%d" % (S_TA, T0, ptr(D_WS)))
    I("s_addc_u32 s%d, s%d, 0" % (S_TD, ptr(D_WS) + 1))
    a.L("seg_t")
    I("s_and_b32 s%d, s%d, 0xff" % (S_SEG, S_TL))
    I("s_cbranch_scc0 seg_end")
    I("s_lshr_b32 s%d, s%d, 8" % (S_TL, S_TL))
    ring_reset(a)
    plain(a, seg_addr(S_SEG))
    I("s_xor_b32 s%d, s%d, 0x80000" % (S_PS, S_PS))
    I("s_lshl_b32 s%d, s%d, 18" % (S_OUTO, S_SEG))
    I("s_add_u32 s%d, s%d, 3" % (S_NEED, S_SEG))
    I("s_min_u32 s%d, s%d, 64" % (S_NEED, S_NEED))
    plain(a, TARGETS)
    poll_loop(a, 2)
    lab = a.uid("L_tf")
    I("s_cmp_lt_u32 s%d, 62" % S_SEG)
    I("s_cbranch_scc1 %s" % lab)
    I("v_writelane_b32 v%d, s%d, 33" % (V_PA, S_TA))
    I("v_writelane_b32 v%d, s%d, 33" % (V_PA + 1, S_TD))
    I("s_mov_b32 s%d, 32" % S_FIN)
    plain(a, TARGETS)
    poll_loop(a, 0)
    a.L(lab)
    if E("TTCH", 0):
        I("s_and_b32 s%d, s%d, 7" % (T0, S_RK))
        I("s_sub_u32 s%d, s%d, s%d" % (T0, T0, S_WV))
        I("s_lshl_b32 s%d, s%d, 16" % (T0, T0))
        I("s_lshl_b32 s%d, s%d, 11" % (T1, S_WV))
        I("s_add_u32 s%d, s%d, s%d" % (T0, T0, T1))
        I("s_add_u32 s%d, s%d, s%d" % (T0, T0, S_OA))
        I("s_mov_b64 exec, 0xffff")
        I("buffer_load_dword v13, v%d, %s, s%d offen" % (V_TCH, W, T0))
        I("s_mov_b64 exec, -1")
    v = VM(a)
    for l in o_dma("a") + kvs.ring(S_M) + HALF2 + o_dma("b") + ["@wait a", "s_barrier"] + [rd(ks, tl) for ks in range(D) for tl in range(2)]:
        v.I(l)
    op_body(v, {}, {13: ["@wait b", "s_barrier"]}, False)
    I("s_nop 7")
    plain(a, PST)
    sync(a)
    plain(a, RED)
    I("s_waitcnt vmcnt(0)")
    plain(a, red_fin(V_OUT + 12))
    I("s_branch seg_t")
    a.L("seg_end")
    st(15)
    I("s_endpgm")
    a.L("seg_pslow")
    poll_loop(a, 2)
    I("s_branch seg_pok")
```

```python
import sys, os
sys.path.insert(0, os.path.dirname(os.path.abspath(__file__)))
from asmlib import *
from L2 import *
import gemm2, worker2, kvs

NAME = "concat_heads__ssm_conv_s5__memory_aug_recurrent_mem_tr__prompt"
HEADER = open(os.path.join(os.path.dirname(os.path.abspath(__file__)), "header.txt")).read()
ABL = os.environ.get("ABL", "")
WT = int(os.environ.get("WT", "0"))
STAMP = int(os.environ.get("STAMP", "0"))
L_ROLE = 31744


def wstamp(a, idx, vr=126):
    if not WT:
        return
    I = lambda l: a.I(l.replace("v127", "v%d" % (vr + 1)).replace("v126", "v%d" % vr))
    I("s_memrealtime s[62:63]")
    I("s_lshl_b32 vcc_lo, s%d, 5" % gemm2.S_XW)
    I("s_add_u32 vcc_lo, vcc_lo, s%d" % gemm2.S_RK)
    I("s_lshl_b32 vcc_lo, vcc_lo, 8")
    I("s_add_u32 vcc_lo, vcc_lo, 0x%x" % (WS_DBG + 131072 + idx * 4))
    I("v_mov_b32 v127, vcc_lo")
    I("s_waitcnt lgkmcnt(0)")
    I("v_mov_b32 v126, s62")
    I("s_memtime s[62:63]")
    I("s_mov_b64 exec, 1")
    I("global_store_dword v127, v126, s[%d:%d]" % (ptr(D_WS), ptr(D_WS) + 1))
    I("s_waitcnt lgkmcnt(0)")
    I("v_mov_b32 v126, s62")
    I("global_store_dword v127, v126, s[%d:%d] offset:128" % (ptr(D_WS), ptr(D_WS) + 1))
    I("s_mov_b64 exec, -1")


worker2.WSTAMP[0] = wstamp


def entry(a, name):
    I = a.I
    I("s_load_dwordx4 s[%d:%d], s[0:1], 128" % (PTR0 + 32, PTR0 + 35))
    I("s_load_dwordx2 s[%d:%d], s[0:1], 144" % (PTR0 + 36, PTR0 + 37))
    I("s_load_dwordx16 s[%d:%d], s[0:1], 0" % (PTR0, PTR0 + 15))
    I("s_load_dwordx16 s[%d:%d], s[0:1], 64" % (PTR0 + 16, PTR0 + 31))
    if int(os.environ.get("CPF", "1")):
        I("s_getpc_b64 s[8:9]")
        a.L("code_base")
        I("s_and_b32 s9, s9, 0xffff")
        I("s_mov_b32 s10, code_end - code_base")
        I("s_mov_b32 s11, 0x00020000")
        I("s_bfe_u32 s12, s2, 0x20003")
        I("s_lshl_b32 s12, s12, 15")
        I("v_lshlrev_b32 v1, 7, v0")
        I("buffer_load_dword v255, v1, s[8:11], s12 offen")
    I("s_getreg_b32 s16, hwreg(HW_REG_XCC_ID)")
    I("s_and_b32 s16, s16, 7")
    I("v_lshrrev_b32 v1, 6, v0")
    I("s_nop 0")
    I("v_readfirstlane_b32 s18, v1")
    I("s_waitcnt lgkmcnt(0)")
    lt = a.uid("L_role")
    I("s_lshr_b32 s17, s2, 3")
    I("s_mov_b32 s%d, 0" % R_OK)
    I("s_cmp_lg_u32 s18, 0")
    I("s_cbranch_scc1 %s" % lt)
    I("s_lshl_b32 s12, s16, 8")
    I("s_add_u32 s12, s12, 0x%x" % X_LF)
    I("v_lshl_add_u32 v1, v0, 2, s12")
    I("v_mov_b32 v2, 0")
    I("global_store_dword v1, v2, s[%d:%d]" % (ptr(D_WS), ptr(D_WS) + 1))
    I("s_lshl_b32 s12, s16, 3")
    I("s_add_u32 s12, s12, %d" % (D_ROLE * 4))
    I("s_lshl_b32 s%d, 1, s17" % R_AT)
    I("s_mov_b32 s%d, 0x100" % (R_AT + 1))
    I("s_waitcnt vmcnt(0)")
    I("s_atomic_add_x2 s[%d:%d], s[%d:%d], s12 glc" % (R_AT, R_AT + 1, ptr(D_DBG), ptr(D_DBG) + 1))
    a.L(lt)


R_AT, R_OK = 94, 2


def role_poll(a, s_xcc, s_wave, tmp, abort):
    I = a.I
    lw, lp = a.uid("L_rw"), a.uid("L_rp")
    I("s_or_b32 s%d, s%d, s%d" % (tmp, R_OK, s_wave))
    I("s_cbranch_scc1 %s" % lw)
    I("s_lshl_b32 s%d, s%d, 3" % (tmp + 2, s_xcc[0]))
    I("s_add_u32 s%d, s%d, %d" % (tmp + 2, tmp + 2, D_ROLE * 4 + s_xcc[1] * 8))
    I("s_mov_b32 s%d, 0" % (tmp + 3))
    a.L(lp)
    I("s_load_dwordx2 s[%d:%d], s[%d:%d], s%d glc" % (tmp, tmp + 1, ptr(D_DBG), ptr(D_DBG) + 1, tmp + 2))
    I("s_add_u32 s%d, s%d, 1" % (tmp + 3, tmp + 3))
    I("s_cmp_gt_u32 s%d, 0x100000" % (tmp + 3))
    I("s_cbranch_scc1 %s" % abort)
    I("s_waitcnt lgkmcnt(0)")
    I("s_cmp_lt_u32 s%d, 0x2000" % (tmp + 1))
    I("s_cbranch_scc1 %s" % lp)
    I("s_lshr_b32 s%d, s%d, 8" % (tmp + 1, R_AT + 1))
    I("s_cmp_eq_u32 s%d, -1" % tmp)
    I("s_cselect_b32 s%d, -1, s%d" % (R_AT, tmp + 1))
    a.L(lw)


def role_check(a, s_rank, restart, s_wave, lds, tmp, vt):
    I = a.I
    lok, lw = a.uid("L_rok"), a.uid("L_rw")
    I("s_cmp_lg_u32 s%d, 0" % R_OK)
    I("s_cbranch_scc1 %s" % lok)
    I("v_mov_b32 v%d, %d" % (vt, lds))
    I("s_cmp_lg_u32 s%d, 0" % s_wave)
    I("s_cbranch_scc1 %s" % lw)
    I("v_mov_b32 v%d, s%d" % (vt + 1, R_AT))
    I("ds_write_b32 v%d, v%d" % (vt, vt + 1))
    I("s_waitcnt lgkmcnt(0)")
    a.L(lw)
    I("s_barrier")
    I("ds_read_b32 v%d, v%d" % (vt + 1, vt))
    I("s_waitcnt lgkmcnt(0)")
    I("v_readfirstlane_b32 s%d, v%d" % (tmp, vt + 1))
    I("s_mov_b32 s%d, 1" % R_OK)
    I("s_cmp_eq_u32 s%d, -1" % tmp)
    I("s_cbranch_scc1 %s" % lok)
    I("s_mov_b32 s%d, s%d" % (s_rank, tmp))
    I("s_waitcnt vmcnt(0)")
    I("s_barrier")
    I("s_cmp_ge_u32 s%d, 32" % s_rank)
    I("s_cbranch_scc1 chain_kernel_end")
    I("s_branch %s" % restart)
    a.L(lok)


kvs.ROLE.append(role_poll)
kvs.ROLE[0] = role_check


def kernel(a, name):
    I = a.I
    a.raw(".globl %s\n.p2align 8\n.type %s,@function" % (name, name))
    a.L(name)
    I("s_cmp_ge_u32 s2, %d" % (0 if "empty" in ABL else 256))
    I("s_cbranch_scc1 %s_end" % name)
    if WT:
        I("s_memrealtime s[22:23]")
        I("s_mov_b32 s26, s2")
    entry(a, name)
    if WT:
        I("s_mov_b32 s24, s22")
        I("s_lshl_b32 s26, s26, 4")
        I("s_add_u32 s26, s26, 0x%x" % (WS_DBG + 327680))
        I("v_mov_b32 v8, s26")
        I("v_mov_b32 v4, s22")
        I("v_mov_b32 v5, s24")
        I("v_mov_b32 v6, s16")
        I("v_mov_b32 v7, s17")
        I("global_store_dwordx4 v8, v[4:7], s[%d:%d]" % (ptr(D_WS), ptr(D_WS) + 1))
    I("s_cmp_ge_u32 s16, 4")
    I("s_cbranch_scc1 %s_worker" % name)
    a.L("chain_start")
    if 'nochain' not in ABL:
        import chain2 as chain
        import diag
        chain.chain_main(a, name, diag.setup(a, chain, STAMP))
    a.L("%s_end" % name)
    I("s_endpgm")
    a.L("%s_worker" % name)
    gemm2.ABORT[0] = name + "_wabort"
    I("s_sub_u32 s%d, s16, 4" % gemm2.S_XW)
    I("s_mov_b32 s%d, s17" % gemm2.S_RK)
    I("s_mov_b32 s%d, s18" % gemm2.S_WV)
    if 'nowork' not in ABL:
        worker2.program(a, name + "_seg")
    a.L(name + "_seg")
    if 'noseg' not in ABL and 'nowork' not in ABL:
        import seg
        seg.program(a, wstamp)
    I("s_endpgm")
    a.L(name + "_wabort")
    I("s_mov_b64 exec, 1")
    I("v_mov_b32 v1, 0xdeadbeef")
    I("v_mov_b32 v2, 120")
    I("global_store_dword v2, v1, s[%d:%d]" % (ptr(D_DBG), ptr(D_DBG) + 1))
    I("s_endpgm")
    if 'nowork' not in ABL:
        worker2.subroutines(a)
    a.L("code_end")
    I("s_endpgm")


def build():
    a = Asm()
    out = HEADER
    out += "; @launch kernel=chain_kernel grid=(256,1,1) block=(256,1,1) lds=163840\n"
    out += '.amdgcn_target "amdgcn-amd-amdhsa--gfx950"\n.text\n'
    kernel(a, "chain_kernel")
    out += a.text()
    out += kernel_desc("chain_kernel")
    return out


if __name__ == "__main__":
    dst = sys.argv[1] if len(sys.argv) > 1 else "/code/%s.s" % NAME
    open(dst, "w").write(build())
    print("wrote", dst)
```

```python
from asmlib import *
from L2 import *
import kvs
import os

E = lambda k, d: int(os.environ.get(k, str(d)))
PRE_Q, PACE = E("PRE_Q", 44), E("PACE", 14)
GAP_S = E("GAP_S", 14)
PRE_S = E("PRE_S", 4)
VPRE, VMID = E("VPRE", 2), E("VMID", 2)
PF = os.environ.get("PF", "B")
OSTA, TCHA = E("OSTA", 1), E("TCHA", 0)
KQW = os.environ.get("KQW", "AD")
SB = E("SB", 0)
if SB:
    KQW, OSTA, TCHA = "B", 0, 0
KB = E("KB", 0)
TS = E("TS", 2)
OSS = E("OSS", 1)
if OSS:
    OSTA = 0
PXH = 1
RQ, RM = E("RQ", 1), E("RM", 1)
DRY, TOUR = E("DRY", 0), E("TOUR", 1)
WNT = " nt" if E("WNT", 1) else ""
KVP = os.environ.get("KVP", "near")
PRE_O = E("PRE_O", 36)
PRE_P, GAP_P = E("PRE_P", 0), E("GAP_P", 0)

S_WS, S_TMPSRD = 8, 12
S_X, S_J, S_W, S_STEP = 16, 17, 18, 19
S_T0, S_T1, S_T2, S_T3 = 20, 21, 22, 23
S_M8 = 24
S_EV = 26
S_REL = 30
S_KV = 31
S_KM = 32
S_SPIN = 33
S_PXB = 52
S_EXB = 53
S_KVL = 54
S_CUR, S_NXT, S_POI, S_PX0, S_PX1, S_PP0, S_PP1 = 40, 41, 42, 43, 44, 45, 46
S_ID = 47
S_KVB, S_KMB, S_POL, S_LF = 48, 49, 50, 62
S_TCH = 63
S_W01, S_WT = 38, 39
S_JQ, S_JM = 28, 29
S_GATE = 55
S_DBG = 60
S_C = 56
S_SCL = 58

V_LIN = 1
V_GLD = 2
V_OLD = 3
V_QXST, V_QXLD, V_OXST, V_MEMST, V_PXST = 4, 5, 6, 7, 8
V_PXLD = 9
V_RQW = 12
V_RQR, V_RW, V_ROR, V_SEL, V_IDX, V_CHK = 15, 16, 17, 18, 19, 20
V_KVR = 21
V_H0, V_H1, V_H2, V_H3 = 22, 23, 24, 25
V_L8 = 26
V_M0LD = 27
V_ONES = 28
V_M = 32
V_MR = 48
V_AQ = 64
V_AV = 72
V_AO = 76
V_R = 80
V_KF = 104
V_VT = 136
V_VM = 144
V_QS = (148, 164, 32, 48)
V_SC = (80, 92, 220)
V_S0, V_S1, V_S2 = 180, 184, 188
V_P = 192
V_O = 200
V_T = 208
V_L = 220
V_Y = 246
V_KXW = 234
V_ROW = 238
V_D0, V_D1, V_D2 = 235, 236, 237
V_SMP = 248
V_ONEB = 216
V_XQ, V_XKM, V_XT, V_XB = 148, 164, 86, 226
V_XKA, V_XQA, V_KQ, V_B4 = 241, 242, 243, 245

L_RQK, L_RV, L_RO, L_VMF, L_ROLE, L_KX, L_KV = 0, 12288, 20480, 28672, 31744, 29696, 32768
L_STAGE = 32768
L_Q, L_QXC = L_KV + 10240, L_KV + 18432

SPIN_LIMIT = 1 << 20
LAST = E("LAST", 63)
ABL = os.environ.get('ABL', '')
ABORT = [None]
DUMP = [None]
COLD = []
LOOPSTART = [None, None]
W = "s[%d:%d]" % (S_WS, S_WS + 3)


def a_qk(t, b):
    return (t * 4 + b) * 8


def a_v(t, b):
    return 128 + (t * 4 + b) * 8


def a_wo(t, b):
    return 192 + (t * 4 + b) * 8


def fill(a, work, n):
    k = 0
    while work and k < n:
        a.I(work.pop(0))
        k += 1
    n -= k
    if E("SLP", 0) and n >= 16:
        a.I("s_sleep %d" % (n // 16))
        n %= 16
    while n > 0:
        q = min(n, 16)
        a.I("s_nop %d" % (q - 1))
        n -= q


def spin_lines(cnt=None, bound=True):
    pre = ["s_add_u32 s%d, s%d, 1" % (94 + cnt, 94 + cnt)] if (cnt is not None and os.environ.get("STAMP") == "2") else []
    if not bound:
        return pre
    return pre + ["s_add_u32 s%d, s%d, 1" % (S_SPIN, S_SPIN), "s_cmp_gt_u32 s%d, 0x%x" % (S_SPIN, SPIN_LIMIT), "s_cbranch_scc1 %s" % ABORT[0]]


def gather_fifo(a, tag, loads, accs, wts, extra=[]):
    uid = a.uid("G" + tag)
    done = uid + "_done"
    nm = lambda st, p: "".join(map(str, st)) + ("" if p is None else "p%d" % p)
    lab = lambda st, p: uid + "_s" + nm(st, p)
    cnt = {"q": 0, "o": 2}[tag]
    U = lambda b: [smf(c, wts(k, 0, b), V_M + 4 * b) for k, c in enumerate(accs)]
    R = lambda b: [smf(c, wts(k, 1, b), V_MR + 4 * b) for k, c in enumerate(accs)]
    ror = lambda b: ["v_mov_b32_dpp v%d, v%d row_ror:8 row_mask:0xf bank_mask:0xf" % (V_MR + 4 * b + i, V_M + 4 * b + i) for i in range(4)]
    ind = lambda ls: ["    " + l for l in ls]
    defer = len(accs) == 2
    emitted, todo = set(), []

    def body(st, p, hot):
        c = st[0]
        f = uid + "_f" + nm(st, p)
        o = ror(c)
        seq = ["s_waitcnt vmcnt(%d)" % (len(st) - 1), "v_cmp_eq_u32 vcc, -1, v%d" % (V_M + 4 * c)]
        seq += o if p is None else [R(p)[0], o[0], o[1], R(p)[1], o[2], o[3]]
        seq += ["s_cbranch_vccnz %s" % f] + U(c)
        if not defer or len(st) == 1:
            seq += R(c)
        nxt = st[1:] + (c,)
        stub = [f + ":"] + ind([loads[c]] + spin_lines(cnt, not hot) + ["s_branch %s" % lab(nxt, None)])
        emitted.add((st, p))
        todo.append((nxt, None))
        return [lab(st, p) + ":"] + ind(seq), stub, (st[1:], c if defer else None)
    st, p = (0, 1, 2, 3), None
    while st:
        out, stub, (st, p) = body(st, p, len(st) == 4)
        for l in out:
            a.raw(l)
        COLD.extend(stub)
    a.L(done)
    COLD.extend([uid + "_redo:"] + ind(loads + spin_lines(cnt) + ["s_nop 5"] + ["v_mov_b32 v%d, 0" % (x + i) for x in accs + extra for i in range(4)] +
                                       ["s_branch %s" % lab((0, 1, 2, 3), None)]))
    while todo:
        st, p = todo.pop(0)
        stubs = []
        while st and (st, p) not in emitted:
            out, stub, (st, p) = body(st, p, False)
            COLD.extend(out)
            stubs.extend(stub)
            if not st or (st, p) in emitted:
                COLD.append("    s_branch %s" % (lab(st, p) if st else done))
        COLD.extend(stubs)
    t0, t1 = V_CHK, V_T
    m = lambda b, i: V_M + 4 * b + i
    return ["v_max3_u32 v%d, v%d, v%d, v%d" % (t0, m(0, 1), m(0, 2), m(0, 3)),
            "v_max3_u32 v%d, v%d, v%d, v%d" % (t1, m(1, 1), m(1, 2), m(1, 3)),
            "v_max3_u32 v%d, v%d, v%d, v%d" % (t1 + 1, m(2, 1), m(2, 2), m(2, 3)),
            "v_max3_u32 v%d, v%d, v%d, v%d" % (t1 + 2, m(3, 1), m(3, 2), m(3, 3)),
            "v_max_u32 v%d, v%d, v%d" % (t0, t0, t1),
            "v_max3_u32 v%d, v%d, v%d, v%d" % (t0, t0, t1 + 1, t1 + 2),
            "v_cmp_eq_u32 vcc, -1, v%d" % t0], "s_cbranch_vccnz %s_redo" % uid


def prologue_addrs(a):
    I = a.I
    T = V_T
    a.C("---- chain address registers")
    I("s_mov_b32 s%d, 0x00ff00ff" % S_M8)
    I("s_mov_b32 s%d, 0x00ff00ff" % (S_M8 + 1))
    I("s_mov_b32 s%d, 0x55555555" % S_EV)
    I("s_mov_b32 s%d, 0x55555555" % (S_EV + 1))
    I("s_mov_b32 s%d, 0x3fb8aa3b" % S_C)
    I("s_mov_b32 s%d, 0x3fb8aa3b" % (S_C + 1))
    I("s_mov_b32 s%d, 0x3db504f3" % S_SCL)
    I("s_mov_b32 s%d, 0x3db504f3" % (S_SCL + 1))
    I("s_lshl_b32 s%d, s%d, 16" % (S_EXB, S_X))
    I("s_add_u32 s%d, s%d, 0x%x" % (S_EXB, S_EXB, X_EX))
    I("s_lshl_b32 s%d, s%d, 5" % (S_ID, S_X))
    I("s_add_u32 s%d, s%d, s%d" % (S_ID, S_ID, S_J))
    I("s_mov_b64 s[%d:%d], s[%d:%d]" % (S_DBG, S_DBG + 1, ptr(D_DBG), ptr(D_DBG) + 1))
    for i in range(4):
        I("v_mov_b32 v%d, -1" % (V_ONES + i))
    n, g, l, t0, t1, t2 = T, T + 1, T + 2, T + 4, T + 5, T + 6
    I("v_and_b32 v%d, 63, v0" % l)
    I("v_and_b32 v%d, 15, v0" % n)
    I("v_bfe_u32 v%d, v0, 4, 2" % g)
    I("v_lshlrev_b32 v%d, 4, v%d" % (V_LIN, l))
    I("v_lshlrev_b32 v%d, 3, v%d" % (V_L8, l))
    I("s_lshl_b32 s%d, s%d, 12" % (S_T1, S_W))
    I("v_add_u32 v%d, s%d, v%d" % (V_GLD, S_T1, V_LIN))
    I("s_xor_b32 s%d, s%d, 3" % (S_T2, S_W))
    I("s_lshl_b32 s%d, s%d, 4" % (S_T2, S_T2))
    if 'noperm' in ABL:
        I("s_mov_b32 s%d, 0" % S_T2)
    I("v_xor_b32 v%d, s%d, v%d" % (V_OLD, S_T2, V_GLD))
    I("v_add_u32 v%d, 16384, v%d" % (V_OLD, V_OLD))
    I("s_and_b32 s%d, s%d, 16" % (S_T2, S_T2))
    I("s_lshl_b32 s%d, s%d, 1" % (S_T2, S_T2))
    I("v_xor_b32 v%d, s%d, v%d" % (V_GLD, S_T2, V_GLD))
    I("v_mov_b32 v%d, 0xeeeeeeee" % V_IDX)
    I("v_mov_b32 v%d, 0x44444444" % t0)
    I("v_cndmask_b32 v%d, v%d, v%d, s[%d:%d]" % (V_IDX, V_IDX, t0, S_M8, S_M8 + 1))
    I("v_mov_b32 v%d, 0x03020706" % V_SEL)
    I("v_mov_b32 v%d, 0x05040100" % t0)
    I("v_cndmask_b32 v%d, v%d, v%d, s[%d:%d]" % (V_SEL, V_SEL, t0, S_EV, S_EV + 1))
    I("s_lshr_b32 s%d, s%d, 2" % (S_T1, S_J))
    I("s_lshl_b32 s%d, s%d, 12" % (S_T1, S_T1))
    I("s_add_u32 s%d, s%d, 32768" % (S_T1, S_T1))
    I("v_add_u32 v%d, s%d, v%d" % (V_QXLD, S_T1, V_LIN))
    I("s_and_b32 s%d, s%d, 1" % (S_T2, S_JQ))
    I("s_lshl_b32 s%d, s%d, 11" % (S_T2, S_T2))
    I("s_add_u32 s%d, s%d, s%d" % (S_T1, S_T1, S_T2))
    I("s_bfe_u32 s%d, s%d, 0x10001" % (S_T2, S_JQ))
    I("s_lshl_b32 s%d, s%d, 7" % (S_T2, S_T2))
    I("s_add_u32 s%d, s%d, s%d" % (S_T3, S_T1, S_T2))
    I("v_and_b32 v%d, 1, v%d" % (t0, g))
    I("v_lshlrev_b32 v%d, %d, v%d" % (V_KXW, 5 if RQ else 6, t0))
    I("v_and_b32 v%d, 1, v%d" % (t0, n))
    I("v_lshl_add_u32 v%d, v%d, 4, v%d" % (V_KXW, t0, V_KXW))
    I("v_bfe_u32 v%d, v%d, 1, 2" % (t0, n))
    I("v_lshl_add_u32 v%d, v%d, 2, v%d" % (V_KXW, t0, V_KXW))
    I("s_and_b32 s%d, s%d, 1" % (S_T2, S_W))
    I("s_lshl_b32 s%d, s%d, %d" % (S_T2, S_T2, 6 if RQ else 5))
    I("v_add_u32 v%d, s%d, v%d" % (V_KXW, S_T2, V_KXW))
    I("v_lshrrev_b32 v%d, 3, v%d" % (t0, n))
    I("v_and_b32 v%d, 2, v%d" % (t1, g))
    I("v_add_u32 v%d, v%d, v%d" % (t0, t0, t1))
    I("s_and_b32 s%d, s%d, 2" % (S_T2, S_W))
    I("s_lshl_b32 s%d, s%d, 1" % (S_T2, S_T2))
    I("v_add_u32 v%d, s%d, v%d" % (t0, S_T2, t0))
    I("v_lshl_add_u32 v%d, v%d, 8, v%d" % (V_QXST, t0, V_KXW))
    I("v_lshlrev_b32 v%d, 3, v%d" % (V_KXW, n))
    I("v_and_b32 v%d, 1, v%d" % (t0, g))
    I("v_lshl_add_u32 v%d, v%d, %d, v%d" % (V_KXW, t0, 8 if RQ else 7, V_KXW))
    I("v_lshrrev_b32 v%d, 1, v%d" % (t0, g))
    I("v_lshl_add_u32 v%d, v%d, %d, v%d" % (V_KXW, t0, 7 if RQ else 8, V_KXW))
    I("v_add_u32 v%d, s%d, v%d" % (V_QXST, S_T3, V_QXST))
    I("v_lshrrev_b32 v%d, 3, v%d" % (t0, l))
    I("v_and_b32 v%d, 7, v%d" % (t1, l))
    I("v_lshlrev_b32 v%d, 8, v%d" % (V_H0, t0))
    I("v_lshl_add_u32 v%d, v%d, 4, v%d" % (V_H0, t1, V_H0))
    I("v_add_u32 v%d, s%d, v%d" % (V_H0, S_T3, V_H0))
    I("s_lshr_b32 s%d, s%d, 2" % (S_T0, S_ID))
    I("s_lshl_b32 s%d, s%d, 16" % (S_KVB, S_T0))
    I("s_and_b32 s%d, s%d, 3" % (S_T1, S_J))
    I("s_lshl_b32 s%d, s%d, 11" % (S_T2, S_T1))
    I("s_add_u32 s%d, s%d, 0x4000" % (S_T2, S_T2))
    I("v_add_u32 v%d, s%d, v%d" % (V_D2, S_T2, V_LIN))
    I("v_lshlrev_b32 v%d, 7, v%d" % (V_D1, n))
    I("v_and_b32 v%d, 1, v%d" % (t0, g))
    I("v_lshl_add_u32 v%d, v%d, 15, v%d" % (V_D1, t0, V_D1))
    I("s_lshl_b32 s%d, s%d, 11" % (S_T2, S_T1))
    I("v_add_u32 v%d, s%d, v%d" % (V_D1, S_T2, V_D1))
    if KB:
        I("v_or_b32 v%d, 0x8000, v%d" % (V_D1, V_D1))
        I("v_add_u32 v%d, 0x1000, v%d" % (V_B4, V_LIN))
    if SB:
        I("v_lshrrev_b32 v%d, 1, v%d" % (t0, g))
        I("v_lshlrev_b32 v%d, 14, v%d" % (t0, t0))
        I("v_and_b32 v%d, 0xffff7fff, v%d" % (t1, V_D1))
        I("v_add_u32 v%d, v%d, v%d" % (t1, t1, t0))
        I("v_cmp_lt_u32 vcc, 1, v%d" % g)
        I("s_nop 1")
        I("v_cndmask_b32 v%d, v%d, v%d, vcc" % (V_D1, V_D1, t1))
        for i in range(3):
            I("v_add_u32 v%d, 0x%x, v%d" % (V_B4 + i, (0x1000, 0x8000, 0x9000)[i], V_LIN))
    if TCHA == 1 or TS == 1:
        I("v_or_b32 v%d, 0x8000, v%d" % (V_H3, V_D1))
        I("v_xor_b32 v%d, 0x8000, v%d" % (V_D1, V_H3))
    else:
        I("v_mov_b32 v%d, v%d" % (V_H3, V_D1))
    I("s_cmp_lt_u32 s%d, 2" % S_W)
    I("s_cselect_b32 s%d, 0xf0000000, 0" % S_W01)
    I("s_cmp_lg_u32 s%d, 1" % S_W)
    I("s_cselect_b32 s%d, 0xf0000000, 0" % S_WT)
    I("s_lshr_b32 s%d, s%d, 1" % (S_T2, S_W))
    I("s_mul_i32 s%d, s%d, %d" % (S_KVL, S_T2, L_Q - L_KV))
    I("s_lshl_b32 s%d, s%d, 15" % (S_T2, S_T2))
    I("s_and_b32 s%d, s%d, 1" % (S_T3, S_W))
    I("s_lshl_b32 s%d, s%d, 12" % (S_T3, S_T3))
    I("s_add_u32 s%d, s%d, s%d" % (S_KVL, S_KVL, S_T3))
    I("s_add_u32 s%d, s%d, %d" % (S_KVL, S_KVL, L_KV))
    I("s_add_u32 s%d, s%d, s%d" % (S_T2, S_T2, S_T3))
    I("v_add_u32 v%d, s%d, v%d" % (V_D0, S_T2, V_LIN))
    I("s_lshl_b32 s%d, s%d, 11" % (S_KVL - 3, S_W))
    I("v_add_u32 v%d, s%d, v%d" % (V_KQ, S_KVL - 3, V_LIN))
    I("v_add_u32 v%d, 0x8000, v%d" % (V_KQ + 1, V_KQ))
    I("v_lshrrev_b32 v%d, 3, v%d" % (t0, l))
    I("v_lshl_add_u32 v%d, v%d, 7, v%d" % (V_H2, t0, V_QXLD))
    I("v_add_u32 v%d, 128, v%d" % (V_H2, V_H2))
    I("s_and_b32 s%d, s%d, 1" % (S_T2, S_W))
    I("s_lshl_b32 s%d, s%d, 12" % (S_T2, S_T2))
    I("v_add_u32 v%d, s%d, v%d" % (V_XQA, S_T2, V_LIN))
    I("s_lshl_b32 s%d, s%d, 10" % (S_T1, S_T1))
    I("s_add_u32 s%d, s%d, 0xc000" % (S_T1, S_T1))
    I("v_add_u32 v%d, s%d, v%d" % (V_H1, S_T1, V_XQA))
    I("v_lshlrev_b32 v%d, 7, v%d" % (V_XKA, g))
    for bit, sh in ((2, 6), (3, 5), (0, 4)):
        I("v_bfe_u32 v%d, v0, %d, 1" % (t0, bit))
        I("v_lshl_add_u32 v%d, v%d, %d, v%d" % (V_XKA, t0, sh, V_XKA))
    I("v_and_b32 v%d, 7, v%d" % (t0, n))
    I("v_lshlrev_b32 v%d, 4, v%d" % (V_OXST, t0))
    I("v_lshl_add_u32 v%d, v%d, 7, v%d" % (V_OXST, g, V_OXST))
    I("s_lshl_b32 s%d, s%d, 9" % (S_T1, S_J))
    I("s_add_u32 s%d, s%d, 16384" % (S_T2, S_T1))
    I("v_add_u32 v%d, s%d, v%d" % (V_OXST, S_T2, V_OXST))
    I("v_lshrrev_b32 v%d, 3, v%d" % (t0, n))
    I("v_and_b32 v%d, 2, v%d" % (t1, g))
    I("v_add_u32 v%d, v%d, v%d" % (t0, t0, t1))
    I("v_lshlrev_b32 v%d, 7, v%d" % (V_MEMST, t0))
    I("v_and_b32 v%d, 1, v%d" % (t0, g))
    I("v_lshl_add_u32 v%d, v%d, %d, v%d" % (V_MEMST, t0, 4 if RM else 6, V_MEMST))
    I("v_bfe_u32 v%d, v%d, 1, 2" % (t0, n))
    I("v_lshl_add_u32 v%d, v%d, 2, v%d" % (V_MEMST, t0, V_MEMST))
    I("s_lshl_b32 s%d, s%d, 9" % (S_T1, S_JM))
    I("s_lshl_b32 s%d, s%d, %d" % (S_T2, S_W, 5 if RM else 4))
    I("s_add_u32 s%d, s%d, s%d" % (S_T1, S_T1, S_T2))
    I("v_add_u32 v%d, s%d, v%d" % (V_MEMST, S_T1, V_MEMST))
    I("v_bfe_u32 v%d, v%d, 1, 3" % (t0, l))
    I("v_and_b32 v%d, 1, v%d" % (t1, l))
    I("v_lshlrev_b32 v%d, 11, v%d" % (V_M0LD, t0))
    I("v_lshl_add_u32 v%d, v%d, 3, v%d" % (V_M0LD, t1, V_M0LD))
    I("v_lshl_add_u32 v%d, v%d, 4, v%d" % (V_M0LD, g, V_M0LD))
    I("s_lshl_b32 s%d, s%d, 6" % (S_T1, S_JM))
    I("v_add_u32 v%d, s%d, v%d" % (V_M0LD, S_T1, V_M0LD))
    I("v_lshlrev_b32 v%d, 2, v%d" % (t0, l))
    for e in range(3):
        I("s_xor_b32 s%d, s%d, %d" % (S_T1, S_W, e ^ 3))
        I("s_mul_i32 s%d, s%d, 768" % (S_T1, S_T1))
        I("s_add_u32 s%d, s%d, %d" % (S_T1, S_T1, e * 256))
        I("v_add_u32 v%d, s%d, v%d" % (V_ROW + e, S_T1, t0))
        I("v_lshlrev_b32 v%d, 1, v%d" % (V_RQW + e, V_ROW + e))
    I("s_mul_i32 s%d, s%d, 768" % (S_T1, S_W))
    I("v_add_u32 v%d, s%d, v%d" % (V_ROR, S_T1, t0))
    I("v_lshlrev_b32 v%d, 1, v%d" % (V_RQR, V_ROR))
    I("s_lshl_b32 s%d, s%d, 10" % (S_T1, S_W))
    I("v_add_u32 v%d, s%d, v%d" % (V_RW, S_T1, V_LIN))


def dbg_wait(a, word, target, mask=None):
    I = a.I
    I("v_mov_b32 v%d, %s" % (V_SMP, word * 4 if isinstance(word, int) else word))
    rt, ok = a.uid("L_kvw"), a.uid("L_kvok")
    I("s_branch %s_c" % rt)
    a.L(rt)
    I("global_load_dword v%d, v%d, s[%d:%d] sc1" % (V_SMP + 1, V_SMP, S_DBG, S_DBG + 1))
    for l in spin_lines():
        I(l)
    I("s_waitcnt vmcnt(0)")
    a.L(rt + "_c")
    I("v_readfirstlane_b32 s%d, v%d" % (S_T0, V_SMP + 1))
    if mask:
        I("s_and_b32 s%d, s%d, 0x%x" % (S_T1, S_T0, mask))
    I("s_cmp_ge_u32 s%d, %d" % (S_T1 if mask else S_T0, target))
    I("s_cbranch_scc1 %s" % ok)
    I("s_sleep 16")
    I("s_branch %s" % rt)
    a.L(ok)


def relay_wait(a, g):
    I = a.I
    lp, lo, ok = a.uid("L_rl"), a.uid("L_rlo"), a.uid("L_rlok")
    I("v_mov_b32 v%d, 0" % V_SMP)
    I("s_lshl2_add_u32 s%d, s%d, s%d" % (S_T0, S_J, S_W))
    I("s_cmp_lg_u32 s%d, 5" % S_T0)
    I("s_cbranch_scc1 %s" % lo)
    a.L(lp)
    I("s_load_dword s%d, s[%d:%d], %d glc" % (S_T0, S_DBG, S_DBG + 1, (D_EV + g) * 4))
    for l in spin_lines():
        I(l)
    I("s_waitcnt lgkmcnt(0)")
    I("s_cmp_lt_u32 s%d, %d" % (S_T0, NKV))
    I("s_cbranch_scc1 %s" % lp)
    I("v_mov_b32 v%d, %d" % (V_SMP + 1, g + 1))
    I("buffer_store_dword v%d, v%d, %s, s%d offen offset:128" % (V_SMP + 1, V_SMP, W, S_LF))
    I("s_branch %s" % ok)
    a.L(lo)
    I("buffer_load_dword v%d, v%d, %s, s%d offen offset:128 sc1" % (V_SMP + 1, V_SMP, W, S_LF))
    for l in spin_lines():
        I(l)
    I("s_waitcnt vmcnt(0)")
    I("v_readfirstlane_b32 s%d, v%d" % (S_T0, V_SMP + 1))
    I("s_cmp_ge_u32 s%d, %d" % (S_T0, g + 1))
    I("s_cbranch_scc1 %s" % ok)
    I("s_sleep 1")
    I("s_branch %s" % lo)
    a.L(ok)


def px_setup(a):
    I = a.I
    dbg_wait(a, D_CAL, 15, 0xff)
    I("s_cmp_ge_u32 s%d, 0x800" % S_T0)
    I("s_cselect_b32 s%d, 0x2000, 0" % S_POL)
    I("s_add_u32 s%d, s%d, 0x%x" % (S_PXB, S_POL, X_PXF))
    I("s_add_u32 s%d, s%d, s%d" % (S_KVB, S_KVB, S_POL))
    t = V_T
    I("v_and_b32 v%d, 63, v0" % t)
    I("v_lshlrev_b32 v%d, 1, v%d" % (t, t))
    I("s_lshr_b32 s%d, s%d, 4" % (S_T2, S_J))
    I("s_lshl_b32 s%d, s%d, 14" % (S_T2, S_T2))
    I("s_and_b32 s%d, s%d, 15" % (S_T3, S_J))
    I("s_lshl2_add_u32 s%d, s%d, s%d" % (S_T3, S_T3, S_W))
    I("s_lshl_b32 s%d, s%d, 7" % (S_T3, S_T3))
    I("s_add_u32 s%d, s%d, s%d" % (S_T2, S_T2, S_T3))
    for xo in range(4):
        I("s_xor_b32 s%d, s%d, %d" % (S_T1, S_X, xo))
        I("s_lshl_b32 s%d, s%d, 15" % (S_T1, S_T1))
        I("s_add_u32 s%d, s%d, s%d" % (S_T1, S_T1, S_T2))
        I("v_add_u32 v%d, s%d, v%d" % (V_PXST if xo == 0 else V_PXLD + xo - 1, S_T1, t))


def load_weights(a, filler, mid, late):
    I = a.I
    T = 160
    S_T2, S_T3 = 80, 81
    a.C("---- load weights")
    t0, t1, va, vq, vg, vg2, vr_, vw = T, T + 1, T + 2, T + 3, T + 5, T + 6, T + 7, T + 11
    I("s_lshl_b32 s%d, s%d, 10" % (S_T0, S_X))
    I("s_lshr_b32 s%d, s%d, 2" % (S_T1, S_J))
    I("s_lshl_b32 s%d, s%d, 7" % (S_T1, S_T1))
    I("s_add_u32 s%d, s%d, s%d" % (S_T0, S_T0, S_T1))
    I("v_bfe_u32 v%d, v0, 5, 1" % t0)
    I("v_lshlrev_b32 v%d, 1, v%d" % (va, t0))
    I("v_bfe_u32 v%d, v0, 3, 1" % t0)
    I("v_add_u32 v%d, v%d, v%d" % (va, va, t0))
    I("v_bfe_u32 v%d, v0, 4, 1" % t0)
    I("v_lshl_add_u32 v%d, v%d, 3, v%d" % (va, t0, va))
    I("v_lshrrev_b32 v%d, 6, v0" % t0)
    I("v_lshl_add_u32 v%d, v%d, 8, v%d" % (va, t0, va))
    I("v_and_b32 v%d, 7, v0" % t1)
    I("v_lshlrev_b32 v%d, 13, v%d" % (vq, va))
    I("v_lshl_add_u32 v%d, v%d, 4, v%d" % (vq, t1, vq))
    I("s_and_b32 s%d, s%d, 1" % (S_T1, S_JQ))
    I("s_lshl_b32 s%d, s%d, 6" % (S_T1, S_T1))
    I("s_add_u32 s%d, s%d, s%d" % (S_T1, S_T1, S_T0))
    I("s_lshl_b32 s%d, s%d, 1" % (S_T1, S_T1))
    I("v_add_u32 v%d, s%d, v%d" % (vq, S_T1, vq))
    I("v_add_u32 v%d, 0x8000, v%d" % (vq + 1, vq))
    I("v_bfe_u32 v%d, v0, 4, 2" % t0)
    I("v_lshlrev_b32 v%d, 1, v%d" % (va, t0))
    I("v_bfe_u32 v%d, v0, 2, 1" % t0)
    I("v_add_u32 v%d, v%d, v%d" % (va, va, t0))
    I("v_bfe_u32 v%d, v0, 3, 1" % t0)
    I("v_lshl_add_u32 v%d, v%d, 3, v%d" % (va, t0, va))
    I("v_lshrrev_b32 v%d, 6, v0" % t0)
    I("v_lshl_add_u32 v%d, v%d, 8, v%d" % (va, t0, va))
    I("v_and_b32 v%d, 3, v0" % t1)
    I("v_lshlrev_b32 v%d, 13, v%d" % (vg, va))
    I("v_lshl_add_u32 v%d, v%d, 4, v%d" % (vg, t1, vg))
    I("s_and_b32 s%d, s%d, 3" % (S_T1, S_J))
    I("s_lshl_b32 s%d, s%d, 5" % (S_T1, S_T1))
    I("s_add_u32 s%d, s%d, s%d" % (S_T1, S_T1, S_T0))
    I("s_lshl_b32 s%d, s%d, 1" % (S_T1, S_T1))
    I("v_add_u32 v%d, s%d, v%d" % (vg, S_T1, vg))
    I("v_bfe_u32 v%d, v0, 2, 1" % vg2)
    for bit, sh in ((4, 1), (3, 2), (5, 4)):
        I("v_bfe_u32 v%d, v0, %d, 1" % (t0, bit))
        I("v_lshl_add_u32 v%d, v%d, %d, v%d" % (vg2, t0, sh, vg2))
    I("v_lshrrev_b32 v%d, 6, v0" % t0)
    I("v_lshl_add_u32 v%d, v%d, 8, v%d" % (vg2, t0, vg2))
    I("s_lshl_b32 s%d, s%d, 10" % (S_T1, S_X))
    I("v_add_u32 v%d, s%d, v%d" % (vg2, S_T1, vg2))
    I("v_lshlrev_b32 v%d, 11, v%d" % (vg2, vg2))
    I("v_lshl_add_u32 v%d, v%d, 4, v%d" % (vg2, t1, vg2))
    I("s_lshl_b32 s%d, s%d, 6" % (S_T1, S_JM))
    I("v_add_u32 v%d, s%d, v%d" % (vg2, S_T1, vg2))
    I("s_lshl_b32 s%d, s%d, 15" % (S_T2, S_W))
    I("s_add_u32 s%d, s%d, %d" % (S_T2, S_T2, L_STAGE))
    RV_, RO_ = 32, 96

    def safe(i):
        for l in filler[i:]:
            op = l.split()[0]
            if op.startswith(("s_cselect", "s_addc", "s_cmov", "s_cbranch")):
                return False
            if op.startswith(("s_cmp", "s_bitcmp", "s_add", "s_and", "s_lsh", "s_xor", "s_or", "s_bfe", "s_sub")):
                return True
        return True
    cut = [next(i for i in range(p * len(filler) // 8, len(filler) + 1) if safe(i)) for p in range(9)]
    I("s_bitcmp1_b32 s%d, 1" % S_JQ)
    I("s_cselect_b32 s%d, s%d, s%d" % (S_TMPSRD, ptr(B_WK), ptr(B_WQ)))
    I("s_cselect_b32 s%d, s%d, s%d" % (S_TMPSRD + 1, ptr(B_WK) + 1, ptr(B_WQ) + 1))
    I("s_and_b32 s%d, s%d, 0xffff" % (S_TMPSRD + 1, S_TMPSRD + 1))
    I("s_mov_b32 s%d, 0x%x" % (S_TMPSRD + 2, 8 * MB))
    I("s_mov_b32 s%d, 0x00020000" % (S_TMPSRD + 3))
    a.srd(4, ptr(B_WV), 0, 8 * MB)
    a.srd(40, ptr(B_WO), 0, 8 * MB)
    for p in range(8):
        for l in filler[cut[p]:cut[p + 1]] if p else []:
            a.raw(l)
        if TOUR >= 2 and p == TOUR - 2:
            I("s_cmp_eq_u32 s%d, 3" % S_W)
            I("s_cbranch_scc1 chain_kernel_tour0")
            a.L("chain_kernel_tourend")
        if p == 2:
            lc = a.uid("L_cal")
            I("s_or_b32 s76, s%d, s%d" % (S_X, S_W))
            I("s_or_b32 s76, s76, s2")
            I("s_cbranch_scc1 %s" % lc)
            I("s_waitcnt lgkmcnt(0)")
            I("s_lshr_b32 s74, s95, 8")
            I("s_cmp_ge_u32 s74, 15")
            I("s_cbranch_scc1 %s" % lc)
            kvs.calibrate(a, 74, False, 76, 64)
            a.L(lc)
        if p == 6:
            kvs.ROLE[1](a, (S_X, 0), S_W, 76, ABORT[0])
        if p >= 6:
            I("s_waitcnt vmcnt(44)")
        for i in range(4 * p, 4 * p + 4):
            I("s_add_u32 m0, s%d, %d" % (S_T2, i * 1024))
            I("s_mov_b32 s%d, %d" % (S_T3, (i >> 1) * 16 * 8192))
            I("buffer_load_dwordx4 v%d, s[%d:%d], s%d offen%s lds" % (vq + (i & 1), S_TMPSRD, S_TMPSRD + 3, S_T3, WNT))
        for i in range(2 * p, 2 * p + 2):
            I("s_mov_b32 s%d, %d" % (S_T3, i * 16 * 8192))
            I("buffer_load_dwordx4 v[%d:%d], v%d, s[4:7], s%d offen%s" % (RV_ + 4 * i, RV_ + 4 * i + 3, vg, S_T3, WNT))
            I("s_mov_b32 s%d, %d" % (S_T3, (32 * (i >> 1) + 8 * (i & 1)) * 2048))
            I("buffer_load_dwordx4 v[%d:%d], v%d, s[40:43], s%d offen%s" % (RO_ + 4 * i, RO_ + 4 * i + 3, vg2, S_T3, WNT))
        if p == 0:
            for l in filler[:cut[1]]:
                a.raw(l)
    mid()
    I("v_bfe_u32 v%d, v0, 4, 2" % t0)
    I("v_lshlrev_b32 v%d, 3, v%d" % (t0, t0))
    I("v_bfe_u32 v%d, v0, 2, 2" % va)
    I("v_add_u32 v%d, v%d, v%d" % (t0, t0, va))
    I("v_and_b32 v%d, 3, v0" % t1)
    I("v_bfe_u32 v%d, v0, 3, 1" % vq)
    I("v_lshlrev_b32 v%d, 7, v%d" % (va, t0))
    I("v_and_b32 v%d, 1, v0" % (vq + 1))
    I("v_lshl_add_u32 v%d, v%d, 5, v%d" % (va, vq + 1, va))
    I("v_bfe_u32 v%d, v0, 1, 1" % (vq + 1))
    I("v_lshl_add_u32 v%d, v%d, 3, v%d" % (va, vq + 1, va))
    I("v_lshl_add_u32 v%d, v%d, 4, v%d" % (va, vq, va))
    for X in range(2):
        I("s_lshr_b32 s%d, s%d, 1" % (S_T1, S_W))
        I("s_xor_b32 s%d, s%d, %d" % (S_T1, S_T1, X ^ 1))
        I("s_lshl_b32 s%d, s%d, 6" % (S_T1, S_T1))
        I("s_add_u32 s%d, s%d, s%d" % (S_T1, S_T1, S_T2))
        I("v_add_u32 v%d, s%d, v%d" % (vr_ + 2 * X, S_T1, va))
        I("v_xor_b32 v%d, 256, v%d" % (vr_ + 2 * X + 1, vr_ + 2 * X))
    for b in range(4):
        I("s_waitcnt vmcnt(%d)" % min(44, 9 + 16 * (3 - b)))
        for t in range(4):
            d = a_qk(t, b)
            for u, o in enumerate((0, 4, 32, 36)):
                I("ds_read_b64_tr_b16 a[%d:%d], v%d offset:%d" % (d + 2 * u, d + 2 * u + 1, vr_ + t, (b * 64 + o) * 128))
            if t & 1:
                I("s_waitcnt lgkmcnt(0)")
    I("v_add_u32 v%d, s%d, v%d" % (vw, S_T2, V_LIN))
    I("v_lshlrev_b32 v%d, 6, v%d" % (va, t0))
    I("v_add_u32 v%d, s%d, v%d" % (va, S_T2, va))
    I("v_lshl_add_u32 v%d, v%d, 3, v%d" % (vr_ + 2, t1, va))
    I("v_lshl_add_u32 v%d, v%d, 5, v%d" % (vr_ + 2, vq, vr_ + 2))
    I("v_xor_b32 v%d, 128, v%d" % (vr_ + 3, vr_ + 2))
    for vb, areg, vra, half, cnt in ((RV_, a_v, vr_ + 2, 0, 0), (RO_, a_wo, vr_ + 2, 1, 0)):
        if half == 0:
            I("s_waitcnt vmcnt(0)")
            late()
        for i in range(16):
            I("ds_write_b128 v%d, v[%d:%d] offset:%d" % (vw, vb + 4 * i, vb + 4 * i + 3, half * 16384 + i * 1024))
        I("s_waitcnt lgkmcnt(0)")
        for b in range(4):
            for t in range(2):
                d = areg(t, b)
                for u, o in enumerate((0, 4, 32, 36)):
                    I("ds_read_b64_tr_b16 a[%d:%d], v%d offset:%d" % (d + 2 * u, d + 2 * u + 1, vra + t, half * 16384 + (b * 64 + o) * 64))
            I("s_waitcnt lgkmcnt(0)")


def blk_addr(d, delta):
    out = ["s_add_u32 s%d, s%d, %d" % (S_T1, S_STEP, delta)]
    if delta >= 0:
        out += ["s_min_u32 s%d, s%d, %d" % (S_T1, S_T1, 0 if 'samekv' in ABL else 63)]
    return out + ["s_lshl_b32 s%d, s%d, 21" % (d, S_T1), "s_lshl_b32 s%d, s%d, 13" % (S_T1, S_T1), "s_and_b32 s%d, s%d, 0x2000" % (S_T1, S_T1),
                  "s_xor_b32 s%d, s%d, s%d" % (S_T1, S_T1, S_KVB), "s_add_u32 s%d, s%d, s%d" % (d, d, S_T1)]


def kv_dma(w):
    if 'nopf' in ABL:
        return []
    ld = lambda v, o: "buffer_load_dwordx4 v%d, %s, s%d offen offset:%d lds" % (v, W, S_KV, o)
    if w == 't':
        return ["buffer_load_dword v%d, v%d, %s, s%d offen" % (V_SMP + 2, V_D1, W, S_KV)]
    grp = lambda base, v, o0, n: ["s_mov_b32 m0, %d" % base, "s_nop 0"] + [ld(v, (o0 + i) * 1024) for i in range(n)]
    if w == 'kb':
        return grp(L_KV, V_LIN, 0, 4) + grp(L_KV + 4096, V_B4, 0, 4)
    if w == 'b1':
        return grp(L_KV, V_LIN, 0, 4) + grp(L_KV + 4096, V_B4, 0, 2)
    if w == 'b2':
        return grp(L_Q, V_B4 + 1, 0, 4) + grp(L_Q + 4096, V_B4 + 2, 0, 3)
    if w == 'b3':
        return grp(L_KV + 4096, V_B4, 2, 2) + grp(L_KV + 8192, V_D2, 0, 2) + grp(L_Q + 4096, V_B4 + 2, 3, 1)
    if w == 't2':
        return ["buffer_load_dword v%d, v%d, %s, s%d offen sc1" % (V_SMP + 2, V_D1, W, S_TCH)]
    if w in ('k', 'q'):
        return ["s_add_u32 m0, s%d, %d" % (S_KVL - 3, L_KV if w == 'k' else L_Q)] + [ld(V_KQ + (w == 'q'), i * 1024) for i in range(2)]
    if w == 'v':
        return ["s_mov_b32 m0, %d" % (L_KV + 8192), "s_nop 0"] + [ld(V_D2, i * 1024) for i in range(2)]
    return ["s_mov_b32 m0, s%d" % S_KVL, "s_nop 0"] + [ld(V_D0, i * 1024) for i in range(4)]


def xatt1():
    kf = lambda i: V_KF + 4 * i
    o = []
    for c in range(4):
        o += ["ds_read_b128 v[%d:%d], v%d offset:%d" % (V_XQ + 4 * c, V_XQ + 4 * c + 3, V_XQA, L_Q + c * 1024)]
        o += ["ds_read_b128 v[%d:%d], v%d offset:%d" % (kf(2 * c + t), kf(2 * c + t) + 3, V_LIN, L_KV + (t * 4 + c) * 1024) for t in range(2)]
    o += ["ds_read_b128 v[%d:%d], v%d offset:%d" % (V_VT + 4 * t, V_VT + 4 * t + 3, V_LIN, L_KV + 8192 + t * 1024) for t in range(2)]
    for c in range(4):
        o += ["s_waitcnt lgkmcnt(%d)" % (11 - 3 * c)]
        o += ["v_mfma_f32_16x16x32_bf16 v[%d:%d], v[%d:%d], v[%d:%d], %s" % (d, d + 3, kf(2 * c + t), kf(2 * c + t) + 3, V_XQ + 4 * c, V_XQ + 4 * c + 3, "0" if c == 0 else "v[%d:%d]" % (d, d + 3))
              for t, d in enumerate((V_S0, V_S1))]
    post = ["v_cvt_pk_bf16_f32 v%d, 0, v%d" % (v, v) for v in range(V_S0, V_S0 + 8)]
    post += ["v_pk_mul_f32 v[%d:%d], v[%d:%d], s[%d:%d]" % (p, p + 1, p, p + 1, S_SCL, S_SCL + 1) for p in range(V_S0, V_S0 + 8, 2)]
    post += post[:8]
    post += [pk("add", V_S0 + i, V_S0 + i, V_XB + i) for i in range(0, 8, 2)]
    m, t = V_XT, V_XT + 1
    post += ["v_max3_f32 v%d, v%d, v%d, v%d" % (m, V_S0, V_S0 + 1, V_S0 + 2), "v_max3_f32 v%d, v%d, v%d, v%d" % (t, V_S0 + 3, V_S1, V_S1 + 1),
             "v_max3_f32 v%d, v%d, v%d, v%d" % (m, m, V_S1 + 2, V_S1 + 3), "v_max_f32 v%d, v%d, v%d" % (m, m, t)]
    return o, post


def xatt2():
    SM, m, t, sm = V_S2, V_XT, V_XT + 1, V_XT + 2
    o = ["ds_read_b128 v[%d:%d], v%d offset:%d" % (V_XKM + 4 * c, V_XKM + 4 * c + 3, V_XKA, L_QXC + c * 512) for c in range(4)]
    for c in range(4):
        o += ["s_waitcnt lgkmcnt(%d)" % (3 - c),
              "v_mfma_f32_16x16x32_bf16 v[%d:%d], v[%d:%d], v[%d:%d], %s" % (SM, SM + 3, V_XKM + 4 * c, V_XKM + 4 * c + 3, V_XQ + 4 * c, V_XQ + 4 * c + 3, "0" if c == 0 else "v[%d:%d]" % (SM, SM + 3))]
    rn = ["v_cvt_pk_bf16_f32 v%d, 0, v%d" % (v, v) for v in (SM, SM + 1)]
    o += ["s_nop 7"] + rn + ["v_pk_mul_f32 v[%d:%d], v[%d:%d], s[%d:%d]" % (SM, SM + 1, SM, SM + 1, S_SCL, S_SCL + 1)] + rn
    o += ["v_max3_f32 v%d, v%d, v%d, v%d" % (m, m, SM, SM + 1)]

    def xred(op, v):
        r = []
        for sw in ("v_permlane16_swap_b32", "v_permlane32_swap_b32"):
            r += ["v_mov_b32 v%d, v%d" % (t, v), "s_nop 1", "%s v%d, v%d" % (sw, v, t), "%s v%d, v%d, v%d" % (op, v, v, t)]
        return r
    prs = [V_S0, V_S0 + 2, V_S1, V_S1 + 2, SM]
    o += xred("v_max_f32", m) + ["v_mul_f32 v%d, s%d, v%d" % (m, S_C, m)]
    o += ["v_pk_fma_f32 v[%d:%d], v[%d:%d], s[%d:%d], v[%d:%d] op_sel_hi:[1,1,0] neg_lo:[0,0,1] neg_hi:[0,0,1]" % (p, p + 1, p, p + 1, S_C, S_C + 1, m, m + 1) for p in prs]
    o += ["v_exp_f32 v%d, v%d" % (v, v) for v in range(V_S0, V_S0 + 10)]
    o += [pk("add", sm, V_S0, V_S0 + 2), pk("add", sm + 2, V_S1, V_S1 + 2), pk("add", sm, sm, SM), pk("add", sm, sm, sm + 2), "v_add_f32 v%d, v%d, v%d" % (sm, sm, sm + 1)]
    o += xred("v_add_f32", sm) + ["v_rcp_f32 v%d, v%d" % (sm, sm), "s_nop 0"]
    o += [pk("mul", p, p, sm, " op_sel_hi:[1,0]") for p in prs]
    o += ["v_cvt_pk_bf16_f32 v%d, v%d, v%d" % (V_P + i, V_S0 + 2 * i, V_S0 + 2 * i + 1) for i in range(4)]
    o += ["v_cvt_pk_bf16_f32 v%d, v%d, v%d" % (V_P + 4, SM, SM + 1), "v_cvt_pk_bf16_f32 v%d, v%d, v%d" % (V_P + 7, SM, SM + 1)]
    o += ["v_mfma_f32_16x16x32_bf16 v[%d:%d], v[%d:%d], v[%d:%d], 0" % (V_O + 4 * tt, V_O + 4 * tt + 3, V_VT + 4 * tt, V_VT + 4 * tt + 3, V_P, V_P + 3) for tt in range(2)]
    o += ["v_mfma_f32_16x16x16_bf16 v[%d:%d], v[%d:%d], v[%d:%d], v[%d:%d]" % (
        V_O + 4 * tt, V_O + 4 * tt + 3, V_VM, V_VM + 1, V_P + 4 + 2 * tt, V_P + 5 + 2 * tt, V_O + 4 * tt, V_O + 4 * tt + 3) for tt in range(2)]
    fin = ["v_cvt_pk_bf16_f32 v%d, v%d, v%d" % (V_O + i, V_O + 2 * i, V_O + 2 * i + 1) for i in range(4)]
    return o, fin


def smf(c, areg, m):
    return "v_smfmac_f32_16x16x64_bf16 v[%d:%d], v[%d:%d], a[%d:%d], v%d" % (c, c + 3, m, m + 3, areg, areg + 7, V_IDX)


def pk(op, d, x, y, extra=""):
    return "v_pk_%s_f32 v[%d:%d], v[%d:%d], v[%d:%d]%s" % (op, d, d + 1, x, x + 1, y, y + 1, extra)


def slot_update():
    out = ["s_add_u32 s%d, s%d, 0x40000" % (S_REL, S_REL),
           "s_and_b32 s%d, s%d, 0xc0000" % (S_REL, S_REL),
           "s_xor_b32 s%d, s%d, 0x80000" % (S_T0, S_REL),
           "s_add_u32 s%d, s%d, s%d" % (S_POI, S_EXB, S_T0)]
    out += ["s_lshl_b32 s%d, s%d, 18" % (S_PX0, S_STEP),
            "s_lshl_b32 s%d, s%d, 10" % (S_T0, S_STEP),
            "s_and_b32 s%d, s%d, 0x2000" % (S_T0, S_T0),
            "s_xor_b32 s%d, s%d, s%d" % (S_T0, S_T0, S_PXB),
            "s_add_u32 s%d, s%d, s%d" % (S_PX0, S_PX0, S_T0),
            "s_add_u32 s%d, s%d, 0x20000" % (S_PX1, S_PX0)]
    out += ["s_add_u32 s%d, s%d, 0x40000" % (S_T0, S_REL),
            "s_and_b32 s%d, s%d, 0xc0000" % (S_T0, S_T0),
            "s_add_u32 s%d, s%d, s%d" % (S_NXT, S_EXB, S_T0)]
    return out


STAMPF = [None]


def step_body(a, name, stamp0):
    I = a.I
    STAMPF[0] = stamp0
    stamp = (lambda i: None if i in (1, 2, 8, 7) else stamp0(i)) if os.environ.get("GST") else stamp0
    loop, done = name + "_loop", name + "_done"
    lhelp, lb4 = a.uid("L_help"), a.uid("L_b4")
    if E("ALN", 0) >= 0:
        I("s_branch %s" % loop)
        a.raw(".p2align 8")
        for _ in range(E("ALN", 0)):
            I("s_nop 0")
    a.L(loop)
    stamp(0)
    a.C("==== Q phase")
    zero = ["v_mov_b32 v%d, 0" % (V_AQ + i) for i in range(16)]
    PADW = list(zero) if E("PADP", 0) >= 16 else []
    XN2 = E("XN2", 0)
    xt = xatt2()[0][-XN2:] if XN2 else []
    work = ["s_mov_b32 s%d, s%d" % (S_CUR, S_NXT)] + xt + ([] if PADW else zero) + slot_update()
    if OSTA:
        work += xatt2()[1] + blk_addr(S_KM, -1) + ["s_or_b32 s%d, s%d, s%d" % (S_KM, S_KM, S_W01)]
    if TCHA:
        work += blk_addr(S_KV, 1) + ["s_cmp_eq_u32 s%d, 0" % S_STEP, "s_cselect_b32 s%d, 0x%x, s%d" % (S_T1, 0xf0000000, S_WT), "s_or_b32 s%d, s%d, s%d" % (S_KV, S_KV, S_T1)]
    fill(a, work, max(PRE_Q, 1))
    loads = ["buffer_load_dwordx4 v[%d:%d], v%d, %s, s%d offen offset:%d sc1" % (V_M + 4 * b, V_M + 4 * b + 3, V_GLD, W, S_CUR, b * 1024) for b in range(4)]
    for b in range(4):
        I(loads[b])
        fill(a, work, PACE if b < 3 else len(work))
    ver, vbr = gather_fifo(a, "q", loads, [V_AQ, V_AQ + 4], lambda k, ty, b: a_qk(2 * k + ty, b), [V_AV])
    stamp(1)
    vm = [smf(V_AV, a_v(t, b), (V_M, V_MR)[t] + 4 * b) for b in range(4) for t in range(2)]
    for l in ver[:4]:
        I(l)
    I("ds_write_b64 v%d, v[%d:%d] offset:%d" % (V_RQW, V_AQ, V_AQ + 1, L_RQK))
    I("ds_write_b64 v%d, v[%d:%d] offset:%d" % (V_RQW + 1, V_AQ + 2, V_AQ + 3, L_RQK))
    for l in ver[4:6]:
        I(l)
    I("ds_write_b64 v%d, v[%d:%d] offset:%d" % (V_RQW + 2, V_AQ + 4, V_AQ + 5, L_RQK))
    kd_ = kv_dma('k') if 'A' in KQW else []
    for l in kd_[:1] + ver[6:] + kd_[1:]:
        I(l)
    for _ in range(VPRE):
        I(vm.pop(0))
    I(vbr)
    I("s_waitcnt lgkmcnt(0)")
    I("s_barrier")
    for i in range(3):
        I("ds_read_b64 v[%d:%d], v%d offset:%d" % (V_R + 2 * i, V_R + 2 * i + 1, V_RQR, L_RQK + i * 512))
    if OSTA and 'nopub' not in ABL:
        I("buffer_store_dwordx4 v[%d:%d], v%d, %s, s%d offen sc1" % (V_O, V_O + 3, V_H1, W, S_KM))
    if TCHA:
        I("buffer_load_dword v%d, v%d, %s, s%d offen" % (V_SMP + 2, V_H3, W, S_KV))
    for _ in range(VMID):
        I(vm.pop(0))
    A = V_AQ + 6
    I("s_waitcnt lgkmcnt(2)")
    I(pk("add", A, A, V_R))
    I("s_waitcnt lgkmcnt(0)")
    I(pk("add", V_R + 2, V_R + 2, V_R + 4))
    I(pk("add", A, A, V_R + 2))
    I("v_cvt_pk_bf16_f32 v%d, v%d, v%d" % (A, A, A + 1))
    I("s_cmp_lg_u32 s%d, 0" % S_W)
    I("s_nop 0")
    I("v_mov_b32_dpp v%d, v%d quad_perm:[1,0,3,2] row_mask:0xf bank_mask:0xf" % (A + 1, A))
    I("v_perm_b32 v%d, v%d, v%d, v%d" % (A, A + 1, A, V_SEL))
    I("v_min_u32 v%d, 0xfffffffe, v%d" % (A, A))
    I("buffer_store_dword v%d, v%d, %s, s%d offen" % (A, V_QXST, W, S_CUR))
    late = len(vm) > 0
    for l in vm:
        I(l)
    if late:
        I("s_nop 7")
    I("ds_write_b128 v%d, v[%d:%d] offset:%d" % (V_RW, V_AV, V_AV + 3, L_RV))
    I("s_cbranch_scc1 %s" % lhelp)
    stamp(2)
    a.C("==== S phase, wave 0")
    NS = E("NSET", 3)
    ql = [["buffer_load_dwordx4 v[%d:%d], v%d, %s, s%d offen offset:%d sc1" % (q + 4 * c, q + 4 * c + 3, V_QXLD, W, S_CUR, c * 1024) for c in range(4)] for q in V_QS[:NS]]
    work = ["ds_read_b128 v[%d:%d], v%d offset:%d" % (V_KF + 4 * i, V_KF + 4 * i + 3, V_LIN, L_KV + i * 1024) for i in range(10)]
    if E("B2E", 1):
        I("s_waitcnt %slgkmcnt(0)" % ("vmcnt(%d) " % (1 + OSTA + (TCHA > 0)) if 'A' in KQW else ""))
        I("s_barrier")
        fill(a, work, PRE_S)
        for l in ql[0]:
            I(l)
    else:
        fill(a, [], PRE_S)
        for l in ql[0]:
            I(l)
        I("s_waitcnt %slgkmcnt(0)" % ("vmcnt(%d) " % (5 + OSTA + (TCHA > 0)) if 'A' in KQW else ""))
        I("s_barrier")
    for k in range(1, NS):
        fill(a, work, GAP_S - (4 if k == 1 and not E("B2E", 1) else 0))
        for l in ql[k]:
            I(l)
    for l in work:
        I(l)
    I("s_waitcnt lgkmcnt(0)")
    lsd = a.uid("L_sd")
    ror = lambda d, s, bm: "v_mov_b32_dpp v%d, v%d row_ror:8 row_mask:0xf bank_mask:0x%x" % (d, s, bm)
    slab = lambda k, c: "%s_%d_%d" % (lsd, k, c)
    for k in range(NS + 1):
        out, stubs = [], []
        for c in range(4):
            r = V_QS[k % NS] + 4 * c
            dst = V_SC[c] if c < 3 else V_S0
            mf = lambda i, ar_: "    v_mfma_f32_16x16x32_bf16 v[%d:%d], v[%d:%d], v[%d:%d], %s" % (
                dst + 4 * i, dst + 4 * i + 3, ar_, ar_ + 3, r, r + 3, "0" if c == 0 else "v[%d:%d]" % (V_SC[c - 1] + 4 * i, V_SC[c - 1] + 4 * i + 3))
            f = slab(k, c) + "f"
            direct = k < NS - 1 and os.environ.get("STAMP") != "2"
            out += [slab(k, c) + ":", "    s_waitcnt vmcnt(%d)" % (4 * max(NS - 1 - k, 0) + 3 - c),
                    "    v_max3_u32 v%d, v%d, v%d, v%d" % (V_CHK, r, r + 1, r + 2), mf(2, r),
                    "    v_max_u32 v%d, v%d, v%d" % (V_CHK, V_CHK, r + 3),
                    "    v_cmp_eq_u32 vcc, -1, v%d" % V_CHK,
                    mf(1, V_KF + 16 + 4 * c), mf(0, V_KF + 4 * c)]
            if c == 3:
                out += ["    " + ror(V_S2, V_S2 + 1, 0xc), "    " + ror(V_S2 + 2, V_S2 + 3, 0xc)]
            out += ["    s_cbranch_vccnz %s" % (slab(k + 1, c) if direct else f)]
            if k < NS - 1:
                stubs += [f + ":"] + ["    " + l for l in spin_lines(1, False)] + ["    s_branch %s" % slab(k + 1, c)]
            else:
                stubs += [f + ":"] + ["    " + l for l in ql[0][c:] + spin_lines(1)] + ["    s_branch %s" % slab(NS, c)]
        if k == 0:
            for l in out:
                a.raw(l)
        else:
            COLD.extend(out + ["    s_branch %s" % lsd])
        COLD.extend(stubs)
    a.L(lsd)
    I("s_barrier")
    stamp(8)
    ror = lambda d, s, bm: "v_mov_b32_dpp v%d, v%d row_ror:8 row_mask:0xf bank_mask:0x%x" % (d, s, bm)
    rnd = lambda v: "v_cvt_pk_bf16_f32 v%d, 0, v%d" % (v, v)
    A0, F, m, t = V_S0, V_S2 + 2, V_T, V_T + 1
    I("v_permlane32_swap_b32 v%d, v%d" % (V_S2, V_S2 + 2))
    I("ds_read_b64 v[%d:%d], v%d offset:%d" % (V_VM, V_VM + 1, V_L8, L_VMF))
    I("s_cmp_eq_u32 s%d, %d" % (S_STEP, LAST))
    I("s_cbranch_scc1 %s" % (name + "_fin"))
    for i in range(4):
        I(ror(A0 + i, V_S1 + i, 0xc))
    I("v_max3_f32 v%d, v%d, v%d, v%d" % (m, F, A0, A0 + 1))
    I("v_max3_f32 v%d, v%d, v%d, v%d" % (m, m, A0 + 2, A0 + 3))
    I(rnd(A0))
    I(rnd(A0 + 1))
    I("v_max_f32_dpp v%d, v%d, v%d row_ror:8 row_mask:0xf bank_mask:0xf" % (m, m, m))
    I("v_mov_b32 v%d, v%d" % (t, m))
    I(rnd(A0 + 2))
    I(rnd(A0 + 3))
    I("v_permlane16_swap_b32 v%d, v%d" % (m, t))
    I(rnd(F))
    I("v_max_f32 v%d, v%d, v%d" % (m, m, t))
    I("v_mov_b32 v%d, v%d" % (t, m))
    I("v_pk_mul_f32 v[%d:%d], v[%d:%d], s[%d:%d]" % (A0, A0 + 1, A0, A0 + 1, S_SCL, S_SCL + 1))
    I("v_pk_mul_f32 v[%d:%d], v[%d:%d], s[%d:%d]" % (A0 + 2, A0 + 3, A0 + 2, A0 + 3, S_SCL, S_SCL + 1))
    I("v_permlane32_swap_b32 v%d, v%d" % (m, t))
    I("v_mul_f32 v%d, s%d, v%d" % (F, S_SCL, F))
    I("v_max_f32 v%d, v%d, v%d" % (m, m, t))
    I(rnd(F))
    I(rnd(m))
    I(rnd(A0))
    I("v_mul_f32 v%d, s%d, v%d" % (m, S_SCL, m))
    I(rnd(A0 + 1))
    I(rnd(m))
    I(rnd(A0 + 2))
    I("v_mul_f32 v%d, s%d, v%d" % (m, S_C, m))
    I(rnd(A0 + 3))
    pf = lambda i: "v_pk_fma_f32 v[%d:%d], v[%d:%d], s[%d:%d], v[%d:%d] op_sel_hi:[1,1,0] neg_lo:[0,0,1] neg_hi:[0,0,1]" % (A0 + i, A0 + i + 1, A0 + i, A0 + i + 1, S_C, S_C + 1, m, m + 1)
    ex = lambda v: "v_exp_f32 v%d, v%d" % (v, v)
    sm = V_S1
    mm = lambda d, x: "v_mfma_f32_16x16x32_bf16 v[%d:%d], v[%d:%d], v[%d:%d], v[%d:%d]" % (d, d + 3, x, x + 3, V_P, V_P + 3, d, d + 3)
    m16 = lambda d, x, tt: "v_mfma_f32_16x16x16_bf16 v[%d:%d], v[%d:%d], v[%d:%d], 0" % (d, d + 3, x, x + 1, V_P + 4 + 2 * tt, V_P + 5 + 2 * tt)
    for l in ["v_fma_f32 v%d, v%d, s%d, -v%d" % (F, F, S_C, m), pf(0), ex(F), pf(2), ex(A0), ror(t, F, 0xf), ex(A0 + 1),
              "v_cvt_pk_bf16_f32 v%d, v%d, v%d" % (V_P + 4, F, t), "v_cvt_pk_bf16_f32 v%d, v%d, v%d" % (V_P + 7, F, t), ex(A0 + 2),
              m16(sm, V_ONEB, 0), ex(A0 + 3), "s_waitcnt lgkmcnt(0)", m16(V_O, V_VM, 0),
              "v_cvt_pk_bf16_f32 v%d, v%d, v%d" % (V_P, A0, A0 + 1), "v_cvt_pk_bf16_f32 v%d, v%d, v%d" % (V_P + 1, A0 + 2, A0 + 3),
              m16(V_O + 4, V_VM, 1), ror(V_P + 2, V_P, 0xf), ror(V_P + 3, V_P + 1, 0xf),
              "s_mov_b64 exec, s[%d:%d]" % (S_M8, S_M8 + 1), "s_nop 0",
              mm(sm, V_ONEB), mm(V_O, V_VT), mm(V_O + 4, V_VT + 4), "s_nop 0",
              "v_rcp_f32 v%d, v%d" % (sm, sm), "s_nop %d" % E("ANOP", 1)]:
        I(l)
    for h in range(2):
        for i in (4 * h, 4 * h + 2):
            I(pk("mul", V_O + i, V_O + i, sm, " op_sel_hi:[1,0]"))
        for i in (2 * h, 2 * h + 1):
            I("v_cvt_pk_bf16_f32 v%d, v%d, v%d" % (V_O + i, V_O + 2 * i, V_O + 2 * i + 1))
    for i in range(4):
        I("v_min_u32 v%d, 0xfffffffe, v%d" % (V_O + i, V_O + i))
    I("buffer_store_dwordx4 v[%d:%d], v%d, %s, s%d offen" % (V_O, V_O + 3, V_OXST, W, S_CUR))
    I("s_mov_b64 exec, -1")
    stamp(7)
    a.L(lb4)
    I("s_barrier")
    stamp(3)
    a.C("==== O phase")
    work = ([] if SB else blk_addr(S_KV, 1)) + ["s_add_u32 s%d, s%d, 1" % (S_STEP, S_STEP)]
    fill(a, work, max(PRE_O, len(work)))
    loads = ["buffer_load_dwordx4 v[%d:%d], v%d, %s, s%d offen offset:%d sc1" % (V_M + 4 * b, V_M + 4 * b + 3, V_OLD, W, S_CUR, b * 1024) for b in range(4)]
    for b in range(4):
        I(loads[b])
        if b < 3:
            fill(a, work, PACE)
    ver, vbr = gather_fifo(a, "o", loads, [V_AO], lambda k, ty, b: a_wo(ty, b))
    stamp(4)
    qd_ = (kv_dma('q') if 'C' in KQW else []) or ["s_nop 0"]
    for l in ver + qd_[:1]:
        I(l)
    for e in range(3):
        I("ds_write_b32 v%d, v%d offset:%d" % (V_ROW + e, V_AO + e, L_RO))
    for l in qd_[1:]:
        I(l)
    I(vbr)
    I("s_waitcnt lgkmcnt(0)")
    I("s_barrier")
    for i in range(3):
        I("ds_read_b32 v%d, v%d offset:%d" % (V_R + i, V_ROR, L_RO + i * 256))
    I("s_cmp_lt_u32 s%d, 2" % S_W)
    I("s_waitcnt lgkmcnt(2)")
    I("v_add_f32 v%d, v%d, v%d" % (V_R, V_R, V_AO + 3))
    I("s_waitcnt lgkmcnt(0)")
    I("v_add_f32 v%d, v%d, v%d" % (V_R + 1, V_R + 1, V_R + 2))
    I("v_add_f32 v%d, v%d, v%d" % (V_R, V_R, V_R + 1))
    if PXH:
        I("v_cvt_pk_bf16_f32 v%d, 0, v%d" % (V_R, V_R))
    I("v_min_u32 v%d, 0x%x, v%d" % (V_R, 0xfffe0000 if PXH else 0xfffffffe, V_R))
    pst = ["buffer_store_%s v%d, v%d, %s, s%d offen sc1" % ("short_d16_hi" if PXH else "dword", V_R, V_PXST, W, S_PX0 + r) for r in range(NREP)]
    I(pst[0])
    stamp(5)
    a.C("==== P phase")
    x2, x2fin = xatt2()
    if 'nox' in ABL:
        x2 = []
    n0, n1 = E("XN0", 23), E("XN1", 22)
    NSH = max(2, NREP)
    VL = (V_L, V_L + 3, V_R + 2)
    pl = [["buffer_load_%s v%d, v%d, %s, s%d offen sc1" % ("short_d16_hi" if PXH else "dword", VL[k] + i, V_PXLD + i, W, S_PX0 + min(k, NREP - 1)) for i in range(3)] for k in range(NSH)]
    x2 = x2[:len(x2) - XN2]
    x2 = x2[:E("ST1", 0)] + pst[1:] + x2[E("ST1", 0):]
    if PXH:
        x2 = x2[:4] + ["v_mov_b32 v%d, 0" % (VL[k] + i) for k in range(NSH) for i in range(3)] + x2[4:]
        n0 += 3 * NSH
    n0 += NREP - 1
    cuts = [0, n0, n0 + n1, n0 + n1 + E("XN3", 20)][:NSH + 1]
    for k in range(NSH):
        for l in x2[cuts[k]:cuts[k + 1]]:
            I(l)
        fill(a, [], GAP_P if k else PRE_P)
        for l in pl[k]:
            I(l)
    rest = x2[cuts[NSH]:]
    kq = {"D": kv_dma('kq'), "AC": [], "CD": kv_dma('k')[:1] + ["s_nop 0"] + kv_dma('k')[1:], "AD": kv_dma('q')[:1] + ["s_nop 0"] + kv_dma('q')[1:], "B": [], "C": [], "Q": kv_dma('q')[:1] + ["s_nop 0"] + kv_dma('q')[1:]}[KQW]
    kd = E("KQD", 6)
    for l in kq[:1]:
        I(l)
    for i, l in enumerate(kq[2:]):
        for x in rest[kd * i:kd * i + kd] or ["s_nop 0"]:
            I(x)
        I(l)
    for l in rest[kd * len(kq[2:]):]:
        I(l)
    nd = len(kq[2:])
    fill(a, PADW, E("PADP", 0))
    lpd = a.uid("L_pd")

    def rsum(k, other, extra):
        L = VL[k]
        f = a.uid("L_pf")
        y = 3 * (NSH - 1) + extra
        out = ["s_waitcnt vmcnt(%d)" % (2 + y), "v_add_f32 v%d, v%d, v%d" % (V_T, V_R, L), "s_waitcnt vmcnt(%d)" % y,
               "v_max3_u32 v%d, v%d, v%d, v%d" % (V_CHK, L, L + 1, L + 2),
               "v_add_f32 v%d, v%d, v%d" % (V_T + 1, L + 1, L + 2),
               "v_cmp_eq_u32 vcc, %s, v%d" % ("0xffff0000" if PXH else "-1", V_CHK),
               "v_add_f32 v%d, v%d, v%d" % (V_T, V_T, V_T + 1),
               "s_nop 1",
               "v_mov_b32_dpp v%d, v%d quad_perm:[1,0,3,2] row_mask:0xf bank_mask:0xf" % (V_T + 1, V_T),
               "s_mov_b64 exec, s[%d:%d]" % (S_EV, S_EV + 1),
               "v_cvt_pk_bf16_f32 v%d, v%d, v%d" % (V_T, V_T, V_T + 1),
               "v_min_u32 v%d, 0xfffffffe, v%d" % (V_T, V_T),
               "s_cbranch_vccnz %s" % f]
        stub = [f + ":"] + ["    " + l for l in ["s_mov_b64 exec, -1"] + pl[k] + spin_lines(3)] + ["    s_branch %s" % other]
        return out, stub
    plab = lambda i: "%s_%d" % (lpd, i)
    for i in range(2 * NSH):
        out, stub = rsum(i % NSH, plab(i + 1 if i + 1 < 2 * NSH else NSH), nd if i < NSH else 0)
        if i == 0:
            for l in out:
                I(l)
        else:
            COLD.extend([plab(i) + ":"] + ["    " + l for l in out] + ["    s_branch %s" % lpd])
        COLD.extend(stub)
    a.L(lpd)
    I("buffer_store_dword v%d, v%d, %s, s%d offen" % (V_T, V_MEMST, W, S_NXT))
    I("s_mov_b64 exec, -1")
    stamp(6)
    I("s_branch %s" % loop)

    a.L(lhelp)
    I("s_waitcnt %slgkmcnt(0)" % ("vmcnt(%d) " % (1 + OSTA + (TCHA > 0)) if 'A' in KQW else ""))
    I("s_barrier")
    lw2, lw3, lhe = a.uid("L_w2"), a.uid("L_w3"), a.uid("L_he")
    if os.environ.get("STAMP") == "2":
        stamp(2)
        I("s_waitcnt lgkmcnt(0)")
    I("s_cmp_ge_u32 s%d, 2" % S_W)
    I("s_cbranch_scc1 %s" % lw2)
    a.C("---- wave 1: reduce v, gate, K prefetch, poison, progress word")
    GA = 2
    for i, src in enumerate((0, 2, 3)):
        I("ds_read_b128 v[%d:%d], v%d offset:%d" % (V_R + 4 * i, V_R + 4 * i + 3, V_LIN, L_RV + src * 1024))
    for i, src in enumerate((0, 2, 3)):
        I("s_waitcnt lgkmcnt(%d)" % (2 - i))
        for k in (0, 2):
            I(pk("add", V_AV + k, V_AV + k, V_R + 4 * i + (k if src & 1 else k ^ 2)))
    for tt in range(2):
        I("v_cvt_pk_bf16_f32 v%d, v%d, v%d" % (V_VM + tt, V_AV + 2 * tt, V_AV + 2 * tt + 1))
    I("s_nop 1")
    I("v_permlane32_swap_b32 v%d, v%d" % (V_VM, V_VM + 1))
    I("s_nop 1")
    I("ds_write_b64 v%d, v[%d:%d] offset:%d" % (V_KXW, V_VM, V_VM + 1, L_VMF))
    if SB:
        for l in blk_addr(S_TCH, 2) + kv_dma('t2'):
            I(l)
    if TS:
        fill(a, blk_addr(S_TCH, 1), E("TSD", 40))
        I("buffer_load_dword v%d, v%d, %s, s%d offen sc1" % (V_SMP + 2, V_H3, W, S_TCH))
    I("s_add_u32 s%d, s%d, %d" % (S_T0, S_STEP, GA))
    I("s_min_u32 s%d, s%d, 63" % (S_T0, S_T0))
    kvs.group_word(a, S_T0, S_KM, S_T2)
    I("s_cmp_eq_u32 s%d, %d" % (S_ID, 999 if 'nowork' in ABL else 1))
    I("s_cselect_b32 s%d, s%d, s%d" % (S_KM, S_KM, S_GATE))
    for l in blk_addr(S_KV, 1):
        I(l)
    I("s_waitcnt lgkmcnt(0)")
    lng, lgr, lnf = a.uid("L_nog"), a.uid("L_gr"), a.uid("L_nof")
    I("s_cmp_eq_u32 s%d, s%d" % (S_KM, S_GATE))
    I("s_cbranch_scc1 %s" % lng)
    I("s_load_dword s%d, s[%d:%d], s%d glc" % (S_T2, S_DBG, S_DBG + 1, S_KM))
    a.L(lng)
    I("s_mov_b32 s%d, 1" % S_T3)
    stamp(8)
    I("s_barrier")

    def first_gate():
        if 'nowork' not in ABL:
            lns = a.uid("L_ns0")
            I("s_cmp_lg_u32 s%d, 0" % S_STEP)
            I("s_cbranch_scc1 %s" % lns)
            relay_wait(a, 1)
            a.L(lns)
    first_gate()
    for l in kv_dma('b1') if SB else (kv_dma('t') if TCHA < 2 and TS < 2 else []) + kv_dma('v') + (kv_dma('kb') if KB else []):
        I(l)
    I("s_cmp_lg_u32 s%d, 0" % S_ID)
    I("s_cbranch_scc1 %s" % lnf)
    I("s_atomic_add s%d, s[%d:%d], %d" % (S_T3, S_DBG, S_DBG + 1, D_PROG * 4))
    a.L(lnf)
    poison(a, S_POI)
    I("s_cmp_eq_u32 s%d, s%d" % (S_KM, S_GATE))
    I("s_cbranch_scc1 %s" % lhe)
    I("s_mov_b32 s%d, s%d" % (S_GATE, S_KM))
    a.L(lgr)
    I("s_waitcnt lgkmcnt(0)")
    I("s_cmp_ge_u32 s%d, %d" % (S_T2, NKV))
    I("s_cbranch_scc1 %s" % lhe)
    for l in spin_lines():
        I(l)
    I("s_load_dword s%d, s[%d:%d], s%d glc" % (S_T2, S_DBG, S_DBG + 1, S_KM))
    I("s_branch %s" % lgr)
    a.L(lw2)
    a.C("---- waves 2, 3: x-token attention (query tile w&1), o of the previous step, Q / V prefetch")
    x1, x1post = xatt1()
    ost = "buffer_store_dwordx4 v[%d:%d], v%d, %s, s%d offen sc1" % (V_O, V_O + 3, V_H1, W, S_KM)
    if SB or OSS:
        seq = x1[:14] + x2fin + blk_addr(S_KM, -1) + x1[14:] + (blk_addr(S_KV, 1) + x1post if SB else ["s_nop 6"] + x1post[:E("X1P", 28)])
        if 'nopub' not in ABL:
            seq.insert(E("OSP", 36), ost)
    else:
        seq = x1[:14] + ([] if OSTA else x2fin) + x1[14:] + blk_addr(S_KM, -1) + ["s_nop 0"] + x1post
    for l in seq:
        I(l)
    I("s_cmp_eq_u32 s%d, 3" % S_W)
    I("s_waitcnt lgkmcnt(0)")
    stamp(8)
    I("s_barrier")
    if 'nopub' not in ABL and not OSTA and not SB and not OSS:
        I(ost)
    I("ds_read_b64 v[%d:%d], v%d offset:%d" % (V_VM, V_VM + 1, V_L8, L_VMF))
    if SB:
        I("s_cbranch_scc1 %s" % lw3)
        first_gate()
        for l in kv_dma('b2'):
            I(l)
        I("s_branch %s" % lhe)
        a.L(lw3)
        first_gate()
        for l in kv_dma('b3'):
            I(l)
    else:
        I("s_cbranch_scc0 %s" % lw3)
    for c in range(2):
        I("s_mov_b32 m0, %d" % (L_QXC - c * 1024))
        I("s_nop 0")
        I("buffer_load_dwordx4 v%d, %s, s%d offen offset:%d sc1 lds" % (V_H2, W, S_CUR, c * 2048))
    if not SB:
        a.L(lw3)
        if OSS:
            for l in x1post[E("X1P", 28):]:
                I(l)
    a.L(lhe)
    stamp(7)
    I("s_cmp_lg_u32 s%d, %d" % (S_STEP, LAST))
    I("s_cbranch_scc1 %s" % lb4)
    a.L(name + "_fin")
    I("s_waitcnt vmcnt(0) lgkmcnt(0)")
    I("s_barrier")
    lf = a.uid("L_f2")
    I("s_cmp_lt_u32 s%d, 2" % S_W)
    I("s_cbranch_scc1 %s" % lf)
    for l in xatt2()[0] + blk_addr(S_KM, 0) + ["s_nop 1"] + x2fin + [ost]:
        I(l)
    I("s_waitcnt vmcnt(0)")
    a.L(lf)
    I("s_barrier")
    if DRY:
        I("s_cmp_eq_u32 s%d, 0" % (S_WS + 2))
        I("s_cbranch_scc1 %s_real" % name)
    I("s_cmp_lg_u32 s%d, 0" % S_W)
    I("s_cbranch_scc1 %s" % done)
    I("s_add_u32 s%d, s%d, 4096" % (S_T0, S_LF))
    I("s_mov_b32 s%d, 1" % S_T1)
    I("s_atomic_add s%d, s[%d:%d], s%d" % (S_T1, ptr(D_WS), ptr(D_WS) + 1, S_T0))
    I("s_branch %s" % done)


def poison(a, s_slot):
    I = a.I
    I("buffer_store_dwordx4 v[%d:%d], v%d, %s, s%d offen" % (V_ONES, V_ONES + 3, V_H0, W, s_slot))
    I("s_lshl_b32 s%d, s%d, 9" % (S_T1, S_JM))
    I("s_add_u32 s%d, s%d, s%d" % (S_T1, S_T1, s_slot))
    I("buffer_store_dwordx2 v[%d:%d], v%d, %s, s%d offen" % (V_ONES, V_ONES + 1, V_L8, W, S_T1))
    I("s_xor_b32 s%d, s%d, %d" % (S_T1, S_T1, 16384 + 4096))
    I("buffer_store_dwordx2 v[%d:%d], v%d, %s, s%d offen" % (V_ONES, V_ONES + 1, V_L8, W, S_T1))


def bias(a):
    I = a.I
    t0, t1 = V_T, V_T + 1
    I("v_and_b32 v%d, 15, v0" % t0)
    I("v_bfe_u32 v%d, v0, 6, 1" % t1)
    I("v_lshl_add_u32 v%d, v%d, 4, v%d" % (t0, t1, t0))
    I("v_bfe_u32 v%d, v0, 4, 2" % t1)
    I("v_lshlrev_b32 v%d, 2, v%d" % (t1, t1))
    I("v_sub_u32 v%d, v%d, v%d" % (t0, t0, t1))
    I("v_mov_b32 v%d, 0xff800000" % t1)
    for i in range(8):
        I("v_cmp_gt_i32 vcc, %d, v%d" % (16 * (i >> 2) + (i & 3), t0))
        I("s_nop 1")
        I("v_cndmask_b32 v%d, 0, v%d, vcc" % (V_XB + i, t1))


def chain_main(a, name, stamp=None):
    I = a.I
    a.srd(S_WS, ptr(D_WS), 0, WS_SIZE)
    ABORT[0] = name + "_abort"
    I("s_mov_b32 s%d, 0" % S_SPIN)
    I("s_xor_b32 s%d, s%d, 8" % (S_JM, S_J))
    I("s_and_b32 s%d, s%d, 1" % (S_JQ, S_J))
    I("s_bfe_u32 s%d, s%d, 0x10001" % (S_T0, S_J))
    I("s_xor_b32 s%d, s%d, 1" % (S_T0, S_T0))
    I("s_lshl1_add_u32 s%d, s%d, s%d" % (S_JQ, S_JQ, S_T0))

    for _ in range(E("CDLY", 0)):
        I("s_sleep 36")
    pa = Asm()
    prologue_addrs(pa)
    pa.I("global_load_dwordx2 v[%d:%d], v%d, s[%d:%d]" % (V_Y, V_Y + 1, V_M0LD, ptr(B_MEM0), ptr(B_MEM0) + 1))
    bias(pa)

    def mid():
        if len(LOOPSTART) > 2:
            LOOPSTART[2]()
        kvs.ROLE[0](a, S_J, "chain_start", S_W, L_ROLE, S_T0, V_T)
        I("s_lshl_b32 s%d, s%d, 18" % (S_POI, S_W))
        I("s_add_u32 s%d, s%d, s%d" % (S_POI, S_POI, S_EXB))
        poison(a, S_POI)
        I("s_lshl_b32 s%d, s%d, 8" % (S_LF, S_X))
        I("s_add_u32 s%d, s%d, 0x%x" % (S_LF, S_LF, X_LF))
        I("s_cmp_eq_u32 s%d, 1" % S_J)
        I("s_cselect_b32 s%d, s%d, 0x%x" % (S_T1, S_LF, WS_SIZE))
        I("v_mov_b32 v%d, 0" % V_SMP)
        I("s_add_u32 s%d, s%d, 4096" % (S_T1, S_T1))
        I("buffer_store_dword v%d, v%d, %s, s%d offen sc1" % (V_SMP, V_SMP, W, S_T1))
        I("v_mov_b32 v%d, %d" % (V_SMP + 1, D_CAL * 4))
        I("global_load_dword v%d, v%d, s[%d:%d] sc1" % (V_SMP + 1, V_SMP + 1, S_DBG, S_DBG + 1))

    def early():
        l1 = a.uid("L_m0")
        I("s_barrier")
        warm = os.environ.get("WARM", "bcx")
        if warm:
            I("s_load_dwordx16 s[64:79], s[0:1], 0")
            I("v_lshlrev_b32 v%d, 3, v%d" % (V_T, V_LIN))
            I("s_lshl2_add_u32 s%d, s%d, s%d" % (S_T0, S_ID, S_W))
            I("s_lshl_b32 s%d, s%d, 13" % (S_T0, S_T0))
            I("s_and_b32 s%d, s%d, 0x1fffff" % (S_T1, S_T0))
            I("s_waitcnt lgkmcnt(0)")
            for c in warm:
                if c in "bc":
                    p = ptr(A_BRE if c == 'b' else A_CRE)
                    I("s_bitcmp1_b32 s%d, 21" % S_T0)
                    I("s_cselect_b64 s[%d:%d], s[%d:%d], s[%d:%d]" % (S_T2, S_T3, p + 2, p + 3, p, p + 1))
                    a.srd(S_TMPSRD, S_T2, 0, 2 * MB)
                    I("buffer_load_dword v%d, v%d, s[%d:%d], s%d offen" % (V_SMP + 2, V_T, S_TMPSRD, S_TMPSRD + 3, S_T1))
                else:
                    a.srd(S_TMPSRD, ptr({'a': A_X, 'x': B_X, 'o': B_WO, 'p': B_WO}[c]), 4 * MB if c == 'p' else 0, 4 * MB)
                    I("buffer_load_dword v%d, v%d, s[%d:%d], s%d offen" % (V_SMP + 2, V_T, S_TMPSRD, S_TMPSRD + 3, S_T0))
        I("v_and_b32 v%d, 15, v0" % V_T)
        I("v_lshlrev_b32 v%d, 7, v%d" % (V_T, V_T))
        I("s_lshl_b32 s%d, s%d, 11" % (S_T1, S_J))
        I("s_add_u32 s%d, s%d, s%d" % (S_T1, S_T1, S_POI))
        I("buffer_load_dword v%d, v%d, %s, s%d offen sc1" % (V_SMP + 2, V_T, W, S_T1))
        I("s_cmp_lg_u32 s%d, 0" % S_W)
        I("s_cbranch_scc1 %s" % l1)
        I("s_lshl2_add_u32 s%d, s%d, s%d" % (S_T1, S_J, S_LF))
        I("buffer_store_dword v%d, v%d, %s, s%d offen" % (V_ONES, V_SMP, W, S_T1))
        I("s_lshl_b32 s%d, s%d, 9" % (S_T1, S_JM))
        I("s_add_u32 s%d, s%d, s%d" % (S_T1, S_T1, S_EXB))
        I("v_min_u32 v%d, 0xfffffffe, v%d" % (V_Y, V_Y))
        I("v_min_u32 v%d, 0xfffffffe, v%d" % (V_Y + 1, V_Y + 1))
        I("buffer_store_dwordx2 v[%d:%d], v%d, %s, s%d offen" % (V_Y, V_Y + 1, V_L8, W, S_T1))
        a.L(l1)
    load_weights(a, pa.lines, mid, early)
    if LOOPSTART[1]:
        LOOPSTART[1]()
    for r in (V_P + 5, V_P + 6):
        I("v_mov_b32 v%d, 0" % r)
    for i in range(4):
        I("v_mov_b32 v%d, 0x3f803f80" % (V_ONEB + i))
    px_setup(a)
    I("s_mov_b32 s%d, 0" % S_GATE)
    I("s_barrier")
    if TOUR == 1:
        I("s_cmp_eq_u32 s%d, 3" % S_W)
        I("s_cbranch_scc1 %s_tour0" % name)
        a.L(name + "_tourend")
    if DRY:
        I("s_mov_b32 s%d, 0" % (S_WS + 2))
        I("s_add_u32 s%d, s%d, 0x1000" % (S_ID, S_ID))
        I("s_mov_b32 s%d, %d" % (S_STEP, LAST - 1))
        for r in (S_REL, S_NXT, S_KV):
            I("s_mov_b32 s%d, 0" % r)
        I("s_branch %s_loop" % name)
        a.L(name + "_real")
        I("s_mov_b32 s%d, 0x%x" % (S_WS + 2, WS_SIZE))
        I("s_sub_u32 s%d, s%d, 0x1000" % (S_ID, S_ID))
    I("s_mov_b32 s%d, 0" % S_STEP)
    I("s_mov_b32 s%d, 0xc0000" % S_REL)
    I("s_mov_b32 s%d, s%d" % (S_NXT, S_EXB))
    for i in range(16):
        I("v_mov_b32 v%d, 0" % (V_AQ + i))
    if E("PRIO", 0):
        lpr = a.uid("L_prio")
        I("s_cmp_lg_u32 s%d, 0" % S_W)
        I("s_cbranch_scc1 %s" % lpr)
        I("s_setprio 3")
        a.L(lpr)
    lab0 = a.uid("L_init0")
    for l in blk_addr(S_KV, 0):
        I(l)
    I("s_cmp_lg_u32 s%d, 1" % S_W)
    I("s_cbranch_scc1 %s" % lab0)
    if 'nowork' not in ABL:
        relay_wait(a, 0)
    for l in kv_dma('v'):
        I(l)
    a.L(lab0)
    lab2, lp = a.uid("L_init2"), a.uid("L_initp")
    I("s_cmp_lg_u32 s%d, 2" % S_W)
    I("s_cbranch_scc1 %s" % lab2)
    I("v_and_b32 v%d, 31, v0" % V_SMP)
    I("v_lshlrev_b32 v%d, 2, v%d" % (V_SMP, V_SMP))
    a.L(lp)
    I("buffer_load_dword v%d, v%d, %s, s%d offen sc1" % (V_SMP + 1, V_SMP, W, S_LF))
    for l in spin_lines():
        I(l)
    I("s_waitcnt vmcnt(0)")
    I("v_cmp_eq_u32 vcc, 0, v%d" % (V_SMP + 1))
    I("s_cbranch_vccz %s" % lab2)
    I("s_sleep 2")
    I("s_branch %s" % lp)
    a.L(lab2)
    I("s_barrier")
    for l in kv_dma('kq'):
        I(l)
    I("s_waitcnt vmcnt(0) lgkmcnt(0)")
    I("s_barrier")
    if LOOPSTART[0]:
        LOOPSTART[0]()
    step_body(a, name, stamp if stamp else (lambda i: None))
    k = 0
    a.L(name + "_tour0")
    I("s_branch %s_tour1" % name)
    for line in COLD:
        a.raw(line)
        if TOUR and line.strip().startswith("s_branch"):
            k += 1
            a.L(name + "_tour%d" % k)
            I("s_branch %s_tour%d" % (name, k + 1))
    a.L(name + "_tour%d" % (k + 1))
    if TOUR:
        I("s_branch %s_tourend" % name)
    del COLD[:]
    if E("AFIX", 1):
        import align
        i0 = a.lines.index(name + "_loop:")
        a.lines[i0:] = align.fix(a.lines[i0:])
    a.L(ABORT[0])
    a.srd(S_TMPSRD, ptr(D_DBG), 0, 256)
    I("s_mov_b64 exec, 1")
    I("v_mov_b32 v1, s%d" % S_STEP)
    I("v_or_b32 v1, 0xdead0000, v1")
    I("v_mov_b32 v2, 124")
    I("buffer_store_dword v1, v2, s[%d:%d], 0 offen" % (S_TMPSRD, S_TMPSRD + 3))
    a.L(name + "_done")
    if DUMP[0]:
        DUMP[0]()
    I("s_endpgm")
```

```python
from asmlib import *
from L2 import *
import kvs
import align
import os

E = lambda k, d: int(os.environ.get(k, str(d)))
PRE_Q, PACE = E("PRE_Q", 44), E("PACE", 14)
GAP_S = E("GAP_S", 14)
PRE_S = E("PRE_S", 4)
VPRE, VMID = E("VPRE", 2), E("VMID", 2)
PF = os.environ.get("PF", "B")
OSTA, TCHA = E("OSTA", 1), E("TCHA", 0)
KQW = os.environ.get("KQW", "AD")
SB = E("SB", 0)
if SB:
    KQW, OSTA, TCHA = "B", 0, 0
KB = E("KB", 0)
TS = E("TS", 2)
OSS = E("OSS", 1)
if OSS:
    OSTA = 0
PXH = 1
RQ, RM = E("RQ", 1), E("RM", 1)
DRY, TOUR = E("DRY", 0), E("TOUR", 1)
TG = E("TG", 4)
WNT = " nt" if E("WNT", 1) else ""
KVP = os.environ.get("KVP", "near")
PRE_O = E("PRE_O", 36)
PRE_P, GAP_P = E("PRE_P", 0), E("GAP_P", 0)

S_WS, S_TMPSRD = 8, 12
S_X, S_J, S_W, S_STEP = 16, 17, 18, 19
S_T0, S_T1, S_T2, S_T3 = 20, 21, 22, 23
S_M8 = 24
S_EV = 26
S_REL = 30
S_KV = 31
S_KM = 32
S_SPIN = 33
S_PXB = 52
S_EXB = 53
S_KVL = 54
S_CUR, S_NXT, S_POI, S_PX0, S_PX1, S_PP0, S_PP1 = 40, 41, 42, 43, 44, 45, 46
S_ID = 47
S_KVB, S_KMB, S_POL, S_LF = 48, 49, 50, 62
S_TCH = 63
S_W01, S_WT = 38, 39
S_JQ, S_JM = 28, 29
S_GATE = 55
S_DBG = 60
S_C = 56
S_SCL = 58

V_LIN = 1
V_GLD = 2
V_OLD = 3
V_QXST, V_QXLD, V_OXST, V_MEMST, V_PXST = 4, 5, 6, 7, 8
V_PXLD = 9
V_RQW = 12
V_RQR, V_RW, V_ROR, V_SEL, V_IDX, V_CHK = 15, 16, 17, 18, 19, 20
V_KVR = 21
V_H0, V_H1, V_H2, V_H3 = 22, 23, 24, 25
V_L8 = 26
V_M0LD = 27
V_ONES = 28
V_M = 32
V_MR = 48
V_AQ = 64
V_AV = 72
V_AO = 76
V_R = 80
V_KF = 104
V_VT = 136
V_VM = 144
V_QS = (148, 164, 32, 48)
V_SC = (80, 92, 220)
V_S0, V_S1, V_S2 = 180, 184, 188
V_P = 192
V_O = 200
V_T = 208
V_L = 220
V_Y = 246
V_KXW = 234
V_ROW = 238
V_D0, V_D1, V_D2 = 235, 236, 237
V_SMP = 248
V_ONEB = 216
V_XQ, V_XKM, V_XT, V_XB = 148, 164, 86, 226
V_XKA, V_XQA, V_KQ, V_B4 = 241, 242, 243, 245

L_RQK, L_RV, L_RO, L_VMF, L_ROLE, L_KX, L_KV = 0, 12288, 20480, 28672, 31744, 29696, 32768
L_STAGE = 32768
L_Q, L_QXC = L_KV + 10240, L_KV + 18432

SPIN_LIMIT = 1 << 20
LAST = E("LAST", 63)
ABL = os.environ.get('ABL', '')
ABORT = [None]
DUMP = [None]
COLD = []
LOOPSTART = [None, None]
W = "s[%d:%d]" % (S_WS, S_WS + 3)


def a_qk(t, b):
    return (t * 4 + b) * 8


def a_v(t, b):
    return 128 + (t * 4 + b) * 8


def a_wo(t, b):
    return 192 + (t * 4 + b) * 8


def fill(a, work, n):
    k = 0
    while work and k < n:
        a.I(work.pop(0))
        k += 1
    n -= k
    if E("SLP", 0) and n >= 16:
        a.I("s_sleep %d" % (n // 16))
        n %= 16
    while n > 0:
        q = min(n, 16)
        a.I("s_nop %d" % (q - 1))
        n -= q


def spin_lines(cnt=None, bound=True):
    pre = ["s_add_u32 s%d, s%d, 1" % (94 + cnt, 94 + cnt)] if (cnt is not None and os.environ.get("STAMP") == "2") else []
    if not bound:
        return pre
    return pre + ["s_add_u32 s%d, s%d, 1" % (S_SPIN, S_SPIN), "s_cmp_gt_u32 s%d, 0x%x" % (S_SPIN, SPIN_LIMIT), "s_cbranch_scc1 %s" % ABORT[0]]


def gather_fifo(a, tag, loads, accs, wts, extra=[]):
    uid = a.uid("G" + tag)
    done = uid + "_done"
    nm = lambda st, p: "".join(map(str, st)) + ("" if p is None else "p%d" % p)
    lab = lambda st, p: uid + "_s" + nm(st, p)
    cnt = {"q": 0, "o": 2}[tag]
    U = lambda b: [smf(c, wts(k, 0, b), V_M + 4 * b) for k, c in enumerate(accs)]
    R = lambda b: [smf(c, wts(k, 1, b), V_MR + 4 * b) for k, c in enumerate(accs)]
    ror = lambda b: ["v_mov_b32_dpp v%d, v%d row_ror:8 row_mask:0xf bank_mask:0xf" % (V_MR + 4 * b + i, V_M + 4 * b + i) for i in range(4)]
    ind = lambda ls: ["    " + l for l in ls]
    defer = len(accs) == 2
    emitted, todo = set(), []

    def body(st, p, hot):
        c = st[0]
        f = uid + "_f" + nm(st, p)
        o = ror(c)
        seq = ["s_waitcnt vmcnt(%d)" % (len(st) - 1), "v_cmp_eq_u32 vcc, -1, v%d" % (V_M + 4 * c)]
        seq += o if p is None else [R(p)[0], o[0], o[1], R(p)[1], o[2], o[3]]
        seq += ["s_cbranch_vccnz %s" % f] + U(c)
        if not defer or len(st) == 1:
            seq += R(c)
        nxt = st[1:] + (c,)
        stub = [f + ":"] + ind([loads[c]] + spin_lines(cnt, not hot) + ["s_branch %s" % lab(nxt, None)])
        emitted.add((st, p))
        todo.append((nxt, None))
        return [lab(st, p) + ":"] + ind(seq), stub, (st[1:], c if defer else None)
    st, p = (0, 1, 2, 3), None
    while st:
        out, stub, (st, p) = body(st, p, len(st) == 4)
        for l in out:
            a.raw(l)
        COLD.extend(stub)
    a.L(done)
    COLD.extend([uid + "_redo:"] + ind(loads + spin_lines(cnt) + ["s_nop 5"] + ["v_mov_b32 v%d, 0" % (x + i) for x in accs + extra for i in range(4)] +
                                       ["s_branch %s" % lab((0, 1, 2, 3), None)]))
    while todo:
        st, p = todo.pop(0)
        stubs = []
        while st and (st, p) not in emitted:
            out, stub, (st, p) = body(st, p, False)
            COLD.extend(out)
            stubs.extend(stub)
            if not st or (st, p) in emitted:
                COLD.append("    s_branch %s" % (lab(st, p) if st else done))
        COLD.extend(stubs)
    t0, t1 = V_CHK, V_T
    m = lambda b, i: V_M + 4 * b + i
    return ["v_max3_u32 v%d, v%d, v%d, v%d" % (t0, m(0, 1), m(0, 2), m(0, 3)),
            "v_max3_u32 v%d, v%d, v%d, v%d" % (t1, m(1, 1), m(1, 2), m(1, 3)),
            "v_max3_u32 v%d, v%d, v%d, v%d" % (t1 + 1, m(2, 1), m(2, 2), m(2, 3)),
            "v_max3_u32 v%d, v%d, v%d, v%d" % (t1 + 2, m(3, 1), m(3, 2), m(3, 3)),
            "v_max_u32 v%d, v%d, v%d" % (t0, t0, t1),
            "v_max3_u32 v%d, v%d, v%d, v%d" % (t0, t0, t1 + 1, t1 + 2),
            "v_cmp_eq_u32 vcc, -1, v%d" % t0], "s_cbranch_vccnz %s_redo" % uid


def prologue_addrs(a):
    I = a.I
    T = V_T
    a.C("---- chain address registers")
    I("s_mov_b32 s%d, 0x00ff00ff" % S_M8)
    I("s_mov_b32 s%d, 0x00ff00ff" % (S_M8 + 1))
    I("s_mov_b32 s%d, 0x55555555" % S_EV)
    I("s_mov_b32 s%d, 0x55555555" % (S_EV + 1))
    I("s_mov_b32 s%d, 0x3fb8aa3b" % S_C)
    I("s_mov_b32 s%d, 0x3fb8aa3b" % (S_C + 1))
    I("s_mov_b32 s%d, 0x3db504f3" % S_SCL)
    I("s_mov_b32 s%d, 0x3db504f3" % (S_SCL + 1))
    I("s_lshl_b32 s%d, s%d, 16" % (S_EXB, S_X))
    I("s_add_u32 s%d, s%d, 0x%x" % (S_EXB, S_EXB, X_EX))
    I("s_lshl_b32 s%d, s%d, 5" % (S_ID, S_X))
    I("s_add_u32 s%d, s%d, s%d" % (S_ID, S_ID, S_J))
    I("s_mov_b64 s[%d:%d], s[%d:%d]" % (S_DBG, S_DBG + 1, ptr(D_DBG), ptr(D_DBG) + 1))
    for i in range(4):
        I("v_mov_b32 v%d, -1" % (V_ONES + i))
    n, g, l, t0, t1, t2 = T, T + 1, T + 2, T + 4, T + 5, T + 6
    I("v_and_b32 v%d, 63, v0" % l)
    I("v_and_b32 v%d, 15, v0" % n)
    I("v_bfe_u32 v%d, v0, 4, 2" % g)
    I("v_lshlrev_b32 v%d, 4, v%d" % (V_LIN, l))
    I("v_lshlrev_b32 v%d, 3, v%d" % (V_L8, l))
    I("s_lshl_b32 s%d, s%d, 12" % (S_T1, S_W))
    I("v_add_u32 v%d, s%d, v%d" % (V_GLD, S_T1, V_LIN))
    I("s_xor_b32 s%d, s%d, 3" % (S_T2, S_W))
    I("s_lshl_b32 s%d, s%d, 4" % (S_T2, S_T2))
    if 'noperm' in ABL:
        I("s_mov_b32 s%d, 0" % S_T2)
    I("v_xor_b32 v%d, s%d, v%d" % (V_OLD, S_T2, V_GLD))
    I("v_add_u32 v%d, 16384, v%d" % (V_OLD, V_OLD))
    I("s_and_b32 s%d, s%d, 16" % (S_T2, S_T2))
    I("s_lshl_b32 s%d, s%d, 1" % (S_T2, S_T2))
    I("v_xor_b32 v%d, s%d, v%d" % (V_GLD, S_T2, V_GLD))
    I("v_mov_b32 v%d, 0xeeeeeeee" % V_IDX)
    I("v_mov_b32 v%d, 0x44444444" % t0)
    I("v_cndmask_b32 v%d, v%d, v%d, s[%d:%d]" % (V_IDX, V_IDX, t0, S_M8, S_M8 + 1))
    I("v_mov_b32 v%d, 0x03020706" % V_SEL)
    I("v_mov_b32 v%d, 0x05040100" % t0)
    I("v_cndmask_b32 v%d, v%d, v%d, s[%d:%d]" % (V_SEL, V_SEL, t0, S_EV, S_EV + 1))
    I("s_lshr_b32 s%d, s%d, 2" % (S_T1, S_J))
    I("s_lshl_b32 s%d, s%d, 12" % (S_T1, S_T1))
    I("s_add_u32 s%d, s%d, 32768" % (S_T1, S_T1))
    I("v_add_u32 v%d, s%d, v%d" % (V_QXLD, S_T1, V_LIN))
    I("s_and_b32 s%d, s%d, 1" % (S_T2, S_JQ))
    I("s_lshl_b32 s%d, s%d, 11" % (S_T2, S_T2))
    I("s_add_u32 s%d, s%d, s%d" % (S_T1, S_T1, S_T2))
    I("s_bfe_u32 s%d, s%d, 0x10001" % (S_T2, S_JQ))
    I("s_lshl_b32 s%d, s%d, 7" % (S_T2, S_T2))
    I("s_add_u32 s%d, s%d, s%d" % (S_T3, S_T1, S_T2))
    I("v_and_b32 v%d, 1, v%d" % (t0, g))
    I("v_lshlrev_b32 v%d, %d, v%d" % (V_KXW, 5 if RQ else 6, t0))
    I("v_and_b32 v%d, 1, v%d" % (t0, n))
    I("v_lshl_add_u32 v%d, v%d, 4, v%d" % (V_KXW, t0, V_KXW))
    I("v_bfe_u32 v%d, v%d, 1, 2" % (t0, n))
    I("v_lshl_add_u32 v%d, v%d, 2, v%d" % (V_KXW, t0, V_KXW))
    I("s_and_b32 s%d, s%d, 1" % (S_T2, S_W))
    I("s_lshl_b32 s%d, s%d, %d" % (S_T2, S_T2, 6 if RQ else 5))
    I("v_add_u32 v%d, s%d, v%d" % (V_KXW, S_T2, V_KXW))
    I("v_lshrrev_b32 v%d, 3, v%d" % (t0, n))
    I("v_and_b32 v%d, 2, v%d" % (t1, g))
    I("v_add_u32 v%d, v%d, v%d" % (t0, t0, t1))
    I("s_and_b32 s%d, s%d, 2" % (S_T2, S_W))
    I("s_lshl_b32 s%d, s%d, 1" % (S_T2, S_T2))
    I("v_add_u32 v%d, s%d, v%d" % (t0, S_T2, t0))
    I("v_lshl_add_u32 v%d, v%d, 8, v%d" % (V_QXST, t0, V_KXW))
    I("v_lshlrev_b32 v%d, 3, v%d" % (V_KXW, n))
    I("v_and_b32 v%d, 1, v%d" % (t0, g))
    I("v_lshl_add_u32 v%d, v%d, %d, v%d" % (V_KXW, t0, 8 if RQ else 7, V_KXW))
    I("v_lshrrev_b32 v%d, 1, v%d" % (t0, g))
    I("v_lshl_add_u32 v%d, v%d, %d, v%d" % (V_KXW, t0, 7 if RQ else 8, V_KXW))
    I("v_add_u32 v%d, s%d, v%d" % (V_QXST, S_T3, V_QXST))
    I("v_lshrrev_b32 v%d, 3, v%d" % (t0, l))
    I("v_and_b32 v%d, 7, v%d" % (t1, l))
    I("v_lshlrev_b32 v%d, 8, v%d" % (V_H0, t0))
    I("v_lshl_add_u32 v%d, v%d, 4, v%d" % (V_H0, t1, V_H0))
    I("v_add_u32 v%d, s%d, v%d" % (V_H0, S_T3, V_H0))
    I("s_lshr_b32 s%d, s%d, 2" % (S_T0, S_ID))
    I("s_lshl_b32 s%d, s%d, 16" % (S_KVB, S_T0))
    I("s_and_b32 s%d, s%d, 3" % (S_T1, S_J))
    I("s_lshl_b32 s%d, s%d, 11" % (S_T2, S_T1))
    I("s_add_u32 s%d, s%d, 0x4000" % (S_T2, S_T2))
    I("v_add_u32 v%d, s%d, v%d" % (V_D2, S_T2, V_LIN))
    I("v_lshlrev_b32 v%d, 7, v%d" % (V_D1, n))
    I("v_and_b32 v%d, 1, v%d" % (t0, g))
    I("v_lshl_add_u32 v%d, v%d, 15, v%d" % (V_D1, t0, V_D1))
    I("s_lshl_b32 s%d, s%d, 11" % (S_T2, S_T1))
    I("v_add_u32 v%d, s%d, v%d" % (V_D1, S_T2, V_D1))
    if KB:
        I("v_or_b32 v%d, 0x8000, v%d" % (V_D1, V_D1))
        I("v_add_u32 v%d, 0x1000, v%d" % (V_B4, V_LIN))
    if SB:
        I("v_lshrrev_b32 v%d, 1, v%d" % (t0, g))
        I("v_lshlrev_b32 v%d, 14, v%d" % (t0, t0))
        I("v_and_b32 v%d, 0xffff7fff, v%d" % (t1, V_D1))
        I("v_add_u32 v%d, v%d, v%d" % (t1, t1, t0))
        I("v_cmp_lt_u32 vcc, 1, v%d" % g)
        I("s_nop 1")
        I("v_cndmask_b32 v%d, v%d, v%d, vcc" % (V_D1, V_D1, t1))
        for i in range(3):
            I("v_add_u32 v%d, 0x%x, v%d" % (V_B4 + i, (0x1000, 0x8000, 0x9000)[i], V_LIN))
    if TCHA == 1 or TS == 1:
        I("v_or_b32 v%d, 0x8000, v%d" % (V_H3, V_D1))
        I("v_xor_b32 v%d, 0x8000, v%d" % (V_D1, V_H3))
    else:
        I("v_mov_b32 v%d, v%d" % (V_H3, V_D1))
    I("s_cmp_lt_u32 s%d, 2" % S_W)
    I("s_cselect_b32 s%d, 0xf0000000, 0" % S_W01)
    I("s_cmp_lg_u32 s%d, 1" % S_W)
    I("s_cselect_b32 s%d, 0xf0000000, 0" % S_WT)
    I("s_lshr_b32 s%d, s%d, 1" % (S_T2, S_W))
    I("s_mul_i32 s%d, s%d, %d" % (S_KVL, S_T2, L_Q - L_KV))
    I("s_lshl_b32 s%d, s%d, 15" % (S_T2, S_T2))
    I("s_and_b32 s%d, s%d, 1" % (S_T3, S_W))
    I("s_lshl_b32 s%d, s%d, 12" % (S_T3, S_T3))
    I("s_add_u32 s%d, s%d, s%d" % (S_KVL, S_KVL, S_T3))
    I("s_add_u32 s%d, s%d, %d" % (S_KVL, S_KVL, L_KV))
    I("s_add_u32 s%d, s%d, s%d" % (S_T2, S_T2, S_T3))
    I("v_add_u32 v%d, s%d, v%d" % (V_D0, S_T2, V_LIN))
    I("s_lshl_b32 s%d, s%d, 11" % (S_KVL - 3, S_W))
    I("v_add_u32 v%d, s%d, v%d" % (V_KQ, S_KVL - 3, V_LIN))
    I("v_add_u32 v%d, 0x8000, v%d" % (V_KQ + 1, V_KQ))
    I("v_lshrrev_b32 v%d, 3, v%d" % (t0, l))
    I("v_lshl_add_u32 v%d, v%d, 7, v%d" % (V_H2, t0, V_QXLD))
    I("v_add_u32 v%d, 128, v%d" % (V_H2, V_H2))
    I("s_and_b32 s%d, s%d, 1" % (S_T2, S_W))
    I("s_lshl_b32 s%d, s%d, 12" % (S_T2, S_T2))
    I("v_add_u32 v%d, s%d, v%d" % (V_XQA, S_T2, V_LIN))
    I("s_lshl_b32 s%d, s%d, 10" % (S_T1, S_T1))
    I("s_add_u32 s%d, s%d, 0xc000" % (S_T1, S_T1))
    I("v_add_u32 v%d, s%d, v%d" % (V_H1, S_T1, V_XQA))
    I("v_lshlrev_b32 v%d, 7, v%d" % (V_XKA, g))
    for bit, sh in ((2, 6), (3, 5), (0, 4)):
        I("v_bfe_u32 v%d, v0, %d, 1" % (t0, bit))
        I("v_lshl_add_u32 v%d, v%d, %d, v%d" % (V_XKA, t0, sh, V_XKA))
    I("v_and_b32 v%d, 7, v%d" % (t0, n))
    I("v_lshlrev_b32 v%d, 4, v%d" % (V_OXST, t0))
    I("v_lshl_add_u32 v%d, v%d, 7, v%d" % (V_OXST, g, V_OXST))
    I("s_lshl_b32 s%d, s%d, 9" % (S_T1, S_J))
    I("s_add_u32 s%d, s%d, 16384" % (S_T2, S_T1))
    I("v_add_u32 v%d, s%d, v%d" % (V_OXST, S_T2, V_OXST))
    I("v_lshrrev_b32 v%d, 3, v%d" % (t0, n))
    I("v_and_b32 v%d, 2, v%d" % (t1, g))
    I("v_add_u32 v%d, v%d, v%d" % (t0, t0, t1))
    I("v_lshlrev_b32 v%d, 7, v%d" % (V_MEMST, t0))
    I("v_and_b32 v%d, 1, v%d" % (t0, g))
    I("v_lshl_add_u32 v%d, v%d, %d, v%d" % (V_MEMST, t0, 4 if RM else 6, V_MEMST))
    I("v_bfe_u32 v%d, v%d, 1, 2" % (t0, n))
    I("v_lshl_add_u32 v%d, v%d, 2, v%d" % (V_MEMST, t0, V_MEMST))
    I("s_lshl_b32 s%d, s%d, 9" % (S_T1, S_JM))
    I("s_lshl_b32 s%d, s%d, %d" % (S_T2, S_W, 5 if RM else 4))
    I("s_add_u32 s%d, s%d, s%d" % (S_T1, S_T1, S_T2))
    I("v_add_u32 v%d, s%d, v%d" % (V_MEMST, S_T1, V_MEMST))
    I("v_bfe_u32 v%d, v%d, 1, 3" % (t0, l))
    I("v_and_b32 v%d, 1, v%d" % (t1, l))
    I("v_lshlrev_b32 v%d, 11, v%d" % (V_M0LD, t0))
    I("v_lshl_add_u32 v%d, v%d, 3, v%d" % (V_M0LD, t1, V_M0LD))
    I("v_lshl_add_u32 v%d, v%d, 4, v%d" % (V_M0LD, g, V_M0LD))
    I("s_lshl_b32 s%d, s%d, 6" % (S_T1, S_JM))
    I("v_add_u32 v%d, s%d, v%d" % (V_M0LD, S_T1, V_M0LD))
    I("v_lshlrev_b32 v%d, 2, v%d" % (t0, l))
    for e in range(3):
        I("s_xor_b32 s%d, s%d, %d" % (S_T1, S_W, e ^ 3))
        I("s_mul_i32 s%d, s%d, 768" % (S_T1, S_T1))
        I("s_add_u32 s%d, s%d, %d" % (S_T1, S_T1, e * 256))
        I("v_add_u32 v%d, s%d, v%d" % (V_ROW + e, S_T1, t0))
        I("v_lshlrev_b32 v%d, 1, v%d" % (V_RQW + e, V_ROW + e))
    I("s_mul_i32 s%d, s%d, 768" % (S_T1, S_W))
    I("v_add_u32 v%d, s%d, v%d" % (V_ROR, S_T1, t0))
    I("v_lshlrev_b32 v%d, 1, v%d" % (V_RQR, V_ROR))
    I("s_lshl_b32 s%d, s%d, 10" % (S_T1, S_W))
    I("v_add_u32 v%d, s%d, v%d" % (V_RW, S_T1, V_LIN))


def dbg_wait(a, word, target, mask=None):
    I = a.I
    I("v_mov_b32 v%d, %s" % (V_SMP, word * 4 if isinstance(word, int) else word))
    rt, ok = a.uid("L_kvw"), a.uid("L_kvok")
    I("s_branch %s_c" % rt)
    a.L(rt)
    I("global_load_dword v%d, v%d, s[%d:%d] sc1" % (V_SMP + 1, V_SMP, S_DBG, S_DBG + 1))
    for l in spin_lines():
        I(l)
    I("s_waitcnt vmcnt(0)")
    a.L(rt + "_c")
    I("v_readfirstlane_b32 s%d, v%d" % (S_T0, V_SMP + 1))
    if mask:
        I("s_and_b32 s%d, s%d, 0x%x" % (S_T1, S_T0, mask))
    I("s_cmp_ge_u32 s%d, %d" % (S_T1 if mask else S_T0, target))
    I("s_cbranch_scc1 %s" % ok)
    I("s_sleep 16")
    I("s_branch %s" % rt)
    a.L(ok)


def relay_wait(a, g):
    I = a.I
    lp, lo, ok = a.uid("L_rl"), a.uid("L_rlo"), a.uid("L_rlok")
    I("v_mov_b32 v%d, 0" % V_SMP)
    I("s_lshl2_add_u32 s%d, s%d, s%d" % (S_T0, S_J, S_W))
    I("s_cmp_lg_u32 s%d, 5" % S_T0)
    I("s_cbranch_scc1 %s" % lo)
    a.L(lp)
    I("s_load_dword s%d, s[%d:%d], %d glc" % (S_T0, S_DBG, S_DBG + 1, (D_EV + g) * 4))
    for l in spin_lines():
        I(l)
    I("s_waitcnt lgkmcnt(0)")
    I("s_cmp_lt_u32 s%d, %d" % (S_T0, NKV))
    I("s_cbranch_scc1 %s" % lp)
    I("v_mov_b32 v%d, %d" % (V_SMP + 1, g + 1))
    I("buffer_store_dword v%d, v%d, %s, s%d offen offset:128" % (V_SMP + 1, V_SMP, W, S_LF))
    I("s_branch %s" % ok)
    a.L(lo)
    I("buffer_load_dword v%d, v%d, %s, s%d offen offset:128 sc1" % (V_SMP + 1, V_SMP, W, S_LF))
    for l in spin_lines():
        I(l)
    I("s_waitcnt vmcnt(0)")
    I("v_readfirstlane_b32 s%d, v%d" % (S_T0, V_SMP + 1))
    I("s_cmp_ge_u32 s%d, %d" % (S_T0, g + 1))
    I("s_cbranch_scc1 %s" % ok)
    I("s_sleep 1")
    I("s_branch %s" % lo)
    a.L(ok)


def px_setup(a):
    I = a.I
    dbg_wait(a, D_CAL, 15, 0xff)
    I("s_cmp_ge_u32 s%d, 0x800" % S_T0)
    I("s_cselect_b32 s%d, 0x2000, 0" % S_POL)
    I("s_add_u32 s%d, s%d, 0x%x" % (S_PXB, S_POL, X_PXF))
    I("s_add_u32 s%d, s%d, s%d" % (S_KVB, S_KVB, S_POL))
    t = V_T
    I("v_and_b32 v%d, 63, v0" % t)
    I("v_lshlrev_b32 v%d, 1, v%d" % (t, t))
    I("s_lshr_b32 s%d, s%d, 4" % (S_T2, S_J))
    I("s_lshl_b32 s%d, s%d, 14" % (S_T2, S_T2))
    I("s_and_b32 s%d, s%d, 15" % (S_T3, S_J))
    I("s_lshl2_add_u32 s%d, s%d, s%d" % (S_T3, S_T3, S_W))
    I("s_lshl_b32 s%d, s%d, 7" % (S_T3, S_T3))
    I("s_add_u32 s%d, s%d, s%d" % (S_T2, S_T2, S_T3))
    for xo in range(4):
        I("s_xor_b32 s%d, s%d, %d" % (S_T1, S_X, xo))
        I("s_lshl_b32 s%d, s%d, 15" % (S_T1, S_T1))
        I("s_add_u32 s%d, s%d, s%d" % (S_T1, S_T1, S_T2))
        I("v_add_u32 v%d, s%d, v%d" % (V_PXST if xo == 0 else V_PXLD + xo - 1, S_T1, t))


def load_weights(a, filler, mid, late):
    I = a.I
    T = 160
    S_T2, S_T3 = 80, 81
    a.C("---- load weights")
    t0, t1, va, vq, vg, vg2, vr_, vw = T, T + 1, T + 2, T + 3, T + 5, T + 6, T + 7, T + 11
    I("s_lshl_b32 s%d, s%d, 10" % (S_T0, S_X))
    I("s_lshr_b32 s%d, s%d, 2" % (S_T1, S_J))
    I("s_lshl_b32 s%d, s%d, 7" % (S_T1, S_T1))
    I("s_add_u32 s%d, s%d, s%d" % (S_T0, S_T0, S_T1))
    I("v_bfe_u32 v%d, v0, 5, 1" % t0)
    I("v_lshlrev_b32 v%d, 1, v%d" % (va, t0))
    I("v_bfe_u32 v%d, v0, 3, 1" % t0)
    I("v_add_u32 v%d, v%d, v%d" % (va, va, t0))
    I("v_bfe_u32 v%d, v0, 4, 1" % t0)
    I("v_lshl_add_u32 v%d, v%d, 3, v%d" % (va, t0, va))
    I("v_lshrrev_b32 v%d, 6, v0" % t0)
    I("v_lshl_add_u32 v%d, v%d, 8, v%d" % (va, t0, va))
    I("v_and_b32 v%d, 7, v0" % t1)
    I("v_lshlrev_b32 v%d, 13, v%d" % (vq, va))
    I("v_lshl_add_u32 v%d, v%d, 4, v%d" % (vq, t1, vq))
    I("s_and_b32 s%d, s%d, 1" % (S_T1, S_JQ))
    I("s_lshl_b32 s%d, s%d, 6" % (S_T1, S_T1))
    I("s_add_u32 s%d, s%d, s%d" % (S_T1, S_T1, S_T0))
    I("s_lshl_b32 s%d, s%d, 1" % (S_T1, S_T1))
    I("v_add_u32 v%d, s%d, v%d" % (vq, S_T1, vq))
    I("v_add_u32 v%d, 0x8000, v%d" % (vq + 1, vq))
    I("v_bfe_u32 v%d, v0, 4, 2" % t0)
    I("v_lshlrev_b32 v%d, 1, v%d" % (va, t0))
    I("v_bfe_u32 v%d, v0, 2, 1" % t0)
    I("v_add_u32 v%d, v%d, v%d" % (va, va, t0))
    I("v_bfe_u32 v%d, v0, 3, 1" % t0)
    I("v_lshl_add_u32 v%d, v%d, 3, v%d" % (va, t0, va))
    I("v_lshrrev_b32 v%d, 6, v0" % t0)
    I("v_lshl_add_u32 v%d, v%d, 8, v%d" % (va, t0, va))
    I("v_and_b32 v%d, 3, v0" % t1)
    I("v_lshlrev_b32 v%d, 13, v%d" % (vg, va))
    I("v_lshl_add_u32 v%d, v%d, 4, v%d" % (vg, t1, vg))
    I("s_and_b32 s%d, s%d, 3" % (S_T1, S_J))
    I("s_lshl_b32 s%d, s%d, 5" % (S_T1, S_T1))
    I("s_add_u32 s%d, s%d, s%d" % (S_T1, S_T1, S_T0))
    I("s_lshl_b32 s%d, s%d, 1" % (S_T1, S_T1))
    I("v_add_u32 v%d, s%d, v%d" % (vg, S_T1, vg))
    I("v_bfe_u32 v%d, v0, 2, 1" % vg2)
    for bit, sh in ((4, 1), (3, 2), (5, 4)):
        I("v_bfe_u32 v%d, v0, %d, 1" % (t0, bit))
        I("v_lshl_add_u32 v%d, v%d, %d, v%d" % (vg2, t0, sh, vg2))
    I("v_lshrrev_b32 v%d, 6, v0" % t0)
    I("v_lshl_add_u32 v%d, v%d, 8, v%d" % (vg2, t0, vg2))
    I("s_lshl_b32 s%d, s%d, 10" % (S_T1, S_X))
    I("v_add_u32 v%d, s%d, v%d" % (vg2, S_T1, vg2))
    I("v_lshlrev_b32 v%d, 11, v%d" % (vg2, vg2))
    I("v_lshl_add_u32 v%d, v%d, 4, v%d" % (vg2, t1, vg2))
    I("s_lshl_b32 s%d, s%d, 6" % (S_T1, S_JM))
    I("v_add_u32 v%d, s%d, v%d" % (vg2, S_T1, vg2))
    I("s_lshl_b32 s%d, s%d, 15" % (S_T2, S_W))
    I("s_add_u32 s%d, s%d, %d" % (S_T2, S_T2, L_STAGE))
    RV_, RO_ = 32, 96

    def safe(i):
        for l in filler[i:]:
            op = l.split()[0]
            if op.startswith(("s_cselect", "s_addc", "s_cmov", "s_cbranch")):
                return False
            if op.startswith(("s_cmp", "s_bitcmp", "s_add", "s_and", "s_lsh", "s_xor", "s_or", "s_bfe", "s_sub")):
                return True
        return True
    cut = [next(i for i in range(p * len(filler) // 8, len(filler) + 1) if safe(i)) for p in range(9)]
    I("s_bitcmp1_b32 s%d, 1" % S_JQ)
    I("s_cselect_b32 s%d, s%d, s%d" % (S_TMPSRD, ptr(B_WK), ptr(B_WQ)))
    I("s_cselect_b32 s%d, s%d, s%d" % (S_TMPSRD + 1, ptr(B_WK) + 1, ptr(B_WQ) + 1))
    I("s_and_b32 s%d, s%d, 0xffff" % (S_TMPSRD + 1, S_TMPSRD + 1))
    I("s_mov_b32 s%d, 0x%x" % (S_TMPSRD + 2, 8 * MB))
    I("s_mov_b32 s%d, 0x00020000" % (S_TMPSRD + 3))
    a.srd(4, ptr(B_WV), 0, 8 * MB)
    a.srd(40, ptr(B_WO), 0, 8 * MB)
    for p in range(8):
        for l in filler[cut[p]:cut[p + 1]] if p else []:
            a.raw(l)
        if TOUR and 1 <= p <= TG:
            align.hop(a, "ct", S_W, [None] + [3 * (p - 1) + k for k in range(3)], "ct_ret%d" % p)
        if p == 2:
            lc = a.uid("L_cal")
            I("s_or_b32 s76, s%d, s%d" % (S_X, S_W))
            I("s_or_b32 s76, s76, s2")
            I("s_cbranch_scc1 %s" % lc)
            I("s_waitcnt lgkmcnt(0)")
            I("s_lshr_b32 s74, s95, 8")
            I("s_cmp_ge_u32 s74, 15")
            I("s_cbranch_scc1 %s" % lc)
            kvs.calibrate(a, 74, False, 76, 64)
            a.L(lc)
        if p == 6:
            kvs.ROLE[1](a, (S_X, 0), S_W, 76, ABORT[0])
        if p >= 6:
            I("s_waitcnt vmcnt(44)")
        for i in range(4 * p, 4 * p + 4):
            I("s_add_u32 m0, s%d, %d" % (S_T2, i * 1024))
            I("s_mov_b32 s%d, %d" % (S_T3, (i >> 1) * 16 * 8192))
            I("buffer_load_dwordx4 v%d, s[%d:%d], s%d offen%s lds" % (vq + (i & 1), S_TMPSRD, S_TMPSRD + 3, S_T3, WNT))
        for i in range(2 * p, 2 * p + 2):
            I("s_mov_b32 s%d, %d" % (S_T3, i * 16 * 8192))
            I("buffer_load_dwordx4 v[%d:%d], v%d, s[4:7], s%d offen%s" % (RV_ + 4 * i, RV_ + 4 * i + 3, vg, S_T3, WNT))
            I("s_mov_b32 s%d, %d" % (S_T3, (32 * (i >> 1) + 8 * (i & 1)) * 2048))
            I("buffer_load_dwordx4 v[%d:%d], v%d, s[40:43], s%d offen%s" % (RO_ + 4 * i, RO_ + 4 * i + 3, vg2, S_T3, WNT))
        if p == 0:
            for l in filler[:cut[1]]:
                a.raw(l)
    a.L("ct_from")
    mid()
    I("v_bfe_u32 v%d, v0, 4, 2" % t0)
    I("v_lshlrev_b32 v%d, 3, v%d" % (t0, t0))
    I("v_bfe_u32 v%d, v0, 2, 2" % va)
    I("v_add_u32 v%d, v%d, v%d" % (t0, t0, va))
    I("v_and_b32 v%d, 3, v0" % t1)
    I("v_bfe_u32 v%d, v0, 3, 1" % vq)
    I("v_lshlrev_b32 v%d, 7, v%d" % (va, t0))
    I("v_and_b32 v%d, 1, v0" % (vq + 1))
    I("v_lshl_add_u32 v%d, v%d, 5, v%d" % (va, vq + 1, va))
    I("v_bfe_u32 v%d, v0, 1, 1" % (vq + 1))
    I("v_lshl_add_u32 v%d, v%d, 3, v%d" % (va, vq + 1, va))
    I("v_lshl_add_u32 v%d, v%d, 4, v%d" % (va, vq, va))
    for X in range(2):
        I("s_lshr_b32 s%d, s%d, 1" % (S_T1, S_W))
        I("s_xor_b32 s%d, s%d, %d" % (S_T1, S_T1, X ^ 1))
        I("s_lshl_b32 s%d, s%d, 6" % (S_T1, S_T1))
        I("s_add_u32 s%d, s%d, s%d" % (S_T1, S_T1, S_T2))
        I("v_add_u32 v%d, s%d, v%d" % (vr_ + 2 * X, S_T1, va))
        I("v_xor_b32 v%d, 256, v%d" % (vr_ + 2 * X + 1, vr_ + 2 * X))
    for b in range(4):
        I("s_waitcnt vmcnt(%d)" % min(44, 9 + 16 * (3 - b)))
        for t in range(4):
            d = a_qk(t, b)
            for u, o in enumerate((0, 4, 32, 36)):
                I("ds_read_b64_tr_b16 a[%d:%d], v%d offset:%d" % (d + 2 * u, d + 2 * u + 1, vr_ + t, (b * 64 + o) * 128))
            if t & 1:
                I("s_waitcnt lgkmcnt(0)")
    I("v_add_u32 v%d, s%d, v%d" % (vw, S_T2, V_LIN))
    I("v_lshlrev_b32 v%d, 6, v%d" % (va, t0))
    I("v_add_u32 v%d, s%d, v%d" % (va, S_T2, va))
    I("v_lshl_add_u32 v%d, v%d, 3, v%d" % (vr_ + 2, t1, va))
    I("v_lshl_add_u32 v%d, v%d, 5, v%d" % (vr_ + 2, vq, vr_ + 2))
    I("v_xor_b32 v%d, 128, v%d" % (vr_ + 3, vr_ + 2))
    for vb, areg, vra, half, cnt in ((RV_, a_v, vr_ + 2, 0, 0), (RO_, a_wo, vr_ + 2, 1, 0)):
        if half == 0:
            I("s_waitcnt vmcnt(0)")
            late()
        for i in range(16):
            I("ds_write_b128 v%d, v[%d:%d] offset:%d" % (vw, vb + 4 * i, vb + 4 * i + 3, half * 16384 + i * 1024))
        I("s_waitcnt lgkmcnt(0)")
        for b in range(4):
            for t in range(2):
                d = areg(t, b)
                for u, o in enumerate((0, 4, 32, 36)):
                    I("ds_read_b64_tr_b16 a[%d:%d], v%d offset:%d" % (d + 2 * u, d + 2 * u + 1, vra + t, half * 16384 + (b * 64 + o) * 64))
            I("s_waitcnt lgkmcnt(0)")


def blk_addr(d, delta):
    out = ["s_add_u32 s%d, s%d, %d" % (S_T1, S_STEP, delta)]
    if delta >= 0:
        out += ["s_min_u32 s%d, s%d, %d" % (S_T1, S_T1, 0 if 'samekv' in ABL else 63)]
    return out + ["s_lshl_b32 s%d, s%d, 21" % (d, S_T1), "s_lshl_b32 s%d, s%d, 13" % (S_T1, S_T1), "s_and_b32 s%d, s%d, 0x2000" % (S_T1, S_T1),
                  "s_xor_b32 s%d, s%d, s%d" % (S_T1, S_T1, S_KVB), "s_add_u32 s%d, s%d, s%d" % (d, d, S_T1)]


def kv_dma(w):
    if 'nopf' in ABL:
        return []
    ld = lambda v, o: "buffer_load_dwordx4 v%d, %s, s%d offen offset:%d lds" % (v, W, S_KV, o)
    if w == 't':
        return ["buffer_load_dword v%d, v%d, %s, s%d offen" % (V_SMP + 2, V_D1, W, S_KV)]
    grp = lambda base, v, o0, n: ["s_mov_b32 m0, %d" % base, "s_nop 0"] + [ld(v, (o0 + i) * 1024) for i in range(n)]
    if w == 'kb':
        return grp(L_KV, V_LIN, 0, 4) + grp(L_KV + 4096, V_B4, 0, 4)
    if w == 'b1':
        return grp(L_KV, V_LIN, 0, 4) + grp(L_KV + 4096, V_B4, 0, 2)
    if w == 'b2':
        return grp(L_Q, V_B4 + 1, 0, 4) + grp(L_Q + 4096, V_B4 + 2, 0, 3)
    if w == 'b3':
        return grp(L_KV + 4096, V_B4, 2, 2) + grp(L_KV + 8192, V_D2, 0, 2) + grp(L_Q + 4096, V_B4 + 2, 3, 1)
    if w == 't2':
        return ["buffer_load_dword v%d, v%d, %s, s%d offen sc1" % (V_SMP + 2, V_D1, W, S_TCH)]
    if w in ('k', 'q'):
        return ["s_add_u32 m0, s%d, %d" % (S_KVL - 3, L_KV if w == 'k' else L_Q)] + [ld(V_KQ + (w == 'q'), i * 1024) for i in range(2)]
    if w == 'v':
        return ["s_mov_b32 m0, %d" % (L_KV + 8192), "s_nop 0"] + [ld(V_D2, i * 1024) for i in range(2)]
    return ["s_mov_b32 m0, s%d" % S_KVL, "s_nop 0"] + [ld(V_D0, i * 1024) for i in range(4)]


def xatt1():
    kf = lambda i: V_KF + 4 * i
    o = []
    for c in range(4):
        o += ["ds_read_b128 v[%d:%d], v%d offset:%d" % (V_XQ + 4 * c, V_XQ + 4 * c + 3, V_XQA, L_Q + c * 1024)]
        o += ["ds_read_b128 v[%d:%d], v%d offset:%d" % (kf(2 * c + t), kf(2 * c + t) + 3, V_LIN, L_KV + (t * 4 + c) * 1024) for t in range(2)]
    o += ["ds_read_b128 v[%d:%d], v%d offset:%d" % (V_VT + 4 * t, V_VT + 4 * t + 3, V_LIN, L_KV + 8192 + t * 1024) for t in range(2)]
    for c in range(4):
        o += ["s_waitcnt lgkmcnt(%d)" % (11 - 3 * c)]
        o += ["v_mfma_f32_16x16x32_bf16 v[%d:%d], v[%d:%d], v[%d:%d], %s" % (d, d + 3, kf(2 * c + t), kf(2 * c + t) + 3, V_XQ + 4 * c, V_XQ + 4 * c + 3, "0" if c == 0 else "v[%d:%d]" % (d, d + 3))
              for t, d in enumerate((V_S0, V_S1))]
    post = ["v_cvt_pk_bf16_f32 v%d, 0, v%d" % (v, v) for v in range(V_S0, V_S0 + 8)]
    post += ["v_pk_mul_f32 v[%d:%d], v[%d:%d], s[%d:%d]" % (p, p + 1, p, p + 1, S_SCL, S_SCL + 1) for p in range(V_S0, V_S0 + 8, 2)]
    post += post[:8]
    post += [pk("add", V_S0 + i, V_S0 + i, V_XB + i) for i in range(0, 8, 2)]
    m, t = V_XT, V_XT + 1
    post += ["v_max3_f32 v%d, v%d, v%d, v%d" % (m, V_S0, V_S0 + 1, V_S0 + 2), "v_max3_f32 v%d, v%d, v%d, v%d" % (t, V_S0 + 3, V_S1, V_S1 + 1),
             "v_max3_f32 v%d, v%d, v%d, v%d" % (m, m, V_S1 + 2, V_S1 + 3), "v_max_f32 v%d, v%d, v%d" % (m, m, t)]
    return o, post


def xatt2():
    SM, m, t, sm = V_S2, V_XT, V_XT + 1, V_XT + 2
    o = ["ds_read_b128 v[%d:%d], v%d offset:%d" % (V_XKM + 4 * c, V_XKM + 4 * c + 3, V_XKA, L_QXC + c * 512) for c in range(4)]
    for c in range(4):
        o += ["s_waitcnt lgkmcnt(%d)" % (3 - c),
              "v_mfma_f32_16x16x32_bf16 v[%d:%d], v[%d:%d], v[%d:%d], %s" % (SM, SM + 3, V_XKM + 4 * c, V_XKM + 4 * c + 3, V_XQ + 4 * c, V_XQ + 4 * c + 3, "0" if c == 0 else "v[%d:%d]" % (SM, SM + 3))]
    rn = ["v_cvt_pk_bf16_f32 v%d, 0, v%d" % (v, v) for v in (SM, SM + 1)]
    o += ["s_nop 7"] + rn + ["v_pk_mul_f32 v[%d:%d], v[%d:%d], s[%d:%d]" % (SM, SM + 1, SM, SM + 1, S_SCL, S_SCL + 1)] + rn
    o += ["v_max3_f32 v%d, v%d, v%d, v%d" % (m, m, SM, SM + 1)]

    def xred(op, v):
        r = []
        for sw in ("v_permlane16_swap_b32", "v_permlane32_swap_b32"):
            r += ["v_mov_b32 v%d, v%d" % (t, v), "s_nop 1", "%s v%d, v%d" % (sw, v, t), "%s v%d, v%d, v%d" % (op, v, v, t)]
        return r
    prs = [V_S0, V_S0 + 2, V_S1, V_S1 + 2, SM]
    o += xred("v_max_f32", m) + ["v_mul_f32 v%d, s%d, v%d" % (m, S_C, m)]
    o += ["v_pk_fma_f32 v[%d:%d], v[%d:%d], s[%d:%d], v[%d:%d] op_sel_hi:[1,1,0] neg_lo:[0,0,1] neg_hi:[0,0,1]" % (p, p + 1, p, p + 1, S_C, S_C + 1, m, m + 1) for p in prs]
    o += ["v_exp_f32 v%d, v%d" % (v, v) for v in range(V_S0, V_S0 + 10)]
    o += [pk("add", sm, V_S0, V_S0 + 2), pk("add", sm + 2, V_S1, V_S1 + 2), pk("add", sm, sm, SM), pk("add", sm, sm, sm + 2), "v_add_f32 v%d, v%d, v%d" % (sm, sm, sm + 1)]
    o += xred("v_add_f32", sm) + ["v_rcp_f32 v%d, v%d" % (sm, sm), "s_nop 0"]
    o += [pk("mul", p, p, sm, " op_sel_hi:[1,0]") for p in prs]
    o += ["v_cvt_pk_bf16_f32 v%d, v%d, v%d" % (V_P + i, V_S0 + 2 * i, V_S0 + 2 * i + 1) for i in range(4)]
    o += ["v_cvt_pk_bf16_f32 v%d, v%d, v%d" % (V_P + 4, SM, SM + 1), "v_cvt_pk_bf16_f32 v%d, v%d, v%d" % (V_P + 7, SM, SM + 1)]
    o += ["v_mfma_f32_16x16x32_bf16 v[%d:%d], v[%d:%d], v[%d:%d], 0" % (V_O + 4 * tt, V_O + 4 * tt + 3, V_VT + 4 * tt, V_VT + 4 * tt + 3, V_P, V_P + 3) for tt in range(2)]
    o += ["v_mfma_f32_16x16x16_bf16 v[%d:%d], v[%d:%d], v[%d:%d], v[%d:%d]" % (
        V_O + 4 * tt, V_O + 4 * tt + 3, V_VM, V_VM + 1, V_P + 4 + 2 * tt, V_P + 5 + 2 * tt, V_O + 4 * tt, V_O + 4 * tt + 3) for tt in range(2)]
    fin = ["v_cvt_pk_bf16_f32 v%d, v%d, v%d" % (V_O + i, V_O + 2 * i, V_O + 2 * i + 1) for i in range(4)]
    return o, fin


def smf(c, areg, m):
    return "v_smfmac_f32_16x16x64_bf16 v[%d:%d], v[%d:%d], a[%d:%d], v%d" % (c, c + 3, m, m + 3, areg, areg + 7, V_IDX)


def pk(op, d, x, y, extra=""):
    return "v_pk_%s_f32 v[%d:%d], v[%d:%d], v[%d:%d]%s" % (op, d, d + 1, x, x + 1, y, y + 1, extra)


def slot_update():
    out = ["s_add_u32 s%d, s%d, 0x40000" % (S_REL, S_REL),
           "s_and_b32 s%d, s%d, 0xc0000" % (S_REL, S_REL),
           "s_xor_b32 s%d, s%d, 0x80000" % (S_T0, S_REL),
           "s_add_u32 s%d, s%d, s%d" % (S_POI, S_EXB, S_T0)]
    out += ["s_lshl_b32 s%d, s%d, 18" % (S_PX0, S_STEP),
            "s_lshl_b32 s%d, s%d, 10" % (S_T0, S_STEP),
            "s_and_b32 s%d, s%d, 0x2000" % (S_T0, S_T0),
            "s_xor_b32 s%d, s%d, s%d" % (S_T0, S_T0, S_PXB),
            "s_add_u32 s%d, s%d, s%d" % (S_PX0, S_PX0, S_T0),
            "s_add_u32 s%d, s%d, 0x20000" % (S_PX1, S_PX0)]
    out += ["s_add_u32 s%d, s%d, 0x40000" % (S_T0, S_REL),
            "s_and_b32 s%d, s%d, 0xc0000" % (S_T0, S_T0),
            "s_add_u32 s%d, s%d, s%d" % (S_NXT, S_EXB, S_T0)]
    return out


STAMPF = [None]


def step_body(a, name, stamp0):
    I = a.I
    STAMPF[0] = stamp0
    stamp = (lambda i: None if i in (1, 2, 8, 7) else stamp0(i)) if os.environ.get("GST") else stamp0
    loop, done = name + "_loop", name + "_done"
    lhelp, lb4 = a.uid("L_help"), a.uid("L_b4")
    if E("ALN", 0) >= 0:
        I("s_branch %s" % loop)
        a.raw(".p2align 8")
        for _ in range(E("ALN", 0)):
            I("s_nop 0")
    a.L(loop)
    stamp(0)
    a.C("==== Q phase")
    zero = ["v_mov_b32 v%d, 0" % (V_AQ + i) for i in range(16)]
    PADW = list(zero) if E("PADP", 0) >= 16 else []
    XN2 = E("XN2", 0)
    xt = xatt2()[0][-XN2:] if XN2 else []
    work = ["s_mov_b32 s%d, s%d" % (S_CUR, S_NXT)] + xt + ([] if PADW else zero) + slot_update()
    if OSTA:
        work += xatt2()[1] + blk_addr(S_KM, -1) + ["s_or_b32 s%d, s%d, s%d" % (S_KM, S_KM, S_W01)]
    if TCHA:
        work += blk_addr(S_KV, 1) + ["s_cmp_eq_u32 s%d, 0" % S_STEP, "s_cselect_b32 s%d, 0x%x, s%d" % (S_T1, 0xf0000000, S_WT), "s_or_b32 s%d, s%d, s%d" % (S_KV, S_KV, S_T1)]
    fill(a, work, max(PRE_Q, 1))
    loads = ["buffer_load_dwordx4 v[%d:%d], v%d, %s, s%d offen offset:%d sc1" % (V_M + 4 * b, V_M + 4 * b + 3, V_GLD, W, S_CUR, b * 1024) for b in range(4)]
    for b in range(4):
        I(loads[b])
        fill(a, work, PACE if b < 3 else len(work))
    a.C("@pad")
    ver, vbr = gather_fifo(a, "q", loads, [V_AQ, V_AQ + 4], lambda k, ty, b: a_qk(2 * k + ty, b), [V_AV])
    stamp(1)
    vm = [smf(V_AV, a_v(t, b), (V_M, V_MR)[t] + 4 * b) for b in range(4) for t in range(2)]
    for l in ver[:4]:
        I(l)
    I("ds_write_b64 v%d, v[%d:%d] offset:%d" % (V_RQW, V_AQ, V_AQ + 1, L_RQK))
    I("ds_write_b64 v%d, v[%d:%d] offset:%d" % (V_RQW + 1, V_AQ + 2, V_AQ + 3, L_RQK))
    for l in ver[4:6]:
        I(l)
    I("ds_write_b64 v%d, v[%d:%d] offset:%d" % (V_RQW + 2, V_AQ + 4, V_AQ + 5, L_RQK))
    kd_ = kv_dma('k') if 'A' in KQW else []
    for l in kd_[:1] + ver[6:] + kd_[1:]:
        I(l)
    for _ in range(VPRE):
        I(vm.pop(0))
    a.C("@pad")
    I(vbr)
    I("s_waitcnt lgkmcnt(0)")
    I("s_barrier")
    for i in range(3):
        I("ds_read_b64 v[%d:%d], v%d offset:%d" % (V_R + 2 * i, V_R + 2 * i + 1, V_RQR, L_RQK + i * 512))
    if OSTA and 'nopub' not in ABL:
        I("buffer_store_dwordx4 v[%d:%d], v%d, %s, s%d offen sc1" % (V_O, V_O + 3, V_H1, W, S_KM))
    if TCHA:
        I("buffer_load_dword v%d, v%d, %s, s%d offen" % (V_SMP + 2, V_H3, W, S_KV))
    for _ in range(VMID):
        I(vm.pop(0))
    A = V_AQ + 6
    a.C("@pad")
    I("s_waitcnt lgkmcnt(2)")
    I(pk("add", A, A, V_R))
    I("s_waitcnt lgkmcnt(0)")
    I(pk("add", V_R + 2, V_R + 2, V_R + 4))
    I(pk("add", A, A, V_R + 2))
    I("v_cvt_pk_bf16_f32 v%d, v%d, v%d" % (A, A, A + 1))
    I("s_cmp_lg_u32 s%d, 0" % S_W)
    I("s_nop 0")
    I("v_mov_b32_dpp v%d, v%d quad_perm:[1,0,3,2] row_mask:0xf bank_mask:0xf" % (A + 1, A))
    I("v_perm_b32 v%d, v%d, v%d, v%d" % (A, A + 1, A, V_SEL))
    I("v_min_u32 v%d, 0xfffffffe, v%d" % (A, A))
    I("buffer_store_dword v%d, v%d, %s, s%d offen" % (A, V_QXST, W, S_CUR))
    late = len(vm) > 0
    for l in vm:
        I(l)
    if late:
        I("s_nop 7")
    I("ds_write_b128 v%d, v[%d:%d] offset:%d" % (V_RW, V_AV, V_AV + 3, L_RV))
    I("s_cbranch_scc1 %s" % lhelp)
    stamp(2)
    a.C("==== S phase, wave 0")
    NS = E("NSET", 3)
    ql = [["buffer_load_dwordx4 v[%d:%d], v%d, %s, s%d offen offset:%d sc1" % (q + 4 * c, q + 4 * c + 3, V_QXLD, W, S_CUR, c * 1024) for c in range(4)] for q in V_QS[:NS]]
    work = ["ds_read_b128 v[%d:%d], v%d offset:%d" % (V_KF + 4 * i, V_KF + 4 * i + 3, V_LIN, L_KV + i * 1024) for i in range(10)]
    if E("B2E", 1):
        I("s_waitcnt %slgkmcnt(0)" % ("vmcnt(%d) " % (1 + OSTA + (TCHA > 0)) if 'A' in KQW else ""))
        I("s_barrier")
        fill(a, work, PRE_S)
        for l in ql[0]:
            I(l)
    else:
        fill(a, [], PRE_S)
        for l in ql[0]:
            I(l)
        I("s_waitcnt %slgkmcnt(0)" % ("vmcnt(%d) " % (5 + OSTA + (TCHA > 0)) if 'A' in KQW else ""))
        I("s_barrier")
    for k in range(1, NS):
        fill(a, work, GAP_S - (4 if k == 1 and not E("B2E", 1) else 0))
        for l in ql[k]:
            I(l)
    for l in work:
        I(l)
    I("s_waitcnt lgkmcnt(0)")
    a.C("@pad")
    lsd = a.uid("L_sd")
    ror = lambda d, s, bm: "v_mov_b32_dpp v%d, v%d row_ror:8 row_mask:0xf bank_mask:0x%x" % (d, s, bm)
    slab = lambda k, c: "%s_%d_%d" % (lsd, k, c)
    for k in range(NS + 1):
        out, stubs = [], []
        for c in range(4):
            r = V_QS[k % NS] + 4 * c
            dst = V_SC[c] if c < 3 else V_S0
            mf = lambda i, ar_: "    v_mfma_f32_16x16x32_bf16 v[%d:%d], v[%d:%d], v[%d:%d], %s" % (
                dst + 4 * i, dst + 4 * i + 3, ar_, ar_ + 3, r, r + 3, "0" if c == 0 else "v[%d:%d]" % (V_SC[c - 1] + 4 * i, V_SC[c - 1] + 4 * i + 3))
            f = slab(k, c) + "f"
            direct = k < NS - 1 and os.environ.get("STAMP") != "2"
            out += [slab(k, c) + ":", "    s_waitcnt vmcnt(%d)" % (4 * max(NS - 1 - k, 0) + 3 - c),
                    "    v_max3_u32 v%d, v%d, v%d, v%d" % (V_CHK, r, r + 1, r + 2), mf(2, r),
                    "    v_max_u32 v%d, v%d, v%d" % (V_CHK, V_CHK, r + 3),
                    "    v_cmp_eq_u32 vcc, -1, v%d" % V_CHK,
                    mf(1, V_KF + 16 + 4 * c), mf(0, V_KF + 4 * c)]
            if c == 3:
                out += ["    " + ror(V_S2, V_S2 + 1, 0xc), "    " + ror(V_S2 + 2, V_S2 + 3, 0xc)]
            out += ["    s_cbranch_vccnz %s" % (slab(k + 1, c) if direct else f)]
            if k < NS - 1:
                stubs += [f + ":"] + ["    " + l for l in spin_lines(1, False)] + ["    s_branch %s" % slab(k + 1, c)]
            else:
                stubs += [f + ":"] + ["    " + l for l in ql[0][c:] + spin_lines(1)] + ["    s_branch %s" % slab(NS, c)]
        if k == 0:
            for l in out:
                a.raw(l)
        else:
            COLD.extend(out + ["    s_branch %s" % lsd])
        COLD.extend(stubs)
    a.L(lsd)
    I("s_barrier")
    stamp(8)
    ror = lambda d, s, bm: "v_mov_b32_dpp v%d, v%d row_ror:8 row_mask:0xf bank_mask:0x%x" % (d, s, bm)
    rnd = lambda v: "v_cvt_pk_bf16_f32 v%d, 0, v%d" % (v, v)
    A0, F, m, t = V_S0, V_S2 + 2, V_T, V_T + 1
    I("v_permlane32_swap_b32 v%d, v%d" % (V_S2, V_S2 + 2))
    I("ds_read_b64 v[%d:%d], v%d offset:%d" % (V_VM, V_VM + 1, V_L8, L_VMF))
    I("s_cmp_eq_u32 s%d, %d" % (S_STEP, LAST))
    I("s_cbranch_scc1 %s" % (name + "_fin"))
    for i in range(4):
        I(ror(A0 + i, V_S1 + i, 0xc))
    I("v_max3_f32 v%d, v%d, v%d, v%d" % (m, F, A0, A0 + 1))
    I("v_max3_f32 v%d, v%d, v%d, v%d" % (m, m, A0 + 2, A0 + 3))
    I(rnd(A0))
    I(rnd(A0 + 1))
    I("v_max_f32_dpp v%d, v%d, v%d row_ror:8 row_mask:0xf bank_mask:0xf" % (m, m, m))
    I("v_mov_b32 v%d, v%d" % (t, m))
    I(rnd(A0 + 2))
    I(rnd(A0 + 3))
    I("v_permlane16_swap_b32 v%d, v%d" % (m, t))
    I(rnd(F))
    I("v_max_f32 v%d, v%d, v%d" % (m, m, t))
    I("v_mov_b32 v%d, v%d" % (t, m))
    I("v_pk_mul_f32 v[%d:%d], v[%d:%d], s[%d:%d]" % (A0, A0 + 1, A0, A0 + 1, S_SCL, S_SCL + 1))
    I("v_pk_mul_f32 v[%d:%d], v[%d:%d], s[%d:%d]" % (A0 + 2, A0 + 3, A0 + 2, A0 + 3, S_SCL, S_SCL + 1))
    I("v_permlane32_swap_b32 v%d, v%d" % (m, t))
    I("v_mul_f32 v%d, s%d, v%d" % (F, S_SCL, F))
    I("v_max_f32 v%d, v%d, v%d" % (m, m, t))
    I(rnd(F))
    I(rnd(m))
    I(rnd(A0))
    I("v_mul_f32 v%d, s%d, v%d" % (m, S_SCL, m))
    I(rnd(A0 + 1))
    I(rnd(m))
    I(rnd(A0 + 2))
    I("v_mul_f32 v%d, s%d, v%d" % (m, S_C, m))
    I(rnd(A0 + 3))
    pf = lambda i: "v_pk_fma_f32 v[%d:%d], v[%d:%d], s[%d:%d], v[%d:%d] op_sel_hi:[1,1,0] neg_lo:[0,0,1] neg_hi:[0,0,1]" % (A0 + i, A0 + i + 1, A0 + i, A0 + i + 1, S_C, S_C + 1, m, m + 1)
    ex = lambda v: "v_exp_f32 v%d, v%d" % (v, v)
    sm = V_S1
    mm = lambda d, x: "v_mfma_f32_16x16x32_bf16 v[%d:%d], v[%d:%d], v[%d:%d], v[%d:%d]" % (d, d + 3, x, x + 3, V_P, V_P + 3, d, d + 3)
    m16 = lambda d, x, tt: "v_mfma_f32_16x16x16_bf16 v[%d:%d], v[%d:%d], v[%d:%d], 0" % (d, d + 3, x, x + 1, V_P + 4 + 2 * tt, V_P + 5 + 2 * tt)
    for l in ["v_fma_f32 v%d, v%d, s%d, -v%d" % (F, F, S_C, m), pf(0), ex(F), pf(2), ex(A0), ror(t, F, 0xf), ex(A0 + 1),
              "v_cvt_pk_bf16_f32 v%d, v%d, v%d" % (V_P + 4, F, t), "v_cvt_pk_bf16_f32 v%d, v%d, v%d" % (V_P + 7, F, t), ex(A0 + 2),
              m16(sm, V_ONEB, 0), ex(A0 + 3), "s_waitcnt lgkmcnt(0)", m16(V_O, V_VM, 0),
              "v_cvt_pk_bf16_f32 v%d, v%d, v%d" % (V_P, A0, A0 + 1), "v_cvt_pk_bf16_f32 v%d, v%d, v%d" % (V_P + 1, A0 + 2, A0 + 3),
              m16(V_O + 4, V_VM, 1), ror(V_P + 2, V_P, 0xf), ror(V_P + 3, V_P + 1, 0xf),
              "s_mov_b64 exec, s[%d:%d]" % (S_M8, S_M8 + 1), "s_nop 0",
              mm(sm, V_ONEB), mm(V_O, V_VT), mm(V_O + 4, V_VT + 4), "s_nop 0",
              "v_rcp_f32 v%d, v%d" % (sm, sm), "s_nop %d" % E("ANOP", 1)]:
        I(l)
    for h in range(2):
        for i in (4 * h, 4 * h + 2):
            I(pk("mul", V_O + i, V_O + i, sm, " op_sel_hi:[1,0]"))
        for i in (2 * h, 2 * h + 1):
            I("v_cvt_pk_bf16_f32 v%d, v%d, v%d" % (V_O + i, V_O + 2 * i, V_O + 2 * i + 1))
    for i in range(4):
        I("v_min_u32 v%d, 0xfffffffe, v%d" % (V_O + i, V_O + i))
    I("buffer_store_dwordx4 v[%d:%d], v%d, %s, s%d offen" % (V_O, V_O + 3, V_OXST, W, S_CUR))
    I("s_mov_b64 exec, -1")
    stamp(7)
    a.L(lb4)
    I("s_barrier")
    stamp(3)
    a.C("==== O phase")
    work = ([] if SB else blk_addr(S_KV, 1)) + ["s_add_u32 s%d, s%d, 1" % (S_STEP, S_STEP)]
    fill(a, work, max(PRE_O, len(work)))
    loads = ["buffer_load_dwordx4 v[%d:%d], v%d, %s, s%d offen offset:%d sc1" % (V_M + 4 * b, V_M + 4 * b + 3, V_OLD, W, S_CUR, b * 1024) for b in range(4)]
    for b in range(4):
        I(loads[b])
        if b < 3:
            fill(a, work, PACE)
    a.C("@pad")
    ver, vbr = gather_fifo(a, "o", loads, [V_AO], lambda k, ty, b: a_wo(ty, b))
    stamp(4)
    qd_ = (kv_dma('q') if 'C' in KQW else []) or ["s_nop 0"]
    for l in ver + qd_[:1]:
        I(l)
    for e in range(3):
        I("ds_write_b32 v%d, v%d offset:%d" % (V_ROW + e, V_AO + e, L_RO))
    for l in qd_[1:]:
        I(l)
    a.C("@pad")
    I(vbr)
    I("s_waitcnt lgkmcnt(0)")
    I("s_barrier")
    for i in range(3):
        I("ds_read_b32 v%d, v%d offset:%d" % (V_R + i, V_ROR, L_RO + i * 256))
    I("s_cmp_lt_u32 s%d, 2" % S_W)
    I("s_waitcnt lgkmcnt(2)")
    I("v_add_f32 v%d, v%d, v%d" % (V_R, V_R, V_AO + 3))
    I("s_waitcnt lgkmcnt(0)")
    I("v_add_f32 v%d, v%d, v%d" % (V_R + 1, V_R + 1, V_R + 2))
    I("v_add_f32 v%d, v%d, v%d" % (V_R, V_R, V_R + 1))
    if PXH:
        I("v_cvt_pk_bf16_f32 v%d, 0, v%d" % (V_R, V_R))
    I("v_min_u32 v%d, 0x%x, v%d" % (V_R, 0xfffe0000 if PXH else 0xfffffffe, V_R))
    pst = ["buffer_store_%s v%d, v%d, %s, s%d offen sc1" % ("short_d16_hi" if PXH else "dword", V_R, V_PXST, W, S_PX0 + r) for r in range(NREP)]
    I(pst[0])
    stamp(5)
    a.C("==== P phase")
    x2, x2fin = xatt2()
    if 'nox' in ABL:
        x2 = []
    n0, n1 = E("XN0", 23), E("XN1", 22)
    NSH = max(2, NREP)
    VL = (V_L, V_L + 3, V_R + 2)
    pl = [["buffer_load_%s v%d, v%d, %s, s%d offen sc1" % ("short_d16_hi" if PXH else "dword", VL[k] + i, V_PXLD + i, W, S_PX0 + min(k, NREP - 1)) for i in range(3)] for k in range(NSH)]
    x2 = x2[:len(x2) - XN2]
    x2 = x2[:E("ST1", 0)] + pst[1:] + x2[E("ST1", 0):]
    if PXH:
        x2 = x2[:4] + ["v_mov_b32 v%d, 0" % (VL[k] + i) for k in range(NSH) for i in range(3)] + x2[4:]
        n0 += 3 * NSH
    n0 += NREP - 1
    cuts = [0, n0, n0 + n1, n0 + n1 + E("XN3", 20)][:NSH + 1]
    for k in range(NSH):
        for l in x2[cuts[k]:cuts[k + 1]]:
            I(l)
        fill(a, [], GAP_P if k else PRE_P)
        for l in pl[k]:
            I(l)
    rest = x2[cuts[NSH]:]
    kq = {"D": kv_dma('kq'), "AC": [], "CD": kv_dma('k')[:1] + ["s_nop 0"] + kv_dma('k')[1:], "AD": kv_dma('q')[:1] + ["s_nop 0"] + kv_dma('q')[1:], "B": [], "C": [], "Q": kv_dma('q')[:1] + ["s_nop 0"] + kv_dma('q')[1:]}[KQW]
    kd = E("KQD", 6)
    for l in kq[:1]:
        I(l)
    for i, l in enumerate(kq[2:]):
        for x in rest[kd * i:kd * i + kd] or ["s_nop 0"]:
            I(x)
        I(l)
    for l in rest[kd * len(kq[2:]):]:
        I(l)
    nd = len(kq[2:])
    a.C("@pad")
    fill(a, PADW, E("PADP", 0))
    lpd = a.uid("L_pd")

    def rsum(k, other, extra):
        L = VL[k]
        f = a.uid("L_pf")
        y = 3 * (NSH - 1) + extra
        out = ["s_waitcnt vmcnt(%d)" % (2 + y), "v_add_f32 v%d, v%d, v%d" % (V_T, V_R, L), "s_waitcnt vmcnt(%d)" % y,
               "v_max3_u32 v%d, v%d, v%d, v%d" % (V_CHK, L, L + 1, L + 2),
               "v_add_f32 v%d, v%d, v%d" % (V_T + 1, L + 1, L + 2),
               "v_cmp_eq_u32 vcc, %s, v%d" % ("0xffff0000" if PXH else "-1", V_CHK),
               "v_add_f32 v%d, v%d, v%d" % (V_T, V_T, V_T + 1),
               "s_nop 1",
               "v_mov_b32_dpp v%d, v%d quad_perm:[1,0,3,2] row_mask:0xf bank_mask:0xf" % (V_T + 1, V_T),
               "s_mov_b64 exec, s[%d:%d]" % (S_EV, S_EV + 1),
               "v_cvt_pk_bf16_f32 v%d, v%d, v%d" % (V_T, V_T, V_T + 1),
               "v_min_u32 v%d, 0xfffffffe, v%d" % (V_T, V_T),
               "s_cbranch_vccnz %s" % f]
        stub = [f + ":"] + ["    " + l for l in ["s_mov_b64 exec, -1"] + pl[k] + spin_lines(3)] + ["    s_branch %s" % other]
        return out, stub
    plab = lambda i: "%s_%d" % (lpd, i)
    for i in range(2 * NSH):
        out, stub = rsum(i % NSH, plab(i + 1 if i + 1 < 2 * NSH else NSH), nd if i < NSH else 0)
        if i == 0:
            for l in out:
                I(l)
        else:
            COLD.extend([plab(i) + ":"] + ["    " + l for l in out] + ["    s_branch %s" % lpd])
        COLD.extend(stub)
    a.L(lpd)
    I("buffer_store_dword v%d, v%d, %s, s%d offen" % (V_T, V_MEMST, W, S_NXT))
    I("s_mov_b64 exec, -1")
    stamp(6)
    I("s_branch %s" % loop)

    a.L(lhelp)
    I("s_waitcnt %slgkmcnt(0)" % ("vmcnt(%d) " % (1 + OSTA + (TCHA > 0)) if 'A' in KQW else ""))
    I("s_barrier")
    lw2, lw3, lhe = a.uid("L_w2"), a.uid("L_w3"), a.uid("L_he")
    if os.environ.get("STAMP") == "2":
        stamp(2)
        I("s_waitcnt lgkmcnt(0)")
    I("s_cmp_ge_u32 s%d, 2" % S_W)
    I("s_cbranch_scc1 %s" % lw2)
    a.C("---- wave 1: reduce v, gate, K prefetch, poison, progress word")
    GA = 2
    for i, src in enumerate((0, 2, 3)):
        I("ds_read_b128 v[%d:%d], v%d offset:%d" % (V_R + 4 * i, V_R + 4 * i + 3, V_LIN, L_RV + src * 1024))
    for i, src in enumerate((0, 2, 3)):
        I("s_waitcnt lgkmcnt(%d)" % (2 - i))
        for k in (0, 2):
            I(pk("add", V_AV + k, V_AV + k, V_R + 4 * i + (k if src & 1 else k ^ 2)))
    for tt in range(2):
        I("v_cvt_pk_bf16_f32 v%d, v%d, v%d" % (V_VM + tt, V_AV + 2 * tt, V_AV + 2 * tt + 1))
    I("s_nop 1")
    I("v_permlane32_swap_b32 v%d, v%d" % (V_VM, V_VM + 1))
    I("s_nop 1")
    I("ds_write_b64 v%d, v[%d:%d] offset:%d" % (V_KXW, V_VM, V_VM + 1, L_VMF))
    if SB:
        for l in blk_addr(S_TCH, 2) + kv_dma('t2'):
            I(l)
    if TS:
        fill(a, blk_addr(S_TCH, 1), E("TSD", 40))
        I("buffer_load_dword v%d, v%d, %s, s%d offen sc1" % (V_SMP + 2, V_H3, W, S_TCH))
    I("s_add_u32 s%d, s%d, %d" % (S_T0, S_STEP, GA))
    I("s_min_u32 s%d, s%d, 63" % (S_T0, S_T0))
    kvs.group_word(a, S_T0, S_KM, S_T2)
    I("s_cmp_eq_u32 s%d, %d" % (S_ID, 999 if 'nowork' in ABL else 1))
    I("s_cselect_b32 s%d, s%d, s%d" % (S_KM, S_KM, S_GATE))
    for l in blk_addr(S_KV, 1):
        I(l)
    I("s_waitcnt lgkmcnt(0)")
    lng, lgr, lnf = a.uid("L_nog"), a.uid("L_gr"), a.uid("L_nof")
    I("s_cmp_eq_u32 s%d, s%d" % (S_KM, S_GATE))
    I("s_cbranch_scc1 %s" % lng)
    I("s_load_dword s%d, s[%d:%d], s%d glc" % (S_T2, S_DBG, S_DBG + 1, S_KM))
    a.L(lng)
    I("s_mov_b32 s%d, 1" % S_T3)
    stamp(8)
    I("s_barrier")

    def first_gate():
        if 'nowork' not in ABL:
            lns = a.uid("L_ns0")
            I("s_cmp_lg_u32 s%d, 0" % S_STEP)
            I("s_cbranch_scc1 %s" % lns)
            relay_wait(a, 1)
            a.L(lns)
    first_gate()
    for l in kv_dma('b1') if SB else (kv_dma('t') if TCHA < 2 and TS < 2 else []) + kv_dma('v') + (kv_dma('kb') if KB else []):
        I(l)
    I("s_cmp_lg_u32 s%d, 0" % S_ID)
    I("s_cbranch_scc1 %s" % lnf)
    I("s_atomic_add s%d, s[%d:%d], %d" % (S_T3, S_DBG, S_DBG + 1, D_PROG * 4))
    a.L(lnf)
    poison(a, S_POI)
    I("s_cmp_eq_u32 s%d, s%d" % (S_KM, S_GATE))
    I("s_cbranch_scc1 %s" % lhe)
    I("s_mov_b32 s%d, s%d" % (S_GATE, S_KM))
    a.L(lgr)
    I("s_waitcnt lgkmcnt(0)")
    I("s_cmp_ge_u32 s%d, %d" % (S_T2, NKV))
    I("s_cbranch_scc1 %s" % lhe)
    for l in spin_lines():
        I(l)
    I("s_load_dword s%d, s[%d:%d], s%d glc" % (S_T2, S_DBG, S_DBG + 1, S_KM))
    I("s_branch %s" % lgr)
    a.L(lw2)
    a.C("---- waves 2, 3: x-token attention (query tile w&1), o of the previous step, Q / V prefetch")
    x1, x1post = xatt1()
    ost = "buffer_store_dwordx4 v[%d:%d], v%d, %s, s%d offen sc1" % (V_O, V_O + 3, V_H1, W, S_KM)
    if SB or OSS:
        seq = x1[:14] + x2fin + blk_addr(S_KM, -1) + x1[14:] + (blk_addr(S_KV, 1) + x1post if SB else ["s_nop 6"] + x1post[:E("X1P", 28)])
        if 'nopub' not in ABL:
            seq.insert(E("OSP", 36), ost)
    else:
        seq = x1[:14] + ([] if OSTA else x2fin) + x1[14:] + blk_addr(S_KM, -1) + ["s_nop 0"] + x1post
    for l in seq:
        I(l)
    I("s_cmp_eq_u32 s%d, 3" % S_W)
    I("s_waitcnt lgkmcnt(0)")
    stamp(8)
    I("s_barrier")
    if 'nopub' not in ABL and not OSTA and not SB and not OSS:
        I(ost)
    I("ds_read_b64 v[%d:%d], v%d offset:%d" % (V_VM, V_VM + 1, V_L8, L_VMF))
    if SB:
        I("s_cbranch_scc1 %s" % lw3)
        first_gate()
        for l in kv_dma('b2'):
            I(l)
        I("s_branch %s" % lhe)
        a.L(lw3)
        first_gate()
        for l in kv_dma('b3'):
            I(l)
    else:
        I("s_cbranch_scc0 %s" % lw3)
    for c in range(2):
        I("s_mov_b32 m0, %d" % (L_QXC - c * 1024))
        I("s_nop 0")
        I("buffer_load_dwordx4 v%d, %s, s%d offen offset:%d sc1 lds" % (V_H2, W, S_CUR, c * 2048))
    if not SB:
        a.L(lw3)
        if OSS:
            for l in x1post[E("X1P", 28):]:
                I(l)
    a.L(lhe)
    stamp(7)
    I("s_cmp_lg_u32 s%d, %d" % (S_STEP, LAST))
    I("s_cbranch_scc1 %s" % lb4)
    a.L(name + "_fin")
    I("s_waitcnt vmcnt(0) lgkmcnt(0)")
    I("s_barrier")
    lf = a.uid("L_f2")
    I("s_cmp_lt_u32 s%d, 2" % S_W)
    I("s_cbranch_scc1 %s" % lf)
    for l in xatt2()[0] + blk_addr(S_KM, 0) + ["s_nop 1"] + x2fin + [ost]:
        I(l)
    I("s_waitcnt vmcnt(0)")
    a.L(lf)
    I("s_barrier")
    if DRY:
        I("s_cmp_eq_u32 s%d, 0" % (S_WS + 2))
        I("s_cbranch_scc1 %s_real" % name)
    I("s_cmp_lg_u32 s%d, 0" % S_W)
    I("s_cbranch_scc1 %s" % done)
    I("s_add_u32 s%d, s%d, 4096" % (S_T0, S_LF))
    I("s_mov_b32 s%d, 1" % S_T1)
    I("s_atomic_add s%d, s[%d:%d], s%d" % (S_T1, ptr(D_WS), ptr(D_WS) + 1, S_T0))
    I("s_branch %s" % done)


def poison(a, s_slot):
    I = a.I
    I("buffer_store_dwordx4 v[%d:%d], v%d, %s, s%d offen" % (V_ONES, V_ONES + 3, V_H0, W, s_slot))
    I("s_lshl_b32 s%d, s%d, 9" % (S_T1, S_JM))
    I("s_add_u32 s%d, s%d, s%d" % (S_T1, S_T1, s_slot))
    I("buffer_store_dwordx2 v[%d:%d], v%d, %s, s%d offen" % (V_ONES, V_ONES + 1, V_L8, W, S_T1))
    I("s_xor_b32 s%d, s%d, %d" % (S_T1, S_T1, 16384 + 4096))
    I("buffer_store_dwordx2 v[%d:%d], v%d, %s, s%d offen" % (V_ONES, V_ONES + 1, V_L8, W, S_T1))


def bias(a):
    I = a.I
    t0, t1 = V_T, V_T + 1
    I("v_and_b32 v%d, 15, v0" % t0)
    I("v_bfe_u32 v%d, v0, 6, 1" % t1)
    I("v_lshl_add_u32 v%d, v%d, 4, v%d" % (t0, t1, t0))
    I("v_bfe_u32 v%d, v0, 4, 2" % t1)
    I("v_lshlrev_b32 v%d, 2, v%d" % (t1, t1))
    I("v_sub_u32 v%d, v%d, v%d" % (t0, t0, t1))
    I("v_mov_b32 v%d, 0xff800000" % t1)
    for i in range(8):
        I("v_cmp_gt_i32 vcc, %d, v%d" % (16 * (i >> 2) + (i & 3), t0))
        I("s_nop 1")
        I("v_cndmask_b32 v%d, 0, v%d, vcc" % (V_XB + i, t1))


def chain_main(a, name, stamp=None):
    I = a.I
    a.srd(S_WS, ptr(D_WS), 0, WS_SIZE)
    ABORT[0] = name + "_abort"
    I("s_mov_b32 s%d, 0" % S_SPIN)
    I("s_xor_b32 s%d, s%d, 8" % (S_JM, S_J))
    I("s_and_b32 s%d, s%d, 1" % (S_JQ, S_J))
    I("s_bfe_u32 s%d, s%d, 0x10001" % (S_T0, S_J))
    I("s_xor_b32 s%d, s%d, 1" % (S_T0, S_T0))
    I("s_lshl1_add_u32 s%d, s%d, s%d" % (S_JQ, S_JQ, S_T0))

    for _ in range(E("CDLY", 0)):
        I("s_sleep 36")
    pa = Asm()
    prologue_addrs(pa)
    pa.I("global_load_dwordx2 v[%d:%d], v%d, s[%d:%d]" % (V_Y, V_Y + 1, V_M0LD, ptr(B_MEM0), ptr(B_MEM0) + 1))
    bias(pa)

    def mid():
        if len(LOOPSTART) > 2:
            LOOPSTART[2]()
        kvs.ROLE[0](a, S_J, "chain_start", S_W, L_ROLE, S_T0, V_T)
        I("s_lshl_b32 s%d, s%d, 18" % (S_POI, S_W))
        I("s_add_u32 s%d, s%d, s%d" % (S_POI, S_POI, S_EXB))
        poison(a, S_POI)
        I("s_lshl_b32 s%d, s%d, 8" % (S_LF, S_X))
        I("s_add_u32 s%d, s%d, 0x%x" % (S_LF, S_LF, X_LF))
        I("s_cmp_eq_u32 s%d, 1" % S_J)
        I("s_cselect_b32 s%d, s%d, 0x%x" % (S_T1, S_LF, WS_SIZE))
        I("v_mov_b32 v%d, 0" % V_SMP)
        I("s_add_u32 s%d, s%d, 4096" % (S_T1, S_T1))
        I("buffer_store_dword v%d, v%d, %s, s%d offen sc1" % (V_SMP, V_SMP, W, S_T1))
        I("v_mov_b32 v%d, %d" % (V_SMP + 1, D_CAL * 4))
        I("global_load_dword v%d, v%d, s[%d:%d] sc1" % (V_SMP + 1, V_SMP + 1, S_DBG, S_DBG + 1))

    def early():
        l1 = a.uid("L_m0")
        I("s_barrier")
        warm = os.environ.get("WARM", "bcx")
        if warm:
            I("s_load_dwordx16 s[64:79], s[0:1], 0")
            I("v_lshlrev_b32 v%d, 3, v%d" % (V_T, V_LIN))
            I("s_lshl2_add_u32 s%d, s%d, s%d" % (S_T0, S_ID, S_W))
            I("s_lshl_b32 s%d, s%d, 13" % (S_T0, S_T0))
            I("s_and_b32 s%d, s%d, 0x1fffff" % (S_T1, S_T0))
            I("s_waitcnt lgkmcnt(0)")
            for c in warm:
                if c in "bc":
                    p = ptr(A_BRE if c == 'b' else A_CRE)
                    I("s_bitcmp1_b32 s%d, 21" % S_T0)
                    I("s_cselect_b64 s[%d:%d], s[%d:%d], s[%d:%d]" % (S_T2, S_T3, p + 2, p + 3, p, p + 1))
                    a.srd(S_TMPSRD, S_T2, 0, 2 * MB)
                    I("buffer_load_dword v%d, v%d, s[%d:%d], s%d offen" % (V_SMP + 2, V_T, S_TMPSRD, S_TMPSRD + 3, S_T1))
                else:
                    a.srd(S_TMPSRD, ptr({'a': A_X, 'x': B_X, 'o': B_WO, 'p': B_WO}[c]), 4 * MB if c == 'p' else 0, 4 * MB)
                    I("buffer_load_dword v%d, v%d, s[%d:%d], s%d offen" % (V_SMP + 2, V_T, S_TMPSRD, S_TMPSRD + 3, S_T0))
        I("v_and_b32 v%d, 15, v0" % V_T)
        I("v_lshlrev_b32 v%d, 7, v%d" % (V_T, V_T))
        I("s_lshl_b32 s%d, s%d, 11" % (S_T1, S_J))
        I("s_add_u32 s%d, s%d, s%d" % (S_T1, S_T1, S_POI))
        I("buffer_load_dword v%d, v%d, %s, s%d offen sc1" % (V_SMP + 2, V_T, W, S_T1))
        I("s_cmp_lg_u32 s%d, 0" % S_W)
        I("s_cbranch_scc1 %s" % l1)
        I("s_lshl2_add_u32 s%d, s%d, s%d" % (S_T1, S_J, S_LF))
        I("buffer_store_dword v%d, v%d, %s, s%d offen" % (V_ONES, V_SMP, W, S_T1))
        I("s_lshl_b32 s%d, s%d, 9" % (S_T1, S_JM))
        I("s_add_u32 s%d, s%d, s%d" % (S_T1, S_T1, S_EXB))
        I("v_min_u32 v%d, 0xfffffffe, v%d" % (V_Y, V_Y))
        I("v_min_u32 v%d, 0xfffffffe, v%d" % (V_Y + 1, V_Y + 1))
        I("buffer_store_dwordx2 v[%d:%d], v%d, %s, s%d offen" % (V_Y, V_Y + 1, V_L8, W, S_T1))
        a.L(l1)
    load_weights(a, pa.lines, mid, early)
    if LOOPSTART[1]:
        LOOPSTART[1]()
    for r in (V_P + 5, V_P + 6):
        I("v_mov_b32 v%d, 0" % r)
    for i in range(4):
        I("v_mov_b32 v%d, 0x3f803f80" % (V_ONEB + i))
    px_setup(a)
    I("s_mov_b32 s%d, 0" % S_GATE)
    I("s_barrier")
    if DRY:
        I("s_mov_b32 s%d, 0" % (S_WS + 2))
        I("s_add_u32 s%d, s%d, 0x1000" % (S_ID, S_ID))
        I("s_mov_b32 s%d, %d" % (S_STEP, LAST - 1))
        for r in (S_REL, S_NXT, S_KV):
            I("s_mov_b32 s%d, 0" % r)
        I("s_branch %s_loop" % name)
        a.L(name + "_real")
        I("s_mov_b32 s%d, 0x%x" % (S_WS + 2, WS_SIZE))
        I("s_sub_u32 s%d, s%d, 0x1000" % (S_ID, S_ID))
    I("s_mov_b32 s%d, 0" % S_STEP)
    I("s_mov_b32 s%d, 0xc0000" % S_REL)
    I("s_mov_b32 s%d, s%d" % (S_NXT, S_EXB))
    for i in range(16):
        I("v_mov_b32 v%d, 0" % (V_AQ + i))
    if E("PRIO", 0):
        lpr = a.uid("L_prio")
        I("s_cmp_lg_u32 s%d, 0" % S_W)
        I("s_cbranch_scc1 %s" % lpr)
        I("s_setprio 3")
        a.L(lpr)
    lab0 = a.uid("L_init0")
    for l in blk_addr(S_KV, 0):
        I(l)
    I("s_cmp_lg_u32 s%d, 1" % S_W)
    I("s_cbranch_scc1 %s" % lab0)
    if 'nowork' not in ABL:
        relay_wait(a, 0)
    for l in kv_dma('v'):
        I(l)
    a.L(lab0)
    lab2, lp = a.uid("L_init2"), a.uid("L_initp")
    I("s_cmp_lg_u32 s%d, 2" % S_W)
    I("s_cbranch_scc1 %s" % lab2)
    I("v_and_b32 v%d, 31, v0" % V_SMP)
    I("v_lshlrev_b32 v%d, 2, v%d" % (V_SMP, V_SMP))
    a.L(lp)
    I("buffer_load_dword v%d, v%d, %s, s%d offen sc1" % (V_SMP + 1, V_SMP, W, S_LF))
    for l in spin_lines():
        I(l)
    I("s_waitcnt vmcnt(0)")
    I("v_cmp_eq_u32 vcc, 0, v%d" % (V_SMP + 1))
    I("s_cbranch_vccz %s" % lab2)
    I("s_sleep 2")
    I("s_branch %s" % lp)
    a.L(lab2)
    I("s_barrier")
    for l in kv_dma('kq'):
        I(l)
    I("s_waitcnt vmcnt(0) lgkmcnt(0)")
    I("s_barrier")
    if LOOPSTART[0]:
        LOOPSTART[0]()
    step_body(a, name, stamp if stamp else (lambda i: None))
    i2 = len(a.lines)
    for line in COLD:
        a.raw(line)
    del COLD[:]
    if TOUR:
        i0, i1 = a.lines.index("ct_from:"), a.lines.index(name + "_loop:")
        st = E("TSTEP", 128)
        a.lines[i0:] = align.link_pads(align.add_pads(a.lines[i0:i1], st) + align.add_pads(a.lines[i1:i2], st, True) + align.add_pads(a.lines[i2:], st, not E("TCOLD", 1)),
                                       "ct", ["ct_ret%d" % (k // 3 + 1) for k in range(3 * TG)])
    if E("AFIX", 1):
        i0 = a.lines.index(name + "_loop:")
        a.lines[i0:] = align.fix(a.lines[i0:])
    a.L(ABORT[0])
    a.srd(S_TMPSRD, ptr(D_DBG), 0, 256)
    I("s_mov_b64 exec, 1")
    I("v_mov_b32 v1, s%d" % S_STEP)
    I("v_or_b32 v1, 0xdead0000, v1")
    I("v_mov_b32 v2, 124")
    I("buffer_store_dword v1, v2, s[%d:%d], 0 offen" % (S_TMPSRD, S_TMPSRD + 3))
    a.L(name + "_done")
    if DUMP[0]:
        DUMP[0]()
    I("s_endpgm")
```

```python
from asmlib import *
from L2 import *
import gemm2 as G
from gemm2 import S_XW, S_RK, S_WV, S_POL, T0, T1, T2, T3, srd_s, LDS_END, signal_lines, SPIN_LIMIT
import os
import align

SX, SW, SO = 8, 12, 16
S_M, S_R, S_D, S_XO, S_SEG, S_KO, S_PO, S_TO, S_WO, S_C32 = 20, 21, 22, 23, 24, 25, 26, 27, 28, 29
S_KB, S_PB, S_TC, S_MK = 30, 31, 33, 34
V_LIN, V_DX, V_RX, V_DW, V_RW, V_TCH, V_POLV, V_L4 = 1, 2, 4, 6, 8, 10, 11, 12
V_ONE, V_ACC, V_OUT, V_PK, V_F = 28, 32, 48, 64, 72
GROUP_END = [int(x) for x in os.environ.get("GRP", "0,1,2,3,4,6,9,13,18,25,34,46,63").split(",")]


def ring(r):
    return ["s_add_u32 s%d, s%d, 32768" % (r, r), "s_cmp_ge_u32 s%d, %d" % (r, LDS_END), "s_cselect_b32 s%d, %d, 0" % (T0, LDS_END), "s_sub_u32 s%d, s%d, s%d" % (r, r, T0)]


def get_polarity(a, vpol, vt):
    I = a.I
    lp, lok = a.uid("L_pp"), a.uid("L_pok")
    I("s_mov_b32 s%d, 0" % T2)
    a.L(lp)
    I("v_readfirstlane_b32 s%d, v%d" % (S_POL, vpol))
    I("s_and_b32 s%d, s%d, 0xff" % (T0, S_POL))
    I("s_cmp_ge_u32 s%d, 15" % T0)
    I("s_cbranch_scc1 %s" % lok)
    I("v_mov_b32 v%d, %d" % (vt, D_CAL * 4))
    I("global_load_dword v%d, v%d, s[%d:%d] sc1" % (vpol, vt, ptr(D_DBG), ptr(D_DBG) + 1))
    I("s_add_u32 s%d, s%d, 1" % (T2, T2))
    I("s_cmp_gt_u32 s%d, 0x%x" % (T2, SPIN_LIMIT))
    I("s_cbranch_scc1 %s" % G.ABORT[0])
    I("s_waitcnt vmcnt(0)")
    I("s_branch %s" % lp)
    a.L(lok)
    I("s_cmp_ge_u32 s%d, 0x800" % S_POL)
    I("s_cselect_b32 s%d, 0x2000, 0" % S_POL)


def xdma():
    return [("s_add_u32 m0, s%d, %d" % (S_M, st * (4096 - 128)), "buffer_load_dwordx4 v%d, %s, s%d offen offset:%d lds" % (V_DX, srd_s(SX), S_XO, st * 128)) for st in range(8)]


XADV = ["s_add_u32 s%d, s%d, 1024" % (S_XO, S_XO), "s_bitcmp1_b32 s%d, 11" % S_XO, "s_cselect_b32 s%d, 0x%x, 0" % (T0, 65536 - 2048), "s_add_u32 s%d, s%d, s%d" % (S_XO, S_XO, T0)]


ROLE = [None]


def calibrate(a, s_id, s_far, T0, B):
    T1, T2, T3 = T0 + 1, T0 + 2, T0 + 3
    import re
    I = lambda l: a.I(re.sub(r'@(\d)', lambda m: str(B + int(m.group(1))), l))
    I("s_lshl_b32 s%d, s%d, 14" % (T0, s_id))
    I("s_add_u32 s%d, s%d, 0x%x" % (T0, T0, X_CAL))
    I("s_add_u32 s@0, s%d, s%d" % (ptr(D_WS), T0))
    I("s_addc_u32 s@1, s%d, 0" % (ptr(D_WS) + 1))
    I("s_mov_b32 s%d, 0" % T0)
    I("s_atomic_or s%d, s[@0:@1], 0" % T0)
    I("s_atomic_or s%d, s[@0:@1], 0x2000" % T0)
    I("s_waitcnt lgkmcnt(0)")
    I("s_mov_b32 s%d, -1" % T1)
    I("s_mov_b32 s%d, -1" % T2)
    for rep in range(4):
        I("s_memtime s[@2:@3]")
        I("s_atomic_or s%d, s[@0:@1], 0" % T0)
        I("s_waitcnt lgkmcnt(0)")
        I("s_memtime s[@4:@5]")
        I("s_atomic_or s%d, s[@0:@1], 0x2000" % T0)
        I("s_waitcnt lgkmcnt(0)")
        I("s_sub_u32 s%d, s@4, s@2" % T3)
        I("s_memtime s[@2:@3]")
        I("s_min_u32 s%d, s%d, s%d" % (T1, T1, T3))
        I("s_waitcnt lgkmcnt(0)")
        I("s_sub_u32 s%d, s@2, s@4" % T3)
        I("s_min_u32 s%d, s%d, s%d" % (T2, T2, T3))
    I("s_cmp_lt_u32 s%d, s%d" % (T2, T1))
    I("s_cselect_b32 s%d, %s" % (T0, "1, 0x101" if s_far else "0x101, 1"))
    I("s_atomic_add s%d, s[%d:%d], %d" % (T0, ptr(D_DBG), ptr(D_DBG) + 1, D_CAL * 4))
    I("s_waitcnt lgkmcnt(0)")


def wload_setup(a, lg, split, pol):
    I = a.I
    t0, t1 = 24, 25
    I("v_bfe_u32 v%d, v0, 4, 3" % t0)
    I("v_lshlrev_b32 v%d, 1, v%d" % (t0, t0))
    I("v_and_b32 v%d, 15, v0" % t1)
    I("v_xor_b32 v%d, v%d, v%d" % (t0, t0, t1))
    I("v_lshlrev_b32 v%d, 4, v%d" % (V_DW, t0))
    for bit, n, sh in ((4, 2, 0), (6, 1, 2 if split else 3), (7, 1, 4 if split else 2)):
        I("v_bfe_u32 v%d, v0, %d, %d" % (t0, bit, n))
        I("v_lshl_add_u32 v%d, v%d, %d, v%d" % (V_DW, t0, lg + sh, V_DW))
    I("s_and_b32 s%d, s%d, 1" % (T0, S_WV))
    I("s_lshl_b32 s%d, s%d, 11" % (T1, T0))
    I("s_lshr_b32 s%d, s%d, 1" % (T0, S_WV))
    I("s_lshl_b32 s%d, s%d, 10" % (T0, T0))
    I("s_add_u32 s32, s%d, s%d" % (T0, T1))

    def wunit(u, slot=None):
        for m in range(8):
            row = 32 * (m >> 1) + 8 * (m & 1) if split else 16 * m
            I("s_add_u32 m0, s32, %d" % ((u % 5 if slot is None else slot) * 32768 + m * 4096))
            I("s_add_u32 s%d, s%d, 0x%x" % (T1, S_WO, (u * 128 + row) << lg))
            I("buffer_load_dwordx4 v%d, %s, s%d offen%s lds" % (V_DW, srd_s(SW), T1, pol))
    return wunit


def wread_setup(a, s_tx=None):
    I = a.I
    t0, t1 = 24, 25
    I("v_bfe_u32 v%d, v0, 2, 3" % t0)
    I("v_lshrrev_b32 v%d, 6, v0" % t1)
    I("v_lshlrev_b32 v%d, 1, v%d" % (t1, t1))
    I("v_xor_b32 v%d, v%d, v%d" % (t0, t0, t1))
    I("v_lshlrev_b32 v%d, 5, v%d" % (V_RW, t0))
    for bit, n, sh in ((0, 2, 3), (2, 2, 8), (4, 2, 11)):
        I("v_bfe_u32 v%d, v0, %d, %d" % (t0, bit, n))
        I("v_lshl_add_u32 v%d, v%d, %d, v%d" % (V_RW, t0, sh, V_RW))
    if s_tx is not None:
        I("v_xor_b32 v%d, s%d, v%d" % (V_RW, s_tx, V_RW))
    I("v_xor_b32 v%d, 32, v%d" % (V_RW + 1, V_RW))


def wo_setup(a, s_rank):
    I = a.I
    a.srd(SW, ptr(B_WO), 0, 8 * MB)
    I("s_lshr_b32 s%d, s%d, 3" % (T0, s_rank))
    I("s_lshl_b32 s%d, s%d, 21" % (S_WO, T0))
    I("s_and_b32 s%d, s%d, 7" % (T0, s_rank))
    I("s_lshl_b32 s%d, s%d, 8" % (T0, T0))
    I("s_add_u32 s%d, s%d, s%d" % (S_WO, S_WO, T0))
    return wload_setup(a, 11, True, " nt" * int(os.environ.get("SEGNT", "1")))


WPF = int(os.environ.get("WPF", "1"))
WPF0 = 46


def wread(a, u, slot=None, d=None):
    I = a.I
    if slot is None:
        slot = u % 5
        d = {2: 65536, 4: 65536, 5: -131072, 7: 65536}.get(u)
    if d:
        for t in range(2):
            I("v_add_u32 v%d, 0x%x, v%d" % (V_RW + t, d & 0xffffffff, V_RW + t))
    for ks in range(4):
        for t in range(2):
            d = ((u * 4 + ks) * 2 + t) * 4
            for hf in range(2):
                I("ds_read_b64_tr_b16 a[%d:%d], v%d offset:%d" % (d + 2 * hf, d + 2 * hf + 1, V_RW + t, (slot & 1) * 32768 + ks * 8192 + hf * 1024))
        if ks == 1:
            I("s_waitcnt lgkmcnt(0)")
    I("s_waitcnt lgkmcnt(0)")


def program(a, st):
    I = a.I
    t0, t1 = 24, 25
    a.L("kvs_start")
    I("s_cmp_eq_u32 s%d, 3" % S_XW)
    I("s_cselect_b64 s[%d:%d], s[%d:%d], s[%d:%d]" % (SW, SW + 1, ptr(B_WV), ptr(B_WV) + 1, ptr(B_WK), ptr(B_WK) + 1))
    I("s_cmp_eq_u32 s%d, 1" % S_XW)
    I("s_cselect_b64 s[%d:%d], s[%d:%d], s[%d:%d]" % (SW, SW + 1, ptr(B_WQ), ptr(B_WQ) + 1, SW, SW + 1))
    I("s_and_b32 s%d, s%d, 0xffff" % (SW + 1, SW + 1))
    I("s_mov_b32 s%d, 0x%x" % (SW + 2, 8 * MB))
    I("s_mov_b32 s%d, 0x00020000" % (SW + 3))
    I("s_lshl_b32 s%d, s%d, 8" % (S_WO, S_RK))
    wunit = wload_setup(a, 13, False, " nt")
    KT = int(os.environ.get("KT", "0"))

    def tour(g):
        if not KT:
            return
        if g == 1:
            align.hop(a, "ka", S_WV, [0, 1, 2, 3], "kt_ret1")
            return
        I("s_cmp_eq_u32 s%d, 3" % S_XW)
        I("s_cbranch_scc1 kt_v%d" % g)
        align.hop(a, "kk", S_WV, [4 * (g - 2) + w for w in range(4)], "kt_retk%d" % g)
        I("s_branch kt_e%d" % g)
        a.L("kt_v%d" % g)
        align.hop(a, "kv", S_WV, [4 * (g - 2) + w for w in range(4)], "kt_retv%d" % g)
        a.L("kt_e%d" % g)
    wunit(0)
    a.srd(SX, ptr(B_X), 0, 4 * MB)
    a.srd(SO, ptr(D_WS), 0, X_PXF + 64 * MB)
    I("v_and_b32 v%d, 63, v0" % t0)
    I("v_lshlrev_b32 v%d, 4, v%d" % (V_LIN, t0))
    I("v_add_u32 v%d, 4096, v%d" % (V_L4, V_LIN))
    I("v_lshlrev_b32 v%d, 7, v%d" % (V_TCH, t0))
    I("s_lshl_b32 s%d, s%d, 13" % (S_TO, S_RK))
    tour(1)
    wunit(1)
    I("v_bfe_u32 v%d, v0, 4, 3" % t0)
    I("v_and_b32 v%d, 7, v0" % t1)
    I("v_xor_b32 v%d, v%d, v%d" % (t0, t0, t1))
    I("v_lshlrev_b32 v%d, 4, v%d" % (V_DX, t0))
    I("v_lshrrev_b32 v%d, 3, v0" % t0)
    I("v_lshl_add_u32 v%d, v%d, 11, v%d" % (V_DX, t0, V_DX))
    I("v_bfe_u32 v%d, v0, 1, 3" % t0)
    I("v_bfe_u32 v%d, v0, 4, 2" % t1)
    I("v_xor_b32 v%d, v%d, v%d" % (t0, t0, t1))
    I("v_lshlrev_b32 v%d, 4, v%d" % (V_RX, t0))
    I("v_and_b32 v%d, 15, v0" % t1)
    I("v_lshl_add_u32 v%d, v%d, 7, v%d" % (V_RX, t1, V_RX))
    I("v_add_u32 v%d, %d, v%d" % (V_RX, 3 * 32768, V_RX))
    I("v_xor_b32 v%d, 64, v%d" % (V_RX + 1, V_RX))
    tour(2)
    wunit(2)
    wread_setup(a)
    for i in range(4):
        I("v_mov_b32 v%d, -1" % (V_ONE + i))
    I("s_lshl_b32 s%d, s%d, 10" % (S_M, S_WV))
    I("s_add_u32 s%d, s%d, %d" % (S_M, S_M, 3 * 32768))
    I("s_mov_b32 s%d, %d" % (S_R, 3 * 32768))
    I("s_mov_b32 s%d, 0" % S_XO)
    I("s_mov_b32 s%d, 32768" % S_C32)
    tour(3)
    wunit(3)
    I("s_lshl_b32 s%d, s%d, 16" % (S_KB, S_RK))
    I("s_cmp_eq_u32 s%d, 3" % S_XW)
    I("s_cselect_b32 s%d, 11, 10" % T0)
    I("s_cselect_b32 s%d, 0x4000, 0" % T1)
    I("s_lshl_b32 s%d, s%d, s%d" % (T0, S_WV, T0))
    I("s_add_u32 s%d, s%d, s%d" % (S_KB, S_KB, T0))
    I("s_add_u32 s%d, s%d, s%d" % (S_KB, S_KB, T1))
    I("s_lshr_b32 s%d, s%d, 1" % (S_PB, S_RK))
    I("s_lshl_b32 s%d, s%d, 14" % (S_PB, S_PB))
    I("s_and_b32 s%d, s%d, 1" % (T1, S_RK))
    I("s_lshl2_add_u32 s%d, s%d, s%d" % (T0, T1, S_WV))
    I("s_lshl_b32 s%d, s%d, 10" % (T0, T0))
    I("s_add_u32 s%d, s%d, s%d" % (S_PB, S_PB, T0))
    I("s_mov_b32 s%d, 0x%x" % (T1, X_PXF + 64 * MB))
    I("s_cmp_eq_u32 s%d, 1" % S_XW)
    I("s_cmov_b32 s%d, 0x%x" % (T1, X_PXF))
    I("s_add_u32 s%d, s%d, s%d" % (S_PB, S_PB, T1))
    I("s_cmp_eq_u32 s%d, 1" % S_XW)
    I("s_cselect_b32 s%d, 0x8000, 0" % T0)
    I("s_add_u32 s%d, s%d, s%d" % (S_KB, S_KB, T0))
    a.L("kt_from")
    wunit(4)
    for u in range(8):
        I("s_waitcnt vmcnt(%d)" % (32 if u == 0 else 24))
        I("s_barrier")
        if u == 0:
            st(1)
        if u >= 1:
            if u + 4 < 8:
                wunit(u + 4)
            elif u < 7:
                for m, l in xdma():
                    I(m)
                    I("s_nop 0")
                    I(l)
                for l in XADV + ring(S_M):
                    I(l)
        if u == int(os.environ.get("XTU", "2")):
            I("s_and_b32 s%d, s%d, 1" % (T0, S_WV))
            I("s_lshl_b32 s%d, s%d, 18" % (T0, T0))
            I("s_add_u32 s%d, s%d, s%d" % (T0, T0, S_TO))
            I("buffer_load_dword v13, v%d, %s, s%d offen%s" % (V_TCH, srd_s(SX), T0, " nt" * int(os.environ.get("XNT0", "0"))))
            I("s_add_u32 s%d, s%d, 0x80000" % (S_TO, S_TO))
        if u == 3:
            I("v_mov_b32 v%d, %d" % (t0, D_CAL * 4))
            I("global_load_dword v%d, v%d, s[%d:%d] sc1" % (V_POLV, t0, ptr(D_DBG), ptr(D_DBG) + 1))
        if u == 3:
            ROLE[1](a, (S_XW, 4), S_WV, T0, G.ABORT[0])
        if u == 7:
            st(4)
            ROLE[0](a, S_RK, "kvs_start", S_WV, 32768, T0, t0)
        wread(a, u)
    I("s_waitcnt vmcnt(16)")
    I("s_barrier")
    st(5)
    get_polarity(a, V_POLV, t0)
    I("s_xor_b32 s%d, s%d, s%d" % (S_PB, S_PB, S_POL))
    I("s_xor_b32 s%d, s%d, s%d" % (S_KB, S_KB, S_POL))
    if WPF:
        I("s_xor_b32 s%d, s%d, 2" % (T3, S_RK))
        wo_setup(a, T3)
    I("s_mov_b32 s%d, 0" % S_SEG)
    I("s_mov_b32 s%d, 0" % (SO + 2))
    st(2)
    lv, le = a.uid("L_kvv"), a.uid("L_kve")
    I("s_cmp_eq_u32 s%d, 3" % S_XW)
    I("s_cbranch_scc1 %s" % lv)
    i1 = len(a.lines)
    stream(a, 'k', le, st)
    i2 = len(a.lines)
    a.L(lv)
    stream(a, 'v', le, st)
    if KT:
        i0 = a.lines.index("kt_from:")
        sp = int(os.environ.get("KSTEP", "128"))
        a.lines[i0:] = (align.link_pads(align.add_pads(a.lines[i0:i1], sp), "ka", ["kt_ret1"] * 4) +
                        align.link_pads(align.add_pads(a.lines[i1:i2], sp), "kk", ["kt_retk2"] * 4 + ["kt_retk3"] * 4) +
                        align.link_pads(align.add_pads(a.lines[i2:], sp), "kv", ["kt_retv2"] * 4 + ["kt_retv3"] * 4))
    a.L(le)
    st(3)


def stream(a, kind, end, st):
    I = a.I
    nm = "kvs" + kind
    D = 3
    rd = lambda ks, tau: "ds_read_b128 v[%d:%d], v%d offset:%d" % (V_F + (ks & 3) * 8 + tau * 4, V_F + (ks & 3) * 8 + tau * 4 + 3, V_RX + (ks & 1), ((ks & 15) >> 1) * 4096 + tau * 2048)
    idx = (lambda tau, t: tau * 2 + t) if kind == 'k' else (lambda tau, t: t * 2 + tau)
    cvt = ["v_cvt_pk_bf16_f32 v%d, v%d, v%d" % (V_PK + i, V_OUT + 2 * i, V_OUT + 2 * i + 1) for i in range(8)]
    addr = ["s_lshl_b32 s%d, s%d, 21" % (S_KO, S_SEG), "s_lshl_b32 s%d, s%d, 13" % (T2, S_SEG), "s_and_b32 s%d, s%d, 0x2000" % (T2, T2),
            "s_xor_b32 s%d, s%d, s%d" % (T2, T2, S_KB), "s_add_u32 s%d, s%d, s%d" % (S_KO, S_KO, T2),
            "s_lshl_b32 s%d, s%d, 18" % (S_PO, S_SEG), "s_lshl_b32 s%d, s%d, 10" % (T2, S_SEG), "s_and_b32 s%d, s%d, 0x2000" % (T2, T2),
            "s_xor_b32 s%d, s%d, s%d" % (T2, T2, S_PB), "s_add_u32 s%d, s%d, s%d" % (S_PO, S_PO, T2)]
    stores = ["buffer_store_dwordx4 v[%d:%d], v%d, %s, s%d offen sc1" % (V_PK, V_PK + 3, V_LIN, srd_s(SO), S_KO),
              "buffer_store_dwordx4 v[%d:%d], v%d, %s, s%d offen%s sc1" % (V_PK + 4, V_PK + 7, V_L4 if kind == 'k' else V_LIN, srd_s(SO), S_KO, "" if kind == 'k' else " offset:1024"),
              "buffer_store_dwordx4 v[%d:%d], v%d, %s, s%d offen sc1" % (V_ONE, V_ONE + 3, V_LIN, srd_s(SO), S_PO)]
    radv = [["s_cmp_ge_u32 s%d, %d" % (S_R, LDS_END - 32768), "s_cselect_b32 s%d, 0x%x, s%d" % (S_D, (-131072) & 0xffffffff, S_C32), "s_add_u32 s%d, s%d, s%d" % (S_R, S_R, S_D)],
            ["v_add_u32 v%d, s%d, v%d" % (V_RX, S_D, V_RX)], ["v_add_u32 v%d, s%d, v%d" % (V_RX + 1, S_D, V_RX + 1)]]
    for ks in range(D):
        for tau in range(2):
            I(rd(ks, tau))
    items = []
    add = lambda s, ls, at=False: items.append((s, ls, at))
    E = lambda k, d: int(os.environ.get(k, str(d)))
    add(3, cvt)
    for i, l in enumerate(stores):
        add(E("KST0", 8) + E("KSTD", 2) * i, [l + " #st"])
    add(15, ["buffer_load_dword v13, v%d, %s, s%d offen%s" % (V_TCH, srd_s(SX), S_TC, " nt" * E("XNT", 0))])
    mg = sum(1 << g for g in GROUP_END if 3 <= g < 63)
    mk = mg | (1 << 62) | ((0xffff << (WPF0 - 2)) if WPF else 0)
    add(18, ["s_mov_b32 s%d, 0x%x" % (SO + 2, X_PXF + 64 * MB)] + addr + radv[0] +
        ["s_add_u32 s%d, s%d, 0x10000" % (S_TO, S_TO), "s_andn2_b32 s%d, 3, s%d" % (T1, S_SEG), "s_or_b32 s%d, s%d, s%d" % (T1, T1, S_WV),
         "s_cselect_b32 s%d, 0x400000, s%d" % (S_TC, S_TO), "s_cmp_lt_u32 s%d, 4" % S_SEG, "s_cselect_b64 vcc, -1, 0"])
    d0, dd = E("KD0", 40), E("KDD", 5)
    for un in range(2):
        for q, (m, l) in enumerate(xdma()):
            add(d0 + dd * (8 * un + q), [m, l + (" #" + "ab"[un] if q == 7 else "")] + (XADV + ring(S_M) if q == 7 else []))
        add(un * 64 + 4 * (14 - D) + 1.5, radv[1], True)
        add(un * 64 + 4 * (15 - D) + 1.5, radv[2], True)
    add(62, radv[0])
    add(124, ["s_add_u32 s%d, s%d, 1" % (S_SEG, S_SEG), "s_sub_u32 s%d, s%d, 2" % (T1, S_SEG), "s_bitcmp1_b64 s[%d:%d], s%d" % (S_MK, S_MK + 1, T1)])
    items = [(int(s + 0.5), ls, at) for s, ls, at in sorted(items, key=lambda it: it[0])]
    fill = place(items, [(1, 1, 2, 1)[i & 3] for i in range(120)] + [2] * 8)
    for kk in fill:
        assert radv[1][0] not in fill[kk] or 46 <= kk % 64 < 52
        assert radv[2][0] not in fill[kk] or 50 <= kk % 64 < 56
    late_a = min(kk for kk in fill if any(l.endswith("#a") for l in fill[kk])) >= 52
    late_b = min(kk for kk in fill if any(l.endswith("#b") for l in fill[kk])) >= 116
    I("s_mov_b32 s%d, 0x%x" % (S_MK, mk & 0xffffffff))
    I("s_mov_b32 s%d, 0x%x" % (S_MK + 1, (mk >> 32) & 0x7fffffff))
    I("s_cmp_eq_u32 s%d, 0" % S_WV)
    I("s_cselect_b32 s%d, s%d, 0x400000" % (S_TC, S_TO))
    I("s_mov_b32 s%d, 0" % S_KO)
    I("s_mov_b32 s%d, 0" % S_PO)
    early = []

    def body(v):
        for ks in range(32):
            if ks == 16 - D:
                v.I("@wait %s" % ("a" if late_a else "a<"))
                v.I("s_cbranch_vccnz %s_early" % nm)
                early.append(len(v.seq) - 1 - max(i for i, t in enumerate(v.seq) if t == "st"))
                v.I("s_barrier")
                v.I(nm + "_mid:")
            if ks == 32 - D:
                v.I("@wait %s st" % ("b" if late_b else "b<"))
                v.I("s_barrier")
            v.I("s_waitcnt lgkmcnt(%d)" % (2 * D - 2))
            k = 0
            for tau, t in ((0, 0), (0, 1), (1, 1), (1, 0)):
                c = V_ACC + idx(tau, t) * 4
                d = V_OUT + idx(tau, t) * 4 if ks == 31 else c
                w, x = "a[%d:%d]" % ((ks * 2 + t) * 4, (ks * 2 + t) * 4 + 3), "v[%d:%d]" % (V_F + (ks & 3) * 8 + tau * 4, V_F + (ks & 3) * 8 + tau * 4 + 3)
                v.I("v_mfma_f32_16x16x32_bf16 v[%d:%d], %s, %s, %s" % (d, d + 3, w if kind == 'k' else x, x if kind == 'k' else w, "0" if ks == 0 else "v[%d:%d]" % (c, c + 3)))
                if k < 2:
                    v.I(rd(ks + D, k))
                for l in fill.get(ks * 4 + k, []):
                    v.I(l)
                k += 1
    v0 = VM(Asm())
    body(v0)
    a.L(nm)
    body(VM(a, v0.seq))
    I("s_cbranch_scc0 %s" % nm)
    I("s_cmp_eq_u32 s%d, 64" % S_SEG)
    I("s_cbranch_scc1 %s_fin" % nm)
    if WPF:
        def pick(lo, n):
            if n == 1:
                for i in (2 * lo, 2 * lo + 1):
                    u, m = i >> 3, i & 7
                    I("s_add_u32 s%d, s%d, 0x%x" % (T2, S_WO, (u * 128 + 32 * (m >> 1) + 8 * (m & 1)) << 11))
                    I("buffer_load_dwordx4 v[%d:%d], v%d, %s, s%d offen nt" % (128 + 4 * i, 131 + 4 * i, V_DW, srd_s(SW), T2))
                I("s_branch %s_sig" % nm)
                return
            lab = a.uid("L_wp")
            I("s_cmp_ge_u32 s%d, %d" % (S_SEG, WPF0 + lo + n // 2))
            I("s_cbranch_scc1 %s" % lab)
            pick(lo, n // 2)
            a.L(lab)
            pick(lo + n // 2, n // 2)
        I("s_sub_u32 s%d, s%d, %d" % (T2, S_SEG, WPF0))
        I("s_cmp_ge_u32 s%d, 16" % T2)
        I("s_cbranch_scc1 %s_sig" % nm)
        pick(0, 16)
    a.L(nm + "_sig")
    I("s_cmp_lg_u32 s%d, 0" % S_WV)
    I("s_cbranch_scc1 %s" % nm)
    I("s_mov_b32 s%d, 0x%x" % (T2, mg & 0xffffffff))
    I("s_mov_b32 s%d, 0x%x" % (T3, mg >> 32))
    I("s_bitcmp1_b64 s[%d:%d], s%d" % (T2, T3, T1))
    I("s_cbranch_scc0 %s" % nm)
    group_word(a, T1, T0)
    signal_lines(a, T0)
    I("s_branch %s" % nm)
    a.L(nm + "_early")
    I("s_waitcnt vmcnt(%d)" % early[0])
    I("s_barrier")
    I("s_cmp_eq_u32 s%d, 0" % S_SEG)
    I("s_cbranch_scc1 %s_mid" % nm)
    I("s_cmp_lg_u32 s%d, 0" % S_WV)
    I("s_cbranch_scc1 %s_mid" % nm)
    I("s_lshl_b32 s%d, s%d, 2" % (T0, S_SEG))
    I("s_add_u32 s%d, s%d, %d" % (T0, T0, D_EV * 4 - 4))
    signal_lines(a, T0)
    if int(os.environ.get("WT", "0")):
        I("s_cmp_lg_u32 s%d, 1" % S_SEG)
        I("s_cbranch_scc1 %s_mid" % nm)
        st(6)
    I("s_branch %s_mid" % nm)
    a.L(nm + "_fin")
    for l in ["s_nop 7"] + cvt + stores:
        I(l)
    I("s_waitcnt vmcnt(0) lgkmcnt(0)")
    I("s_barrier")
    I("s_cmp_lg_u32 s%d, 0" % S_WV)
    I("s_cbranch_scc1 %s" % end)
    I("s_mov_b32 s%d, %d" % (T0, (D_EV + len(GROUP_END) - 1) * 4))
    signal_lines(a, T0)
    I("s_branch %s" % end)


def group_word(a, s_seg, d, p0=T2):
    I = a.I
    m = sum(1 << g for g in GROUP_END)
    I("s_bfm_b64 s[%d:%d], s%d, 0" % (p0, p0 + 1, s_seg))
    I("s_and_b32 s%d, s%d, 0x%x" % (p0, p0, m & 0xffffffff))
    I("s_and_b32 s%d, s%d, 0x%x" % (p0 + 1, p0 + 1, m >> 32))
    I("s_bcnt1_i32_b64 s%d, s[%d:%d]" % (d, p0, p0 + 1))
    I("s_lshl_b32 s%d, s%d, 2" % (d, d))
    I("s_add_u32 s%d, s%d, %d" % (d, d, D_EV * 4))
```
